```python
import torch

def _softmax(x, axis=-1):
    return torch.softmax(x, dim=axis)

def _gelu(x):
    return torch.nn.functional.gelu(x, approximate='tanh')

def _silu(x):
    return torch.nn.functional.silu(x)

def _sigmoid(x):
    return torch.sigmoid(x)

def _layernorm(x, axis=-1, eps=1e-05):
    m = x.mean(dim=axis, keepdim=True)
    v = x.var(dim=axis, keepdim=True, unbiased=False)
    return (x - m) / torch.sqrt(v + eps)

def _scatter_add(tgt, idx, src, axis=0):
    return tgt.clone().index_add_(axis, idx, src)

def _segment_sum(src, seg, n):
    out = torch.zeros((n,) + src.shape[1:], dtype=src.dtype)
    return out.index_add_(0, seg, src)

def _pad(x, pw):
    flat = tuple((v for pair in reversed(pw) for v in pair))
    return torch.nn.functional.pad(x, flat)
kernel_name = 'adaLN_cond__ssm_conv_s4__moe_arch_mod__prompt'

def setup_inputs():

    _w = lambda a: (lambda t: t.to(torch.bfloat16) if t.is_floating_point() else t)(torch.as_tensor(a))

    def _A_setup():
        B, L, D, N = (1, 2048, 448, 256)
        A_re = -(lambda _x: torch.exp(torch.as_tensor(_x)))((lambda *s: torch.randn(*s, dtype=torch.bfloat16) * 12.8)(D, N))
        A_im = torch.pi * (lambda *s: torch.randn(*s, dtype=torch.bfloat16) * 0.05)(D, N)
        B_re = (lambda *s: torch.randn(*s, dtype=torch.bfloat16) * 0.1)(D, N)
        B_im = (lambda *s: torch.randn(*s, dtype=torch.bfloat16) * 0.1)(D, N)
        C_re = (lambda *s: torch.randn(*s, dtype=torch.bfloat16) * 0.1)(D, N)
        C_im = (lambda *s: torch.randn(*s, dtype=torch.bfloat16) * 0.1)(D, N)
        log_dt = (lambda *s: torch.randn(*s, dtype=torch.bfloat16) * 0.05)(D) * 0.5 - 4.0
        Dskip = (lambda *s: torch.randn(*s, dtype=torch.bfloat16) * 0.05)(D)
        return {'u': _w((lambda *s: torch.randn(*s, dtype=torch.bfloat16) * 0.05)(B, L, D)), 'A_re': _w(A_re), 'A_im': _w(A_im), 'B_re': _w(B_re), 'B_im': _w(B_im), 'C_re': _w(C_re), 'C_im': _w(C_im), 'log_dt': _w(log_dt), 'Dskip': _w(Dskip)}
    _A_in = _A_setup()

    def _B_setup():
        B, S, D, F, C = (1, 2048, 448, 1792, 8)
        return {'x': _w((lambda *s: torch.randn(*s, dtype=torch.bfloat16) * 0.05)(B, S, D)), 'w_r': _w((lambda *s: torch.randn(*s, dtype=torch.bfloat16) * 0.05)(D)), 'w_gate': _w((lambda *s: torch.randn(*s, dtype=torch.bfloat16) * 0.05)(D, F)), 'w_up': _w((lambda *s: torch.randn(*s, dtype=torch.bfloat16) * 0.05)(D, F)), 'w_down': _w((lambda *s: torch.randn(*s, dtype=torch.bfloat16) * 0.05)(F, D))}
    _B_in = _B_setup()
    return {'A_u': _A_in['u'], 'A_A_re': _A_in['A_re'], 'A_A_im': _A_in['A_im'], 'A_B_re': _A_in['B_re'], 'A_B_im': _A_in['B_im'], 'A_C_re': _A_in['C_re'], 'A_C_im': _A_in['C_im'], 'A_log_dt': _A_in['log_dt'], 'A_Dskip': _A_in['Dskip'], 'B_x': _B_in['x'], 'B_w_r': _B_in['w_r'], 'B_w_gate': _B_in['w_gate'], 'B_w_up': _B_in['w_up'], 'B_w_down': _B_in['w_down'], 'c': _w((lambda *s: torch.randn(*s, dtype=torch.bfloat16) * 0.1)(1, 448) * 8.0), 'w_mod': _w((lambda *s: torch.randn(*s, dtype=torch.bfloat16) * 0.1)(448, 6 * 448) * 448 ** (-0.5) * 8.0)}

def reference(A_u, A_A_re, A_A_im, A_B_re, A_B_im, A_C_re, A_C_im, A_log_dt, A_Dskip, B_x, B_w_r, B_w_gate, B_w_up, B_w_down, c, w_mod):

    def _A_ref(u, A_re, A_im, B_re, B_im, C_re, C_im, log_dt, Dskip):
        Bsz, L, D = u.shape
        dt = torch.exp(log_dt)[:, None]
        A = A_re + 1j * A_im
        Bc = B_re + 1j * B_im
        Cc = C_re + 1j * C_im
        logdA = dt * A
        dB = dt * Bc
        l = (lambda x, dt: x.to(dt))(torch.arange(L), A_re.dtype)
        P = torch.exp(logdA[:, :, None] * l[None, None, :])
        K = torch.einsum('dn,dnl,dn->dl', Cc, P, dB).real
        L2 = 2 * L
        Kp = _pad(K, ((0, 0), (0, L)))
        up = (lambda x, *d: x.permute(*d))(u, 0, 2, 1)
        up = _pad(up, ((0, 0), (0, 0), (0, L)))
        Kf = (lambda x, axes=(-2, -1): torch.fft.rfft2(x.float(), dim=axes))(Kp[:, None, :], axes=(-2, -1))
        Uf = (lambda x, axes=(-2, -1): torch.fft.rfft2(x.float(), dim=axes))(up[:, :, None, :], axes=(-2, -1))
        Yf = Uf * Kf[None, :, :, :]
        y = (lambda x, s, axes=(-2, -1): torch.fft.irfft2(x, s=s, dim=axes).to(torch.bfloat16))(Yf, (1, L2), axes=(-2, -1))[:, :, 0, :L]
        y = (lambda x, *d: x.permute(*d))(y, 0, 2, 1) + u * Dskip[None, None, :]
        return y

    def _B_ref(x, w_r, w_gate, w_up, w_down):
        B, S, D = x.shape
        C = 8
        r = x @ w_r
        idx = torch.argsort(-r, axis=-1)[:, :C]
        idx_e = (lambda x, n, axis: torch.repeat_interleave(x, n, dim=axis))(idx.reshape(B, C, 1), D, axis=2)
        x_sel = (lambda x, i, axis: torch.take_along_dim(x, i, dim=axis))(x, idx_e, axis=1)
        g = _silu(x_sel @ w_gate)
        u = x_sel @ w_up
        y = g * u @ w_down
        r_sel = _sigmoid((lambda x, i, axis: torch.take_along_dim(x, i, dim=axis))(r, idx, axis=1))
        y = y * r_sel.reshape(B, C, 1)
        b_off = (torch.arange(B) * S).reshape(B, 1)
        flat_idx = (idx + b_off).reshape(B * C)
        zero = (x * 0.0).reshape(B * S, D)
        upd = _scatter_add(zero, flat_idx, y.reshape(B * C, D), axis=0)
        return x + upd.reshape(B, S, D)
    x = A_u
    mod = (_silu(c) @ w_mod).reshape(c.shape[0], 6, 1, -1)
    sa, ca, ga, sb, cb, gb = (mod[:, 0].clone(), mod[:, 1].clone(), mod[:, 2].clone(), mod[:, 3].clone(), mod[:, 4].clone(), mod[:, 5].clone())
    h = _layernorm(x, axis=-1) * (1 + ca) + sa
    x = x + ga * _A_ref(h, A_A_re, A_A_im, A_B_re, A_B_im, A_C_re, A_C_im, A_log_dt, A_Dskip)
    h = _layernorm(x, axis=-1) * (1 + cb) + sb
    x = x + gb * _B_ref(h, B_w_r, B_w_gate, B_w_up, B_w_down)
    return x
```

```python
import re

TRANS = ('v_exp_f32','v_log_f32','v_rcp_f32','v_rsq_f32','v_sqrt_f32','v_sin_f32','v_cos_f32','v_rcp_iflag_f32')

def _regs(tok):
    tok = tok.strip()
    tok = re.sub(r'^-', '', tok)
    m = re.match(r'^abs\((.*)\)$', tok)
    if m: tok = m.group(1)
    tok = tok.strip('|')
    m = re.match(r'^([vsa])\[(\d+):(\d+)\]$', tok)
    if m:
        return {(m.group(1), i) for i in range(int(m.group(2)), int(m.group(3))+1)}
    m = re.match(r'^([vsa])(\d+)$', tok)
    if m: return {(m.group(1), int(m.group(2)))}
    if tok in ('vcc',): return {('s',106),('s',107)}
    if tok == 'vcc_lo': return {('s',106)}
    if tok == 'vcc_hi': return {('s',107)}
    if tok == 'exec': return {('s',126),('s',127)}
    if tok == 'm0': return {('s',124)}
    return set()

VCC = {('s',106),('s',107)}
EXEC = {('s',126),('s',127)}

class Ins:
    pass

def parse(text):
    t = text.split(';')[0].strip()
    m = re.match(r'^(\S+)\s*(.*)$', t)
    mn, rest = m.group(1), m.group(2)
    ops=[]; depth=0; cur=''
    for ch in rest:
        if ch=='[': depth+=1
        if ch==']': depth-=1
        if ch==',' and depth==0: ops.append(cur); cur=''
        else: cur+=ch
    if cur.strip(): ops.append(cur)
    mods=''
    if ops:
        parts = ops[-1].strip().split(None,1)
        if len(parts)==2: ops[-1]=parts[0]; mods=parts[1]
        else: ops[-1]=parts[0] if parts else ''
    I = Ins(); I.mn=mn; I.text=text; I.mods=mods
    base = re.sub(r'_(e32|e64|dpp|sdwa)$','',mn)
    I.base=base
    I.mfma = mn.startswith('v_mfma')
    I.valu = mn.startswith('v_') and not I.mfma
    I.trans = base in TRANS
    I.dpp = ('row_' in mods or 'wave_' in mods or 'quad_perm' in mods or mn.endswith('_dpp'))
    I.lane = base in ('v_readlane_b32','v_readfirstlane_b32','v_writelane_b32')
    I.permlane = base.startswith('v_permlane')
    I.vmem = mn.startswith('buffer_') or mn.startswith('global_') or mn.startswith('flat_')
    I.ds = mn.startswith('ds_')
    I.salu = mn.startswith('s_')
    I.w=set(); I.r=set(); I.srcC=set(); I.srcAB=set(); I.stdata=set(); I.lanesel=set()
    R=[_regs(o) for o in ops]
    if I.mfma:
        I.w=R[0]; I.srcAB=R[1]|R[2]; I.srcC=R[3]; I.r=I.srcAB|I.srcC
        if '32x32x16' in mn or '32x32x8' in mn: I.passes=8
        elif '16x16x32' in mn or '16x16x16' in mn: I.passes=4
        elif '32x32x2_f32' in mn: I.passes=16
        elif '16x16x4_f32' in mn: I.passes=8
        else: raise Exception('mfma passes? '+mn)
        I.sgemm = mn.endswith('_f32') and ('x2_f32' in mn or 'x4_f32' in mn)
    elif I.valu:
        if base.startswith('v_cmpx'):
            I.w=R[0]|EXEC; I.r=set().union(*R[1:])
        elif base.startswith('v_cmp'):
            I.w=R[0]; I.r=set().union(*R[1:])
        elif base in ('v_add_co_u32','v_sub_co_u32','v_subrev_co_u32','v_addc_co_u32','v_subb_co_u32','v_div_scale_f32','v_mad_u64_u32'):
            I.w=R[0]|R[1]; I.r=set().union(*R[2:])
        elif I.permlane and 'swap' in base:
            I.w=R[0]|R[1]; I.r=R[0]|R[1]
        else:
            I.w=R[0]; I.r=set().union(*R[1:]) if len(R)>1 else set()
            if base in ('v_fmac_f32','v_pk_fmac_f16','v_dot2c_f32_bf16','v_writelane_b32') or I.dpp: I.r|=R[0]
            if base=='v_div_fmas_f32': I.r|=VCC
            if base in ('v_readlane_b32','v_writelane_b32') and len(R)>2: I.lanesel=R[2]
    elif I.vmem:
        if 'store' in mn or ('atomic' in mn):
            if mn.startswith('buffer_'):
                I.stdata=R[0]; I.r=set().union(*R)
                if 'atomic' in mn and 'sc0' in mods: I.w=R[0]
            else:
                I.r=set().union(*R); I.stdata=R[1] if len(R)>1 else set()
        elif ' lds' in (' '+mods) or '_lds_' in mn:
            I.r=set().union(*R)|{('s',124)}; I.ldsdma=True
        elif mn.startswith('buffer_wbl2') or mn.startswith('buffer_inv'):
            pass
        else:
            I.w=R[0]; I.r=set().union(*R[1:])
        I.wide = ('dwordx4' in mn or 'dwordx3' in mn) and 'store' in mn
    elif I.ds:
        if 'write' in mn or mn.startswith('ds_add') or mn.startswith('ds_max') or mn.startswith('ds_min'):
            if '_rtn' in mn: I.w=R[0]; I.r=set().union(*R[1:])
            else: I.r=set().union(*R)
        else:
            I.w=R[0]; I.r=set().union(*R[1:])
    elif I.salu:
        if mn.startswith('s_cmp') or mn.startswith('s_cbranch') or mn in ('s_branch','s_waitcnt','s_nop','s_barrier','s_endpgm','s_setprio','s_sleep'):
            I.r=set().union(*R) if R else set()
        else:
            I.w=R[0] if R else set(); I.r=set().union(*R[1:]) if len(R)>1 else set()
            if 'saveexec' in mn: I.w|=EXEC; I.r|=EXEC
    return I

def need(P, C):
    n=0
    vw = {x for x in P.w if x[0] in 'va'}
    sw = {x for x in P.w if x[0]=='s'}
    if P.valu:
        if C.dpp and (vw & C.r): n=max(n,2)
        if C.lane and (vw & C.r) and C.base!='v_writelane_b32': n=max(n,1)
        if C.permlane and (vw & C.r): n=max(n,2)
        if C.mfma and (vw & C.r): n=max(n,2)
        if P.trans and C.valu and not C.trans and (vw & C.r): n=max(n,1)
        if sw:
            if (C.valu or C.mfma) and (sw & C.r): n=max(n,2)
            if C.lane and (sw & C.lanesel): n=max(n,4)
            if C.vmem and (sw & C.r): n=max(n,5)
            if C.base=='v_div_fmas_f32' and (sw & VCC): n=max(n,4)
            if sw & EXEC:
                if C.lane or C.permlane or C.mfma: n=max(n,4)
                if C.dpp: n=max(n,5)
    if P.mfma:
        p=P.passes
        if P.sgemm:
            tv={2:4,4:6,8:10,16:18}[p]; tab=tv; tc={2:2,4:4,8:8,16:16}[p]
        else:
            tv={2:5,4:8,8:12,16:20}[p]; tab=tv; tc={2:4,4:6,8:10,16:18}[p]
        if C.mfma:
            if P.w & C.srcAB: n=max(n,tab)
            if P.w & C.srcC:
                if not (P.w==C.srcC and P.passes==C.passes): n=max(n,tc)
        else:
            if (P.w & (C.r|C.w)): n=max(n,tv)
        if C.valu and (P.srcC & C.w) and not P.sgemm: n=max(n,{2:1,4:3,8:7,16:15}[p])
    if P.vmem and getattr(P,'wide',False):
        if (P.stdata & C.w): n=max(n,2 if C.valu else 1)
    if P.salu and (('s',124) in P.w) and getattr(C,'ldsdma',False): n=max(n,1)
    return n

class Asm:
    def __init__(self):
        self.out=[]; self.hist=[]
    def raw(self, text):
        self.out.append(text)
    def label(self, name):
        self.out.append(name+':')
    def flush(self, n=0):
        self.hist=[]
    def nop(self, n):
        while n>0:
            k=min(n,16); self.out.append(f'    s_nop {k-1}'); self._adv(k); n-=k
    def _adv(self,k):
        self.hist=[(I,s+k) for I,s in self.hist if s+k<24]
    def __call__(self, text):
        for line in text.strip('\n').split('\n'):
            line=line.strip()
            if not line or line.startswith(';'):
                if line: self.out.append('    '+line)
                continue
            if line.endswith(':'):
                self.out.append(line); continue
            if line.startswith('.'):
                self.out.append(line); continue
            I=parse(line)
            if I.mn=='s_nop':
                k=int(line.split()[1],0)+1; self.out.append('    '+line); self._adv(k); continue
            req=0
            for P,s in self.hist:
                req=max(req, need(P,I)-s)
            if req>0: self.nop(req)
            self.out.append('    '+line)
            self._adv(1)
            self.hist.append((I,0))
    def text(self): return '\n'.join(self.out)+'\n'
```

```python
import sys, struct, math
sys.path.insert(0,'work')
from asmlib import Asm
from layout import *
import numpy as np

def f2u(x): return struct.unpack('<I', struct.pack('<f', x))[0]
def hx(x): return '0x%08x' % f2u(x)
LOG2E = 1.4426950408889634; L_HI = float(np.float32(LOG2E)); L_LO = float(np.float32(LOG2E-L_HI))
LN2 = 0.6931471805599453
I2P = 0.15915494309189535; I2P_HI = float(np.float32(I2P)); I2P_LO = float(np.float32(I2P-I2P_HI))
WS_SIZE = 268435456
KA = dict(A_u=0,A_re=8,A_im=16,B_re=24,B_im=32,C_re=40,C_im=48,log_dt=56,Dskip=64,B_x=72,w_r=80,w_gate=88,w_up=96,w_down=104,c=112,w_mod=120,out=128,dbg=136,ws=144)
SZ = dict(A_u=2048*896,A_re=448*512,A_im=448*512,B_re=448*512,B_im=448*512,C_re=448*512,C_im=448*512,log_dt=896,Dskip=896,w_r=896,w_gate=448*3584,w_up=448*3584,w_down=1792*896,c=896,w_mod=448*5376,out=2048*896,dbg=256,ws=WS_SIZE)

def srd_load(a, s, name):
    a(f"s_load_dwordx2 s[{s}:{s+1}], s[0:1], {KA[name]}")
    a(f"s_mov_b32 s{s+2}, {SZ[name]}")
    a(f"s_mov_b32 s{s+3}, 0x20000")

def rnd2(a, x0, x1, tmp):
    a(f"v_cvt_pk_bf16_f32 v{tmp}, v{x0}, v{x1}")
    a(f"v_lshlrev_b32 v{x0}, 16, v{tmp}")
    a(f"v_and_b32 v{x1}, 0xffff0000, v{tmp}")

def rnd1(a, x0, tmp):
    a(f"v_cvt_pk_bf16_f32 v{tmp}, v{x0}, v{x0}")
    a(f"v_lshlrev_b32 v{x0}, 16, v{tmp}")

def wave_red(a, regs, op='v_add_f32'):
    zero = ' bound_ctrl:0'
    for sh in (1,2,4,8):
        for r in regs: a(f"{op}_dpp v{r}, v{r}, v{r} row_shr:{sh} row_mask:0xf bank_mask:0xf{zero}")
    for r in regs: a(f"{op}_dpp v{r}, v{r}, v{r} row_bcast:15 row_mask:0xa bank_mask:0xf")
    for r in regs: a(f"{op}_dpp v{r}, v{r}, v{r} row_bcast:31 row_mask:0xc bank_mask:0xf")

def exp_acc(a, dst, x, t, e, sLhi, sLlo, sLn2, neg=False):
    n = '-' if neg else ''
    a(f"v_mul_f32 v{t}, s{sLhi}, v{x}")
    a(f"v_fma_f32 v{e}, v{x}, s{sLhi}, -v{t}")
    a(f"v_fma_f32 v{e}, v{x}, s{sLlo}, v{e}")
    a(f"v_exp_f32 v{dst}, {n}v{t}" if not neg else f"v_exp_f32_e64 v{dst}, -v{t}")
    a(f"v_mul_f32 v{e}, s{sLn2}, v{e}")
    a(f"v_fma_f32 v{dst}, v{dst}, {n}v{e}, v{dst}")

def div_acc(a, q, num, den, r, e):
    a(f"v_mul_f32 v{q}, v{num}, v{r}")
    a(f"v_fma_f32 v{e}, -v{q}, v{den}, v{num}")
    a(f"v_fma_f32 v{q}, v{e}, v{r}, v{q}")

def cmul(a, d, x, y, t):
    a(f"v_pk_mul_f32 v[{t}:{t+1}], v[{x}:{x+1}], v[{y}:{y+1}] op_sel:[0,0] op_sel_hi:[1,0]")
    a(f"v_pk_fma_f32 v[{d}:{d+1}], v[{x}:{x+1}], v[{y}:{y+1}], v[{t}:{t+1}] op_sel:[1,1,0] op_sel_hi:[0,1,1] neg_lo:[1,0,0]")

def ln_stats(a, X, nrows, sums, tmp, S0, exec_lo_hi):
    for i in range(nrows):
        x=X[i]; s=sums[i]
        a(f"v_add_f32 v{s}, v{x[0]}, v{x[1]}")
        for e in range(2,8): a(f"v_add_f32 v{s}, v{s}, v{x[e]}")
    wave_red(a, sums)
    for i in range(nrows): a(f"v_readlane_b32 s{S0+i}, v{sums[i]}, 63")
    mean=[tmp+i for i in range(nrows)]
    a(f"v_mov_b32 v{tmp+3*nrows}, {hx(1.0/448)}")
    for i in range(nrows): a(f"v_mul_f32 v{mean[i]}, s{S0+i}, v{tmp+3*nrows}")
    for i in range(nrows): a(f"v_mov_b32 v{sums[i]}, 0")
    a(f"s_mov_b32 exec_hi, 0x00ffffff")
    d=tmp+3*nrows+1
    for i in range(nrows):
        for e in range(8):
            a(f"v_sub_f32 v{d+(e&1)}, v{X[i][e]}, v{mean[i]}")
            a(f"v_fmac_f32 v{sums[i]}, v{d+(e&1)}, v{d+(e&1)}")
    a(f"s_mov_b32 exec_hi, -1")
    a.nop(1)
    wave_red(a, sums)
    for i in range(nrows): a(f"v_readlane_b32 s{S0+i}, v{sums[i]}, 63")
    sd=[tmp+nrows+i for i in range(nrows)]; ri=[tmp+2*nrows+i for i in range(nrows)]
    for i in range(nrows):
        a(f"v_mul_f32 v{sd[i]}, s{S0+i}, v{tmp+3*nrows}")
        rnd2(a, mean[i], sd[i], d)
        a(f"v_add_f32 v{sd[i]}, {hx(1e-5)}, v{sd[i]}")
        rnd1(a, sd[i], d)
        a(f"v_sqrt_f32 v{sd[i]}, v{sd[i]}")
        rnd1(a, sd[i], d)
        a(f"v_rcp_f32 v{ri[i]}, v{sd[i]}")
    return mean, sd, ri

def ln_norm(a, x, out, m, s, ri, t0):
    for e in range(0,8,2):
        a(f"v_sub_f32 v{out[e]}, v{x[e]}, v{m}")
        a(f"v_sub_f32 v{out[e+1]}, v{x[e+1]}, v{m}")
        rnd2(a, out[e], out[e+1], t0)
        for k in (e,e+1):
            a(f"v_mul_f32 v{t0+1}, v{out[k]}, v{ri}")
            a(f"v_fma_f32 v{t0+2}, -v{t0+1}, v{s}, v{out[k]}")
            a(f"v_fma_f32 v{out[k]}, v{t0+2}, v{ri}, v{t0+1}")
        rnd2(a, out[e], out[e+1], t0)

def unpack8(a, src, dst):
    for i in range(4):
        a(f"v_lshlrev_b32 v{dst[2*i]}, 16, v{src+i}")
        a(f"v_and_b32 v{dst[2*i+1]}, 0xffff0000, v{src+i}")

def idx_of_l(a, dst, lf, lu, t, sc):
    a(f"v_cvt_pk_bf16_f32 v{t}, v{lf}, v{lf}")
    a(f"v_and_b32 v{t}, 0xffff, v{t}")
    a(f"v_subrev_u32 v{t}, {(134<<7)-128}, v{t}")
    a(f"v_cmp_gt_u32_e64 s[{sc}:{sc+1}], 128, v{lu}" if False else f"v_cmp_lt_u32_e64 s[{sc}:{sc+1}], v{lu}, v{t+1}")
    a(f"v_cndmask_b32_e64 v{dst}, v{t}, v{lu}, s[{sc}:{sc+1}]")

N_GEMV=84; N_STAT=128; N_KGEN=448
def k1(a):
    a.label('k1_kernel')
    a(f"s_cmp_ge_u32 s2, {N_GEMV+N_STAT+N_KGEN}")
    a("s_cbranch_scc1 L1_end")
    a(f"s_cmp_ge_u32 s2, {N_GEMV+N_STAT}")
    a("s_cbranch_scc1 L1_kgen")
    a(f"s_cmp_ge_u32 s2, {N_GEMV}")
    a("s_cbranch_scc1 L1_stat")
    srd_load(a,4,'w_mod'); srd_load(a,8,'c'); srd_load(a,12,'ws')
    a(f"s_mov_b32 s30, {hx(L_HI)}"); a(f"s_mov_b32 s31, {hx(L_LO)}"); a(f"s_mov_b32 s32, {hx(LN2)}")
    a("v_lshrrev_b32 v1, 2, v0"); a("v_and_b32 v2, 3, v0")
    a("v_mul_u32_u24 v3, 5376, v1")
    a("v_lshl_add_u32 v3, v2, 4, v3")
    a("s_lshl_b32 s3, s2, 6")
    a("v_add_u32 v3, s3, v3")
    a("v_lshlrev_b32 v4, 1, v1")
    for i in range(7): a(f"s_mov_b32 s{20+i}, {344064*i}")
    a("s_waitcnt lgkmcnt(0)")
    for i in range(7): a(f"buffer_load_ushort v{8+i}, v4, s[8:11], 0 offen offset:{128*i}")
    for i in range(7): a(f"buffer_load_dwordx4 v[{16+4*i}:{19+4*i}], v3, s[4:7], s{20+i} offen")
    a("s_waitcnt vmcnt(7)")
    for i in range(7):
        x=8+i
        a(f"v_lshlrev_b32 v{x}, 16, v{x}")
        exp_acc(a, 60, x, 61, 62, 30, 31, 32, neg=True)
        a("v_add_f32 v60, 1.0, v60")
        a("v_rcp_f32 v61, v60")
        div_acc(a, 63, x, 60, 61, 62)
        rnd1(a, 63, 61)
        a(f"v_mov_b32 v{x}, v63")
    for e in range(8): a(f"v_mov_b32 v{48+e}, 0")
    for i in range(7):
        a(f"s_waitcnt vmcnt({6-i})")
        for j in range(4):
            a(f"v_lshlrev_b32 v60, 16, v{16+4*i+j}")
            a(f"v_and_b32 v61, 0xffff0000, v{16+4*i+j}")
            a(f"v_fmac_f32 v{48+2*j}, v{8+i}, v60")
            a(f"v_fmac_f32 v{49+2*j}, v{8+i}, v61")
    for sh in (4,8):
        for e in range(8): a(f"v_add_f32_dpp v{48+e}, v{48+e}, v{48+e} row_ror:{sh} row_mask:0xf bank_mask:0xf")
    a("v_lshrrev_b32 v5, 4, v0"); a("v_lshlrev_b32 v5, 7, v5"); a("v_lshl_add_u32 v5, v2, 5, v5")
    a("v_and_b32 v6, 12, v0")
    a("v_cmp_eq_u32 vcc, 0, v6")
    a("s_and_saveexec_b64 s[34:35], vcc")
    a("ds_write_b128 v5, v[48:51]"); a("ds_write_b128 v5, v[52:55] offset:16")
    a("s_mov_b64 exec, s[34:35]")
    a("s_waitcnt lgkmcnt(0)"); a("s_barrier")
    a("v_cmp_gt_u32 vcc, 32, v0")
    a("s_and_saveexec_b64 s[34:35], vcc")
    a("s_cbranch_execz L1_end")
    a("v_lshlrev_b32 v5, 2, v0")
    for p in range(16): a(f"ds_read_b32 v{16+p}, v5 offset:{128*p}")
    a("s_waitcnt lgkmcnt(0)")
    for p in range(1,16): a(f"v_add_f32 v16, v16, v{16+p}")
    rnd1(a, 16, 17)
    a("s_lshl_b32 s3, s2, 7")
    a("v_add_u32 v5, s3, v5")
    a(f"buffer_store_dword v16, v5, s[12:15], 0 offen offset:{WS_MOD}")
    a("s_endpgm")
    a.label('L1_stat'); a.flush()
    srd_load(a,4,'A_u'); srd_load(a,12,'ws')
    a(f"s_sub_u32 s3, s2, {N_GEMV}")
    a("v_and_b32 v1, 63, v0"); a("v_lshrrev_b32 v2, 6, v0")
    a("s_mul_i32 s16, s3, 14336")
    a("v_mul_u32_u24 v3, 3584, v2"); a("v_lshl_add_u32 v3, v1, 4, v3"); a("v_add_u32 v3, s16, v3")
    for i in range(16): a(f"v_mov_b32 v{8+i}, 0")
    a("s_waitcnt lgkmcnt(0)")
    a("s_mov_b32 exec_hi, 0x00ffffff")
    for i in range(4): a(f"buffer_load_dwordx4 v[{8+4*i}:{11+4*i}], v3, s[4:7], 0 offen offset:{896*i}")
    a("s_mov_b32 exec_hi, -1")
    a("s_waitcnt vmcnt(0)")
    X=[[24+8*i+e for e in range(8)] for i in range(4)]
    for i in range(4): unpack8(a, 8+4*i, X[i])
    mean,sd,ri = ln_stats(a, X, 4, [56,57,58,59], 60, 20, None)
    Nn=[[80+8*i+e for e in range(8)] for i in range(4)]
    for i in range(4): ln_norm(a, X[i], Nn[i], mean[i], sd[i], ri[i], 112)
    a("v_and_b32 v4, 7, v1")
    a("v_xor_b32 v5, v2, v4")
    a("v_xor_b32 v6, 4, v5")
    a("v_lshlrev_b32 v7, 9, v1")
    a("v_lshl_add_u32 v5, v5, 4, v7"); a("v_lshl_add_u32 v6, v6, 4, v7")
    a("s_mov_b32 exec_hi, 0x00ffffff")
    for e in range(8):
        q=116+4*(e&1)
        for i in range(4):
            a(f"v_lshrrev_b32 v{q+i}, 16, v{X[i][e]}")
            a(f"v_or_b32 v{q+i}, v{q+i}, v{Nn[i][e]}")
        a(f"ds_write_b128 v{5+(e&1)}, v[{q}:{q+3}] offset:{(e>>1)*128}")
    a("s_mov_b32 exec_hi, -1")
    a("s_waitcnt lgkmcnt(0)"); a("s_barrier")
    a("v_and_b32 v2, 3, v0"); a("v_lshrrev_b32 v1, 2, v0")
    a("s_lshl_b32 s16, s3, 6")
    for it in range(7):
        if it==0:
            a("v_and_b32 v4, 1, v1"); a("v_lshl_add_u32 v4, v4, 2, v2")
            a("v_bfe_u32 v5, v1, 3, 3"); a("v_xor_b32 v4, v4, v5")
            a("v_lshrrev_b32 v5, 1, v1"); a("v_lshlrev_b32 v5, 7, v5"); a("v_lshl_add_u32 v4, v4, 4, v5")
            a("v_lshlrev_b32 v6, 13, v1"); a("v_lshl_add_u32 v6, v2, 4, v6"); a("v_add_u32 v6, s16, v6")
            a(f"v_add_u32 v6, {WS_XN}, v6")
        a(f"ds_read_b128 v[{8+4*it}:{11+4*it}], v4 offset:{4096*it}")
    for it in range(7):
        a(f"s_mov_b32 s{20+it}, {64*8192*it}")
    for it in range(7):
        a(f"s_waitcnt lgkmcnt({6-it})")
        a(f"buffer_store_dwordx4 v[{8+4*it}:{11+4*it}], v6, s[12:15], s{20+it} offen")
    a("s_endpgm")
    a.label('L1_kgen'); a.flush()
    kgen(a)
    a.label('L1_end')
    a("s_endpgm")

REC=0
TAB=12288
TABN=648
def kgen(a):
    names=['A_re','A_im','B_re','B_im','C_re','C_im']
    for i,nm in enumerate(names): srd_load(a, 4+4*i, nm)
    srd_load(a,28,'log_dt'); srd_load(a,32,'ws')
    a(f"s_sub_u32 s3, s2, {N_GEMV+N_STAT}")
    a(f"s_mov_b32 s40, {hx(L_HI)}"); a(f"s_mov_b32 s41, {hx(L_LO)}"); a(f"s_mov_b32 s42, {hx(LN2)}")
    a(f"s_mov_b32 s43, {hx(I2P_HI)}"); a(f"s_mov_b32 s44, {hx(I2P_LO)}")
    a("s_lshl_b32 s36, s3, 9")
    a("s_lshl_b32 s37, s3, 1")
    a("v_lshlrev_b32 v1, 1, v0")
    a("v_mov_b32 v2, s37")
    a("s_waitcnt lgkmcnt(0)")
    a("buffer_load_ushort v3, v2, s[28:31], 0 offen")
    for i in range(6): a(f"buffer_load_ushort v{4+i}, v1, s[{4+4*i}:{7+4*i}], s36 offen")
    a("v_and_b32 v10, 63, v0"); a("v_and_b32 v11, 15, v0"); a("v_bfe_u32 v12, v0, 4, 2"); a("v_lshrrev_b32 v13, 6, v0")
    a("v_mov_b32 v14, v11")
    a("v_lshlrev_b32 v15, 1, v11"); a("v_add_u32 v15, 240, v15")
    a("v_cmp_le_u32_e64 s[46:47], 8, v11"); a("v_cndmask_b32_e64 v14, v14, v15, s[46:47]")
    a("v_lshlrev_b32 v15, 2, v11"); a("v_add_u32 v15, 464, v15")
    a("v_cmp_le_u32_e64 s[46:47], 12, v11"); a("v_cndmask_b32_e64 v14, v14, v15, s[46:47]")
    a("v_lshlrev_b32 v15, 2, v11"); a("v_add_u32 v15, 712, v15")
    a("v_cmp_le_u32_e64 s[46:47], 14, v11"); a("v_cndmask_b32_e64 v14, v14, v15, s[46:47]")
    a("v_cvt_f32_u32 v16, v14"); a("v_sub_f32 v17, 0, v16")
    a("v_lshlrev_b32 v15, 3, v11"); a("v_cvt_f32_u32 v18, v15"); a("v_mov_b32 v19, v18")
    a("s_waitcnt vmcnt(6)")
    a("v_lshlrev_b32 v3, 16, v3")
    exp_acc(a, 20, 3, 21, 22, 40, 41, 42)
    rnd1(a, 20, 21)
    a("s_waitcnt vmcnt(0)")
    for i in range(6): a(f"v_lshlrev_b32 v{4+i}, 16, v{4+i}")
    a("v_mul_f32 v4, v20, v4")
    a("v_mul_f32 v5, v20, v5")
    a("v_mul_f32 v6, v20, v6"); a("v_mul_f32 v7, v20, v7")
    a("v_mul_f32 v24, s40, v4")
    a("v_mul_f32 v25, s43, v5"); a("v_and_b32 v25, 0xffffff00, v25")
    a("v_fma_f32 v26, v5, s43, -v25"); a("v_fma_f32 v26, v5, s44, v26")
    a("v_mov_b32 v27, 0"); a("v_mov_b32 v34, 0"); a("v_mov_b32 v35, 0")
    cmul(a, 28, 8, 6, 36)
    def direct(dst, lval, sign, T, E, C):
        a(f"v_mov_b32 v{T}, {hx(float(lval))}"); a(f"v_mov_b32 v{T+1}, {hx(float(sign*lval))}")
        a(f"v_pk_mul_f32 v[{C}:{C+1}], v[24:25], v[{T}:{T+1}]")
        a(f"v_exp_f32 v{E}, v{C}")
        a(f"v_fract_f32 v{C+1}, v{C+1}")
        a(f"v_fma_f32 v{C+1}, v26, v{T+1}, v{C+1}")
        a(f"v_cos_f32 v{C}, v{C+1}"); a(f"v_sin_f32 v{C+1}, v{C+1}")
        a(f"v_pk_mul_f32 v[{dst}:{dst+1}], v[{C}:{C+1}], v[{E}:{E+1}] op_sel:[0,0] op_sel_hi:[1,0]")
    direct(30, 128, +1, 36, 38, 40)
    direct(32, 1024, -1, 36, 38, 40)
    direct(42, 2048, +1, 36, 38, 40)
    a("v_mul_f32 v44, v28, v42"); a("v_fma_f32 v44, -v29, v43, v44")
    a("v_sub_f32 v29, 0, v29")
    wave_red(a, [44])
    a("v_mul_u32_u24 v1, 48, v0")
    a(f"ds_write_b128 v1, v[24:27] offset:{REC}"); a(f"ds_write_b128 v1, v[28:31] offset:{REC+16}"); a(f"ds_write_b128 v1, v[32:35] offset:{REC+32}")
    a(f"v_mul_u32_u24 v2, {TABN*4}, v13")
    a("v_cmp_eq_u32 vcc, 63, v10")
    a("s_and_saveexec_b64 s[46:47], vcc")
    a(f"ds_write_b32 v2, v44 offset:{TAB+640*4}")
    a("s_mov_b64 exec, s[46:47]")
    a("s_waitcnt lgkmcnt(0)")
    a("v_lshlrev_b32 v1, 6, v13"); a("v_lshl_add_u32 v1, v12, 2, v1"); a("v_mul_u32_u24 v1, 48, v1")
    ACC=112
    for i in range(16): a(f"v_mov_b32 v{ACC+i}, 0")
    OP=80
    RB=[24,36]
    def rec_load(p):
        b=RB[p&1]
        for j in range(3): a(f"ds_read_b128 v[{b+4*j}:{b+4*j+3}], v1 offset:{REC+p*48+16*j}")
    def conv(x, e, q, T):
        h=OP+8*q+e; l=OP+8*q+4+e
        a(f"v_cvt_pk_bf16_f32 v{h}, v{x}, v{x+1}")
        a(f"v_lshlrev_b32 v{T}, 16, v{h}"); a(f"v_and_b32 v{T+1}, 0xffff0000, v{h}")
        a(f"v_pk_add_f32 v[{T}:{T+1}], v[{x}:{x+1}], v[{T}:{T+1}] neg_lo:[0,1] neg_hi:[0,1]")
        a(f"v_cvt_pk_bf16_f32 v{l}, v{T}, v{T+1}")
    passes=[(kb,e) for kb in range(4) for e in range(4)]
    rec_load(0)
    for pi,(kb,e) in enumerate(passes):
        p=16*kb+e
        b=RB[pi&1]
        if pi+1<len(passes):
            kb2,e2=passes[pi+1]
            b2=RB[(pi+1)&1]
            for j in range(3): a(f"ds_read_b128 v[{b2+4*j}:{b2+4*j+3}], v1 offset:{REC+(16*kb2+e2)*48+16*j}")
            a("s_waitcnt lgkmcnt(3)")
        else:
            a("s_waitcnt lgkmcnt(0)")
        a(f"v_pk_mul_f32 v[48:49], v[{b}:{b+1}], v[16:17]")
        a(f"v_pk_mul_f32 v[56:57], v[{b}:{b+1}], v[18:19]")
        a("v_exp_f32 v50, v48"); a("v_exp_f32 v58, v56")
        a("v_fract_f32 v49, v49"); a("v_fract_f32 v57, v57")
        a(f"v_fma_f32 v49, v{b+2}, v17, v49"); a(f"v_fma_f32 v57, v{b+2}, v19, v57")
        a("v_cos_f32 v52, v49"); a("v_sin_f32 v53, v49")
        a("v_cos_f32 v60, v57"); a("v_sin_f32 v61, v57")
        a("v_pk_mul_f32 v[52:53], v[52:53], v[50:51] op_sel:[0,0] op_sel_hi:[1,0]")
        a("v_pk_mul_f32 v[60:61], v[60:61], v[58:59] op_sel:[0,0] op_sel_hi:[1,0]")
        cmul(a, 54, 52, b+4, 48)
        cmul(a, 62, 60, b+6, 56)
        cmul(a, 64, 54, b+8, 48)
        conv(60, e, 2, 66); conv(54, e, 0, 68); conv(62, e, 3, 70); conv(64, e, 1, 72)
        if e==3:
            for R in range(2):
                for C in range(2):
                    acc=ACC+4*(2*R+C); Rh=OP+8*R; Rl=Rh+4; Ch=OP+8*(2+C); Cl=Ch+4
                    for (x,y) in ((Rh,Ch),(Rh,Cl),(Rl,Ch)):
                        a(f"v_mfma_f32_16x16x32_bf16 v[{acc}:{acc+3}], v[{x}:{x+3}], v[{y}:{y+3}], v[{acc}:{acc+3}]")
    a("v_lshlrev_b32 v15, 3, v11")
    a("v_mov_b32 v25, 128")
    a("v_cmp_eq_u32_e64 s[50:51], 2, v12"); a("v_cmp_eq_u32_e64 s[52:53], 3, v12"); a("v_cmp_eq_u32_e64 s[54:55], 1, v12")
    a(f"v_mov_b32 v30, {641}")
    for r in range(4):
        a(f"v_mov_b32 v20, {r}")
        a(f"v_mov_b32 v21, {4+r}"); a("v_cndmask_b32_e64 v20, v20, v21, s[54:55]")
        a(f"v_mov_b32 v21, {256+2*r}"); a("v_cndmask_b32_e64 v20, v20, v21, s[50:51]")
        a(f"v_mov_b32 v21, {[512,516,768,772][r]}"); a("v_cndmask_b32_e64 v20, v20, v21, s[52:53]")
        a("v_add_u32 v20, v20, v15")
        for R in range(2):
            for C in range(2):
                add=128*C+1024*R
                a(f"v_add_u32 v22, {add}, v20")
                a("v_cvt_f32_u32 v23, v22")
                idx_of_l(a, 26, 23, 22, 24, 56)
                if R==1:
                    if r==0:
                        a("v_cndmask_b32_e64 v26, v26, v30, s[54:55]")
                    elif r==2:
                        a("v_cndmask_b32_e64 v26, v30, v26, s[52:53]")
                    else:
                        continue
                a("v_lshl_add_u32 v26, v26, 2, v2")
                a(f"ds_write_b32 v26, v{ACC+4*(2*R+C)+r} offset:{TAB}")
    a("s_waitcnt lgkmcnt(0)"); a("s_barrier")
    a("v_lshlrev_b32 v20, 3, v0")
    for e in range(8):
        a(f"v_add_u32 v22, {e}, v20"); a("v_cvt_f32_u32 v23, v22")
        idx_of_l(a, 26, 23, 22, 24, 56)
        a("v_lshlrev_b32 v26, 2, v26")
        for w in range(4): a(f"ds_read_b32 v{32+4*e+w}, v26 offset:{TAB+TABN*4*w}")
    a("s_waitcnt lgkmcnt(0)")
    for e in range(8):
        b=32+4*e
        a(f"v_add_f32 v{b}, v{b}, v{b+1}"); a(f"v_add_f32 v{b+2}, v{b+2}, v{b+3}"); a(f"v_add_f32 v{64+e}, v{b}, v{b+2}")
    for j in range(4):
        x=64+2*j
        a(f"v_cvt_pk_bf16_f32 v{72+j}, v{x}, v{x+1}")
        a(f"v_lshlrev_b32 v80, 16, v{72+j}"); a(f"v_and_b32 v81, 0xffff0000, v{72+j}")
        a(f"v_pk_add_f32 v[80:81], v[{x}:{x+1}], v[80:81] neg_lo:[0,1] neg_hi:[0,1]")
        a(f"v_cvt_pk_bf16_f32 v{76+j}, v80, v81")
    a(f"s_mul_i32 s36, s3, {KP_STRIDE}")
    a(f"s_add_u32 s36, s36, {WS_K}")
    a("v_lshlrev_b32 v1, 4, v0")
    a("buffer_store_dwordx4 v[72:75], v1, s[32:35], s36 offen offset:480")
    a(f"s_add_u32 s37, s36, {KP_LEN*2}")
    a("buffer_store_dwordx4 v[76:79], v1, s[32:35], s37 offen offset:480")
    for i in range(4): a(f"v_mov_b32 v{84+i}, 0")
    a("v_cmp_gt_u32 vcc, 30, v0")
    a("s_and_saveexec_b64 s[46:47], vcc")
    a("s_cbranch_execz L1_end")
    a("buffer_store_dwordx4 v[84:87], v1, s[32:35], s36 offen")
    a("buffer_store_dwordx4 v[84:87], v1, s[32:35], s37 offen")

def desc(name, vgpr, sgpr=102):
    return f""".amdhsa_kernel {name}
  .amdhsa_next_free_vgpr {vgpr}
  .amdhsa_next_free_sgpr {sgpr}
  .amdhsa_accum_offset {(vgpr+3)//4*4}
  .amdhsa_group_segment_fixed_size 0
  .amdhsa_kernarg_size 152
  .amdhsa_user_sgpr_count 2
  .amdhsa_user_sgpr_kernarg_segment_ptr 1
  .amdhsa_system_sgpr_workgroup_id_x 1
  .amdhsa_float_denorm_mode_32 3
.end_amdhsa_kernel
"""

C_KH=0; C_KL=4608; C_H0=9216; C_H1=9216+4160+64+12
C_P = 17792
L2_LDS = C_P + 4*8192
assert C_H1 % 16 == 12 and C_H1+4160 <= C_P and C_P%16==0
def k2(a):
    a.label('k2_kernel'); a.flush()
    a("s_cmp_ge_u32 s2, 448"); a("s_cbranch_scc1 L2_end")
    srd_load(a,4,'ws'); srd_load(a,8,'Dskip')
    a("v_and_b32 v1, 63, v0"); a("v_and_b32 v2, 15, v0"); a("v_bfe_u32 v3, v0, 4, 2"); a("v_lshrrev_b32 v4, 6, v0")
    a("v_lshlrev_b32 v5, 5, v0")
    a("s_lshl_b32 s12, s2, 13"); a(f"s_add_u32 s12, s12, {WS_XN}")
    a(f"s_mul_i32 s13, s2, {KP_STRIDE}"); a(f"s_add_u32 s13, s13, {WS_K}")
    a("s_lshl_b32 s14, s2, 2")
    a("s_lshl_b32 s15, s2, 1")
    a("v_lshlrev_b32 v6, 4, v0")
    a("v_mov_b32 v7, s14"); a("v_mov_b32 v8, s15")
    a("s_waitcnt lgkmcnt(0)")
    a("buffer_load_dwordx4 v[16:19], v5, s[4:7], s12 offen")
    a("buffer_load_dwordx4 v[20:23], v5, s[4:7], s12 offen offset:16")
    a("buffer_load_dword v24, v5, s[4:7], s12 offen offset:32")
    a(f"buffer_load_dword v9, v7, s[4:7], 0 offen offset:{WS_MOD}")
    a(f"buffer_load_dword v10, v7, s[4:7], 0 offen offset:{WS_MOD+1792}")
    a(f"buffer_load_dword v11, v7, s[4:7], 0 offen offset:{WS_MOD+3584}")
    a("buffer_load_ushort v12, v8, s[8:11], 0 offen")
    a("buffer_load_dwordx4 v[28:31], v6, s[4:7], s13 offen")
    a("s_add_u32 s16, s13, 4096")
    a("buffer_load_dwordx4 v[32:35], v6, s[4:7], s16 offen")
    a("s_add_u32 s17, s13, 8192")
    a("buffer_load_dwordx4 v[36:39], v6, s[4:7], s17 offen")
    a("s_waitcnt vmcnt(3)")
    for e in range(9):
        if e<8: a(f"v_lshlrev_b32 v{40+e}, 16, v{16+e}")
        a(f"v_and_b32 v{48+e}, 0xffff0000, v{16+e}")
    a("v_add_f32 v10, 1.0, v10"); rnd1(a, 10, 13)
    a("v_lshlrev_b32 v12, 16, v12")
    a("v_mov_b32 v57, 0")
    for e in range(0,10,2):
        a(f"v_mul_f32 v{48+e}, v{48+e}, v10"); a(f"v_mul_f32 v{49+e}, v{49+e}, v10")
        rnd2(a, 48+e, 49+e, 13)
        a(f"v_add_f32 v{48+e}, v{48+e}, v9"); a(f"v_add_f32 v{49+e}, v{49+e}, v9")
        rnd2(a, 48+e, 49+e, 13)
    for j in range(4):
        a(f"v_cvt_pk_bf16_f32 v{60+j}, v{48+7-2*j}, v{48+6-2*j}")
        a(f"v_cvt_pk_bf16_f32 v{64+j}, v{48+8-2*j}, v{48+7-2*j}")
    a("v_sub_u32 v13, 4080, v6")
    a(f"ds_write_b128 v13, v[64:67] offset:{C_H0}")
    a(f"ds_write_b128 v13, v[60:63] offset:{C_H1+4}")
    a("v_mov_b32 v58, 0"); a("v_cvt_pk_bf16_f32 v68, v48, v58")
    for i in range(1,8): a(f"v_mov_b32 v{68+i}, 0")
    a("v_cmp_eq_u32 vcc, 0, v0")
    a("s_and_saveexec_b64 s[20:21], vcc")
    a(f"ds_write_b128 v0, v[68:71] offset:{C_H0+4096}")
    a(f"ds_write_b128 v0, v[72:75] offset:{C_H0+4112}")
    a(f"ds_write_b128 v0, v[72:75] offset:{C_H1+4100}")
    a(f"ds_write_b128 v0, v[72:75] offset:{C_H1+4116}")
    a("s_mov_b64 exec, s[20:21]")
    a("s_waitcnt vmcnt(0)")
    a(f"ds_write_b128 v6, v[28:31] offset:{C_KH}")
    a(f"ds_write_b128 v6, v[32:35] offset:{C_KH+4096}")
    a("v_cmp_gt_u32 vcc, 64, v0")
    a("s_and_saveexec_b64 s[20:21], vcc")
    a(f"ds_write_b128 v6, v[36:39] offset:{C_KH+8192}")
    a("s_mov_b64 exec, s[20:21]")
    a("v_lshlrev_b32 v14, 5, v2"); a("v_lshl_add_u32 v14, v3, 4, v14")
    a("v_lshl_add_u32 v14, v4, 7, v14")
    a("v_and_b32 v15, 14, v2"); a("v_lshlrev_b32 v15, 1, v15")
    a("v_lshlrev_b32 v16, 4, v3"); a("v_sub_u32 v15, v16, v15")
    a("v_and_b32 v16, 1, v2"); a(f"v_mul_u32_u24 v16, {C_H1-C_H0}, v16")
    a("v_add_u32 v15, v15, v16"); a(f"v_add_u32 v15, {C_H0+3616-512*7}, v15")
    a("v_lshl_add_u32 v15, v4, 7, v15")
    ACC=64; BT=96; AT=[16,24]
    for i in range(32): a(f"v_mov_b32 v{ACC+i}, 0")
    for q in range(1,4): a(f"v_add_u32 v{31+q}, {1024*q}, v15")
    a("s_waitcnt lgkmcnt(0)"); a("s_barrier")
    bases=[15,32,33,34]
    for rr in range(2):
        for m in range(7,-1,-1):
            k=7-m; bs=bases[k>>1]; off=(k&1)*128+16*rr
            a(f"ds_read2_b32 v[{BT+4*m}:{BT+4*m+1}], v{bs} offset0:{off} offset1:{off+1}")
            a(f"ds_read2_b32 v[{BT+4*m+2}:{BT+4*m+3}], v{bs} offset0:{off+2} offset1:{off+3}")
        def aload(s):
            b=AT[s&1]; off=64*(8*s+rr)
            a(f"ds_read_b128 v[{b}:{b+3}], v14 offset:{C_KH+off}")
            a(f"ds_read_b128 v[{b+4}:{b+7}], v14 offset:{C_KL+off}")
        aload(0)
        for s in range(8):
            if s<7:
                aload(s+1); a("s_waitcnt lgkmcnt(2)")
            else: a("s_waitcnt lgkmcnt(0)")
            b=AT[s&1]
            for c in range(s,8):
                bt=BT+4*(c-s); acc=ACC+4*c
                a(f"v_mfma_f32_16x16x32_bf16 v[{acc}:{acc+3}], v[{bt}:{bt+3}], v[{b}:{b+3}], v[{acc}:{acc+3}]")
                a(f"v_mfma_f32_16x16x32_bf16 v[{acc}:{acc+3}], v[{bt}:{bt+3}], v[{b+4}:{b+7}], v[{acc}:{acc+3}]")
    a("v_bfe_u32 v16, v2, 1, 2"); a("v_xor_b32 v16, v16, v3"); a("v_lshlrev_b32 v16, 4, v16")
    a("v_lshl_add_u32 v16, v2, 6, v16"); a("v_lshl_add_u32 v16, v4, 13, v16")
    for c in range(8): a(f"ds_write_b128 v16, v[{ACC+4*c}:{ACC+4*c+3}] offset:{C_P+1024*c}")
    a("s_waitcnt lgkmcnt(0)"); a("s_barrier")
    a("v_and_b32 v16, 1, v0"); a("v_lshlrev_b32 v16, 1, v16"); a("v_bfe_u32 v17, v0, 2, 2")
    a("v_xor_b32 v18, v16, v17"); a("v_xor_b32 v19, 1, v18")
    a("v_lshrrev_b32 v17, 1, v0"); a("v_lshlrev_b32 v17, 6, v17")
    a("v_lshl_add_u32 v18, v18, 4, v17"); a("v_lshl_add_u32 v19, v19, 4, v17")
    for w in range(4):
        a(f"ds_read_b128 v[{64+8*w}:{67+8*w}], v18 offset:{C_P+8192*w}")
        a(f"ds_read_b128 v[{68+8*w}:{71+8*w}], v19 offset:{C_P+8192*w}")
    a("s_waitcnt lgkmcnt(0)")
    for e in range(8):
        a(f"v_add_f32 v{64+e}, v{64+e}, v{72+e}"); a(f"v_add_f32 v{80+e}, v{80+e}, v{88+e}"); a(f"v_add_f32 v{64+e}, v{64+e}, v{80+e}")
    for e in range(0,8,2):
        y0,y1=64+e,65+e; h0,h1=48+e,49+e
        rnd2(a,y0,y1,13)
        a(f"v_mul_f32 v{h0}, v{h0}, v12"); a(f"v_mul_f32 v{h1}, v{h1}, v12"); rnd2(a,h0,h1,13)
        a(f"v_add_f32 v{y0}, v{y0}, v{h0}"); a(f"v_add_f32 v{y1}, v{y1}, v{h1}"); rnd2(a,y0,y1,13)
        a(f"v_mul_f32 v{y0}, v{y0}, v11"); a(f"v_mul_f32 v{y1}, v{y1}, v11"); rnd2(a,y0,y1,13)
        a(f"v_add_f32 v{y0}, v{y0}, v{40+e}"); a(f"v_add_f32 v{y1}, v{y1}, v{41+e}")
        a(f"v_cvt_pk_bf16_f32 v{20+e//2}, v{y0}, v{y1}")
    a("s_lshl_b32 s12, s2, 12"); a(f"s_add_u32 s12, s12, {WS_X1T}")
    a("buffer_store_dwordx4 v[20:23], v6, s[4:7], s12 offen")
    a.label('L2_end'); a("s_endpgm")

def k3(a):
    a.label('k3_kernel'); a.flush()
    a("s_cmp_ge_u32 s2, 256"); a("s_cbranch_scc1 L3_end")
    srd_load(a,4,'ws'); srd_load(a,8,'w_r'); srd_load(a,12,'out')
    a("v_and_b32 v1, 63, v0"); a("v_lshrrev_b32 v2, 6, v0")
    a("v_lshlrev_b32 v3, 13, v0")
    a("s_lshl_b32 s16, s2, 4"); a(f"s_add_u32 s16, s16, {WS_X1T}")
    a("s_add_u32 s17, s16, 4096")
    a("v_lshlrev_b32 v4, 5, v1")
    a("v_lshlrev_b32 v5, 4, v1")
    for i in range(28): a(f"v_mov_b32 v{96+i}, 0")
    a("s_waitcnt lgkmcnt(0)")
    a("v_cmp_gt_u32 vcc, 224, v0")
    a("s_and_saveexec_b64 s[20:21], vcc")
    a("buffer_load_dwordx4 v[8:11], v3, s[4:7], s16 offen")
    a("buffer_load_dwordx4 v[12:15], v3, s[4:7], s17 offen")
    a("s_mov_b64 exec, s[20:21]")
    a("s_mov_b32 exec_hi, 0x00ffffff")
    for k,(mi) in enumerate((3,4,5)):
        a(f"s_mov_b32 s{22+k}, {WS_MOD+mi*1792}")
        a(f"buffer_load_dwordx4 v[{96+8*k}:{99+8*k}], v4, s[4:7], s{22+k} offen")
        a(f"buffer_load_dwordx4 v[{100+8*k}:{103+8*k}], v4, s[4:7], s{22+k} offen offset:16")
    a("buffer_load_dwordx4 v[120:123], v5, s[8:11], 0 offen")
    a("s_mov_b32 exec_hi, -1")
    a("s_mov_b32 s26, 0x05040100"); a("s_mov_b32 s27, 0x07060302")
    a("v_lshlrev_b32 v6, 2, v0")
    a("s_waitcnt vmcnt(7)")
    a("s_and_saveexec_b64 s[20:21], vcc")
    for j in range(4):
        a(f"v_perm_b32 v16, v{12+j}, v{8+j}, s26"); a(f"v_perm_b32 v17, v{12+j}, v{8+j}, s27")
        a(f"ds_write_b32 v6, v16 offset:{896*(2*j)}"); a(f"ds_write_b32 v6, v17 offset:{896*(2*j+1)}")
    a("s_mov_b64 exec, s[20:21]")
    a("s_waitcnt lgkmcnt(0)"); a("s_barrier")
    for i in range(8): a(f"v_mov_b32 v{8+i}, 0")
    a("v_mul_u32_u24 v6, 1792, v2"); a("v_add_u32 v6, v6, v5")
    a("s_mov_b32 exec_hi, 0x00ffffff")
    a("ds_read_b128 v[8:11], v6"); a("ds_read_b128 v[12:15], v6 offset:896")
    a("s_mov_b32 exec_hi, -1")
    a("s_waitcnt lgkmcnt(0)")
    X=[[16+8*i+e for e in range(8)] for i in range(2)]
    for i in range(2): unpack8(a, 8+4*i, X[i])
    mean,sd,ri = ln_stats(a, X, 2, [32,33], 34, 28, None)
    H=[[48+8*i+e for e in range(8)] for i in range(2)]
    for i in range(2): ln_norm(a, X[i], H[i], mean[i], sd[i], ri[i], 45)
    a("s_waitcnt vmcnt(0)")
    SB=96; CB=104; GB=112; WR=64
    for e in range(0,8,2):
        a(f"v_add_f32 v{CB+e}, 1.0, v{CB+e}"); a(f"v_add_f32 v{CB+e+1}, 1.0, v{CB+e+1}"); rnd2(a,CB+e,CB+e+1,45)
    unpack8(a, 120, [WR+e for e in range(8)])
    for i in range(2):
        a(f"v_mov_b32 v{32+i}, 0")
        for e in range(0,8,2):
            h0,h1=H[i][e],H[i][e+1]
            a(f"v_mul_f32 v{h0}, v{h0}, v{CB+e}"); a(f"v_mul_f32 v{h1}, v{h1}, v{CB+e+1}"); rnd2(a,h0,h1,45)
            a(f"v_add_f32 v{h0}, v{h0}, v{SB+e}"); a(f"v_add_f32 v{h1}, v{h1}, v{SB+e+1}")
            a(f"v_cvt_pk_bf16_f32 v{72+4*i+e//2}, v{h0}, v{h1}")
            a(f"v_lshlrev_b32 v{h0}, 16, v{72+4*i+e//2}"); a(f"v_and_b32 v{h1}, 0xffff0000, v{72+4*i+e//2}")
            a(f"v_fmac_f32 v{32+i}, v{h0}, v{WR+e}"); a(f"v_fmac_f32 v{32+i}, v{h1}, v{WR+e+1}")
            a(f"v_mul_f32 v{h0}, v{h0}, v{GB+e}"); a(f"v_mul_f32 v{h1}, v{h1}, v{GB+e+1}"); rnd2(a,h0,h1,45)
            a(f"v_add_f32 v{h0}, v{h0}, v{X[i][e]}"); a(f"v_add_f32 v{h1}, v{h1}, v{X[i][e+1]}")
            a(f"v_cvt_pk_bf16_f32 v{80+4*i+e//2}, v{h0}, v{h1}")
    a("s_mul_i32 s16, s2, 7168")
    a("v_add_u32 v6, s16, v6")
    a(f"s_mov_b32 s17, {WS_H2}")
    a("s_mov_b32 exec_hi, 0x00ffffff")
    for i in range(2):
        a(f"buffer_store_dwordx4 v[{80+4*i}:{83+4*i}], v6, s[12:15], 0 offen offset:{896*i}")
        a(f"buffer_store_dwordx4 v[{72+4*i}:{75+4*i}], v6, s[4:7], s17 offen offset:{896*i}")
    a("s_mov_b32 exec_hi, -1")
    a.nop(1)
    wave_red(a,[32,33])
    a("v_cvt_pk_bf16_f32 v34, v32, v33")
    a("s_lshl_b32 s16, s2, 3")
    a("v_lshlrev_b32 v35, 1, v2"); a("v_add_u32 v35, s16, v35")
    for i in range(2):
        if i==0: a("v_and_b32 v36, 0xffff, v34")
        else: a("v_lshrrev_b32 v36, 16, v34")
        a("v_bfe_i32 v37, v36, 15, 1")
        a("v_or_b32 v37, 0x8000, v37"); a("v_xor_b32 v36, v36, v37")
        a("v_sub_u32 v38, 2047, v35") if i==0 else a("v_sub_u32 v38, 2046, v35")
        a(f"v_lshl_or_b32 v{40+i}, v36, 16, v38")
    a("v_lshlrev_b32 v35, 2, v35")
    a("v_cmp_eq_u32 vcc, 63, v1")
    a("s_and_saveexec_b64 s[20:21], vcc")
    a(f"s_mov_b32 s17, {WS_R}")
    a("buffer_store_dwordx2 v[40:41], v35, s[4:7], s17 offen")
    a.label('L3_end'); a("s_endpgm")

def topk(a, K0, lds_off, TK):
    K=[K0+i for i in range(8)]
    net=[(0,1),(2,3),(4,5),(6,7),(0,2),(1,3),(4,6),(5,7),(1,2),(5,6),(0,4),(3,7),(1,5),(2,6),(1,4),(3,6),(2,4),(3,5),(3,4)]
    T=K0+8
    for (i,j) in net:
        a(f"v_max_u32 v{T}, v{K[i]}, v{K[j]}"); a(f"v_min_u32 v{K[j]}, v{K[i]}, v{K[j]}"); a(f"v_mov_b32 v{K[i]}, v{T}")
    for rnd in range(8):
        a(f"v_mov_b32 v{T}, v{K[0]}")
        wave_red(a,[T],'v_max_u32')
        a(f"v_readlane_b32 s{TK+rnd}, v{T}, 63")
        if rnd<7:
            a(f"v_cmp_eq_u32 vcc, s{TK+rnd}, v{K[0]}")
            a("s_and_saveexec_b64 s[20:21], vcc")
            for i in range(7-rnd): a(f"v_mov_b32 v{K[i]}, v{K[i+1]}")
            a(f"v_mov_b32 v{K[7-rnd]}, 0")
            a("s_mov_b64 exec, s[20:21]")
    for i in range(8): a(f"v_mov_b32 v{K[i]}, s{TK+i}")
    a(f"v_lshlrev_b32 v{T}, 5, v2")
    a("v_cmp_eq_u32 vcc, 0, v1")
    a("s_and_saveexec_b64 s[20:21], vcc")
    a(f"ds_write_b128 v{T}, v[{K0}:{K0+3}] offset:{lds_off}"); a(f"ds_write_b128 v{T}, v[{K0+4}:{K0+7}] offset:{lds_off+16}")
    a("s_mov_b64 exec, s[20:21]")
    a("s_waitcnt lgkmcnt(0)"); a("s_barrier")
    a(f"v_and_b32 v{T}, 31, v1"); a(f"v_lshlrev_b32 v{T}, 2, v{T}")
    a(f"ds_read_b32 v{T+1}, v{T} offset:{lds_off}")
    a(f"v_mov_b32 v{T+2}, 0")
    A0=T+4
    for j in range(8): a(f"ds_read_b128 v[{A0+4*j}:{A0+4*j+3}], v{T+2} offset:{lds_off+16*j}")
    a("s_waitcnt lgkmcnt(0)")
    a(f"v_mov_b32 v{T+3}, 0")
    for j in range(32):
        a(f"v_cmp_gt_u32 vcc, v{A0+j}, v{T+1}")
        a(f"v_addc_co_u32 v{T+3}, vcc, 0, v{T+3}, vcc")
    for r in range(8):
        a(f"v_cmp_eq_u32 vcc, {r}, v{T+3}")
        a("s_ff1_i32_b32 s20, vcc_lo")
        a(f"v_readlane_b32 s{TK+r}, v{T+1}, s20")

L4_LDS = 14336+1024*4+256
def k4(a):
    a.label('k4_kernel'); a.flush()
    a("s_cmp_ge_u32 s2, 224"); a("s_cbranch_scc1 L4_end")
    srd_load(a,4,'ws'); srd_load(a,8,'w_gate'); srd_load(a,12,'w_up')
    a(f"s_mov_b32 s30, {hx(L_HI)}"); a(f"s_mov_b32 s31, {hx(L_LO)}"); a(f"s_mov_b32 s32, {hx(LN2)}")
    a("v_and_b32 v1, 63, v0"); a("v_lshrrev_b32 v2, 6, v0")
    a("s_and_b32 s16, s2, 7"); a("s_mul_i32 s16, s16, 28"); a("s_lshr_b32 s17, s2, 3"); a("s_add_u32 s16, s16, s17")
    a("s_lshl_b32 s17, s16, 4")
    a("v_lshrrev_b32 v3, 1, v1"); a("v_lshl_add_u32 v3, v2, 5, v3"); a("v_mul_u32_u24 v3, 3584, v3"); a("v_add_u32 v3, s17, v3")
    a("v_readfirstlane_b32 s18, v2")
    a("v_lshlrev_b32 v4, 5, v0")
    a(f"s_mov_b32 s19, {WS_R}")
    a("s_waitcnt lgkmcnt(0)")
    a("buffer_load_dwordx4 v[16:19], v4, s[4:7], s19 offen"); a("buffer_load_dwordx4 v[20:23], v4, s[4:7], s19 offen offset:16")
    a("s_lshl_b32 s22, s18, 10")
    a("s_mov_b32 s24, 0x55555555"); a("s_mov_b32 s25, 0x55555555"); a("s_mov_b32 s26, 0xaaaaaaaa"); a("s_mov_b32 s27, 0xaaaaaaaa")
    for it in range(4):
        if it==3:
            a("s_cmp_ge_u32 s18, 2"); a("s_cbranch_scc1 L4_dmadone")
        a(f"s_add_u32 s23, s22, {4096*it}"); a("s_mov_b32 m0, s23")
        a(f"s_mov_b32 s28, {128*3584*it}")
        a("s_mov_b64 exec, s[24:25]")
        a("buffer_load_dwordx4 v3, s[8:11], s28 offen lds")
        a("s_mov_b64 exec, s[26:27]")
        a("buffer_load_dwordx4 v3, s[12:15], s28 offen lds")
        a("s_mov_b64 exec, -1")
    a.label('L4_dmadone')
    a("s_mov_b64 exec, -1")
    a("s_cmp_ge_u32 s18, 2"); a("s_cbranch_scc1 L4_w6")
    a("s_waitcnt vmcnt(8)"); a("s_branch L4_wd")
    a.label('L4_w6'); a("s_waitcnt vmcnt(6)")
    a.label('L4_wd'); a.flush()
    TK=40
    topk(a, 16, 14336+4096, TK)
    a("s_cmp_lg_u32 s2, 0"); a("s_cbranch_scc1 L4_nokeys")
    for i in range(8): a(f"v_mov_b32 v{16+i}, s{TK+i}")
    a("v_mov_b32 v24, 0"); a(f"s_mov_b32 s19, {WS_IDX}")
    a("v_cmp_eq_u32 vcc, 0, v0"); a("s_and_saveexec_b64 s[20:21], vcc")
    a("buffer_store_dwordx4 v[16:19], v24, s[4:7], s19 offen"); a("buffer_store_dwordx4 v[20:23], v24, s[4:7], s19 offen offset:16")
    a("s_mov_b64 exec, s[20:21]")
    a.label('L4_nokeys'); a.flush(); a.nop(2)
    a("v_and_b32 v5, 7, v1")
    a("v_mov_b32 v6, 0")
    for i in range(8):
        a(f"s_and_b32 s20, s{TK+i}, 0xffff"); a("s_sub_u32 s20, 2047, s20"); a("s_mul_i32 s20, s20, 896")
        a(f"v_cmp_eq_u32_e64 s[34:35], {i}, v5"); a("v_mov_b32 v7, s20"); a("v_cndmask_b32_e64 v6, v6, v7, s[34:35]")
    a("v_lshrrev_b32 v7, 4, v1"); a("v_lshl_add_u32 v6, v7, 4, v6"); a("v_lshl_add_u32 v6, v2, 6, v6")
    a(f"s_mov_b32 s19, {WS_H2}")
    for it in range(4): a(f"buffer_load_dwordx4 v[{16+4*it}:{19+4*it}], v6, s[4:7], s19 offen offset:{256*it}")
    a("v_and_b32 v8, 3, v1"); a("v_bfe_u32 v9, v1, 2, 2"); a("v_lshl_add_u32 v9, v7, 3, v9")
    a("v_lshlrev_b32 v9, 5, v9"); a("v_lshl_add_u32 v9, v8, 3, v9"); a("v_lshl_add_u32 v9, v2, 10, v9")
    for i in range(4): a(f"v_mov_b32 v{60+i}, 0")
    a("s_waitcnt vmcnt(0)")
    for it in range(4):
        if it==3:
            a("s_cmp_ge_u32 s18, 2"); a("s_cbranch_scc1 L4_mmdone")
        a(f"ds_read_b64_tr_b16 v[{32+4*it}:{33+4*it}], v9 offset:{4096*it}")
        a(f"ds_read_b64_tr_b16 v[{34+4*it}:{35+4*it}], v9 offset:{4096*it+128}")
        a("s_waitcnt lgkmcnt(0)")
        a(f"v_mfma_f32_16x16x32_bf16 v[60:63], v[{16+4*it}:{19+4*it}], v[{32+4*it}:{35+4*it}], v[60:63]")
    a.label('L4_mmdone'); a.flush(); a.nop(8)
    a("v_lshlrev_b32 v10, 4, v0")
    a("ds_write_b128 v10, v[60:63] offset:14336")
    a("s_waitcnt lgkmcnt(0)"); a("s_barrier")
    a("s_cmp_lg_u32 s18, 0"); a("s_cbranch_scc1 L4_end")
    for w in range(4): a(f"ds_read_b128 v[{16+4*w}:{19+4*w}], v10 offset:{14336+1024*w}")
    a("s_waitcnt lgkmcnt(0)")
    for r in range(4):
        a(f"v_add_f32 v{16+r}, v{16+r}, v{20+r}"); a(f"v_add_f32 v{24+r}, v{24+r}, v{28+r}"); a(f"v_add_f32 v{16+r}, v{16+r}, v{24+r}")
    rnd2(a,16,17,32); rnd2(a,18,19,32)
    for r in range(4):
        x=16+r
        exp_acc(a, 33, x, 34, 35, 30, 31, 32, neg=True)
        a("v_add_f32 v33, 1.0, v33"); a("v_rcp_f32 v34, v33")
        div_acc(a, 20+r, x, 33, 34, 35)
    rnd2(a,20,21,32); rnd2(a,22,23,32)
    for r in range(4): a(f"v_mov_b32_dpp v{24+r}, v{16+r} row_ror:8 row_mask:0xf bank_mask:0xf")
    for r in range(4): a(f"v_mul_f32 v{20+r}, v{20+r}, v{24+r}")
    a("v_cvt_pk_bf16_f32 v28, v20, v21"); a("v_cvt_pk_bf16_f32 v29, v22, v23")
    a("v_and_b32 v5, 15, v1"); a("v_lshrrev_b32 v7, 4, v1")
    a("v_mul_u32_u24 v6, 14336, v7"); a("v_lshl_add_u32 v6, v5, 1, v6"); a("v_add_u32 v6, s17, v6")
    a(f"s_mov_b32 s19, {WS_ACT}")
    a("s_mov_b32 exec_lo, 0x00ff00ff"); a("s_mov_b32 exec_hi, 0")
    a("buffer_store_short v28, v6, s[4:7], s19 offen")
    a("buffer_store_short_d16_hi v28, v6, s[4:7], s19 offen offset:3584")
    a(f"s_add_u32 s19, s19, 7168")
    a("buffer_store_short v29, v6, s[4:7], s19 offen")
    a("buffer_store_short_d16_hi v29, v6, s[4:7], s19 offen offset:3584")
    a.label('L4_end'); a("s_endpgm")

L5_LDS = 57344+4096
def k5(a):
    a.label('k5_kernel'); a.flush()
    a("s_cmp_ge_u32 s2, 28"); a("s_cbranch_scc1 L5_end")
    srd_load(a,4,'ws'); srd_load(a,8,'w_down'); srd_load(a,12,'out')
    a(f"s_mov_b32 s30, {hx(L_HI)}"); a(f"s_mov_b32 s31, {hx(L_LO)}"); a(f"s_mov_b32 s32, {hx(LN2)}")
    a("v_and_b32 v1, 63, v0"); a("v_lshrrev_b32 v2, 6, v0")
    a("s_lshl_b32 s17, s2, 5")
    a("v_readfirstlane_b32 s18, v2")
    a("v_lshrrev_b32 v3, 1, v1"); a("v_mul_u32_u24 v4, 448, v2"); a("v_add_u32 v3, v3, v4"); a("v_mul_u32_u24 v3, 896, v3")
    a("v_and_b32 v4, 1, v1"); a("v_lshl_add_u32 v3, v4, 4, v3"); a("v_add_u32 v3, s17, v3")
    a("s_mul_i32 s22, s18, 14336")
    a("v_and_b32 v5, 7, v1"); a("v_lshrrev_b32 v7, 4, v1")
    a("v_mul_u32_u24 v6, 3584, v5"); a("v_lshl_add_u32 v6, v7, 4, v6"); a("v_mul_u32_u24 v8, 896, v2"); a("v_add_u32 v6, v6, v8")
    a(f"s_mov_b32 s19, {WS_ACT}")
    a("v_mov_b32 v10, 0"); a(f"s_mov_b32 s21, {WS_IDX}")
    a("s_waitcnt lgkmcnt(0)")
    a("buffer_load_dwordx4 v[100:103], v10, s[4:7], s21 offen"); a("buffer_load_dwordx4 v[104:107], v10, s[4:7], s21 offen offset:16")
    for it in range(14):
        a(f"s_add_u32 s23, s22, {1024*it}"); a("s_mov_b32 m0, s23"); a(f"s_mov_b32 s28, {32*896*it}")
        a("buffer_load_dwordx4 v3, s[8:11], s28 offen lds")
    for it in range(14): a(f"buffer_load_dwordx4 v[{16+4*it}:{19+4*it}], v6, s[4:7], s19 offen offset:{64*it}")
    a("v_and_b32 v8, 3, v1"); a("v_bfe_u32 v9, v1, 2, 2"); a("v_lshl_add_u32 v9, v7, 3, v9")
    a("v_lshlrev_b32 v9, 5, v9"); a("v_lshl_add_u32 v9, v8, 3, v9"); a("v_add_u32 v9, s22, v9")
    a("s_waitcnt vmcnt(28)")
    a("v_and_b32 v5, 15, v1")
    a("v_cmp_eq_u32_e64 s[34:35], 1, v7")
    for r in range(4): a(f"v_cndmask_b32_e64 v{108+r}, v{100+r}, v{104+r}, s[34:35]")
    a("v_lshlrev_b32 v11, 12, v5"); a("s_lshl_b32 s20, s2, 16"); a(f"s_add_u32 s20, s20, {WS_X1T}")
    a("v_lshlrev_b32 v12, 1, v5"); a("v_add_u32 v12, s17, v12"); a(f"s_mov_b32 s21, {WS_H2}")
    for r in range(4):
        a(f"v_and_b32 v13, 0xffff, v{108+r}"); a("v_sub_u32 v13, 2047, v13")
        a("v_lshl_add_u32 v14, v13, 1, v11")
        a(f"buffer_load_ushort v{112+r}, v14, s[4:7], s20 offen")
        a(f"v_mad_u32_u24 v{120+r}, v13, v15, v12" if False else f"v_mul_u32_u24 v{120+r}, 896, v13")
        a(f"v_add_u32 v{120+r}, v{120+r}, v12")
        a(f"buffer_load_ushort v{116+r}, v{120+r}, s[4:7], s21 offen")
    a("v_lshlrev_b32 v14, 2, v5"); a("s_lshl_b32 s20, s2, 6"); a(f"s_add_u32 s20, s20, {WS_MOD+5*1792}")
    a("buffer_load_dword v124, v14, s[4:7], s20 offen")
    for i in range(4): a(f"v_mov_b32 v{96+i}, 0")
    a("s_waitcnt vmcnt(9)")
    for it in range(14):
        b=72+4*(it%4)
        a(f"ds_read_b64_tr_b16 v[{b}:{b+1}], v9 offset:{1024*it}")
        a(f"ds_read_b64_tr_b16 v[{b+2}:{b+3}], v9 offset:{1024*it+128}")
        a("s_waitcnt lgkmcnt(0)")
        a(f"v_mfma_f32_16x16x32_bf16 v[96:99], v[{16+4*it}:{19+4*it}], v[{b}:{b+3}], v[96:99]")
    a("v_lshlrev_b32 v10, 4, v0")
    a("ds_write_b128 v10, v[96:99] offset:57344")
    a("s_waitcnt lgkmcnt(0)"); a("s_barrier")
    a("s_cmp_lg_u32 s18, 0"); a("s_cbranch_scc1 L5_end")
    for w in range(4): a(f"ds_read_b128 v[{16+4*w}:{19+4*w}], v10 offset:{57344+1024*w}")
    a("s_waitcnt lgkmcnt(0) vmcnt(0)")
    for r in range(4):
        a(f"v_add_f32 v{16+r}, v{16+r}, v{20+r}"); a(f"v_add_f32 v{24+r}, v{24+r}, v{28+r}"); a(f"v_add_f32 v{16+r}, v{16+r}, v{24+r}")
    rnd2(a,16,17,32); rnd2(a,18,19,32)
    for r in range(4):
        a(f"v_lshrrev_b32 v33, 16, v{108+r}")
        a("v_bfe_i32 v34, v33, 15, 1")
        a("v_not_b32 v34, v34"); a("v_or_b32 v34, 0x8000, v34"); a("v_xor_b32 v33, v33, v34")
        a("v_lshlrev_b32 v33, 16, v33")
        exp_acc(a, 34, 33, 35, 36, 30, 31, 32, neg=True)
        a("v_add_f32 v34, 1.0, v34"); a("v_rcp_f32 v35, v34")
        a("v_mov_b32 v37, 1.0")
        div_acc(a, 20+r, 37, 34, 35, 36)
    rnd2(a,20,21,32); rnd2(a,22,23,32)
    for r in range(4): a(f"v_mul_f32 v{16+r}, v{16+r}, v{20+r}")
    rnd2(a,16,17,32); rnd2(a,18,19,32)
    for r in range(4):
        a(f"v_lshlrev_b32 v{112+r}, 16, v{112+r}"); a(f"v_lshlrev_b32 v{116+r}, 16, v{116+r}")
        a(f"v_add_f32 v{16+r}, v{16+r}, v{116+r}")
    rnd2(a,16,17,32); rnd2(a,18,19,32)
    for r in range(4): a(f"v_mul_f32 v{16+r}, v{16+r}, v124")
    rnd2(a,16,17,32); rnd2(a,18,19,32)
    for r in range(4): a(f"v_add_f32 v{16+r}, v{16+r}, v{112+r}")
    a("v_cvt_pk_bf16_f32 v28, v16, v17"); a("v_cvt_pk_bf16_f32 v29, v18, v19")
    a("s_mov_b32 exec_hi, 0")
    a("buffer_store_short v28, v120, s[12:15], 0 offen")
    a("buffer_store_short_d16_hi v28, v121, s[12:15], 0 offen")
    a("buffer_store_short v29, v122, s[12:15], 0 offen")
    a("buffer_store_short_d16_hi v29, v123, s[12:15], 0 offen")
    a.label('L5_end'); a("s_endpgm")

def main(path):
    hdr = open('adaLN_cond__ssm_conv_s4__moe_arch_mod__prompt.s.ref').read().split('; Override')[0]
    kernels=[('k1_kernel',k1,N_GEMV+N_STAT+N_KGEN,256,28672,128),
             ('k2_kernel',k2,448,256,L2_LDS,128),
             ('k3_kernel',k3,256,256,7168,128),
             ('k4_kernel',k4,224,256,L4_LDS,80),
             ('k5_kernel',k5,28,256,L5_LDS,128)]
    out=hdr
    for n,f,g,b,l,v in kernels: out+=f"; @launch kernel={n} grid=({g},1,1) block=({b},1,1) lds={l}\n"
    out+='.amdgcn_target "amdgcn-amd-amdhsa--gfx950"\n.text\n'
    for n,f,g,b,l,v in kernels:
        a=Asm()
        a.raw(f".globl {n}\n.p2align 8\n.type {n},@function")
        f(a)
        out+=a.text()
    out+='.section .rodata,"a"\n'
    for n,f,g,b,l,v in kernels:
        out+='.p2align 6\n'+desc(n,v)
    open(path,'w').write(out)

if __name__=='__main__':
    main(sys.argv[1] if len(sys.argv)>1 else 'adaLN_cond__ssm_conv_s4__moe_arch_mod__prompt.s')
```

```python
REC=0
ACC=112
def cmul(a, d, x, y, t):
    a(f"v_pk_mul_f32 v[{t}:{t+1}], v[{x}:{x+1}], v[{y}:{y+1}] op_sel:[0,0] op_sel_hi:[1,0]")
    a(f"v_pk_fma_f32 v[{d}:{d+1}], v[{x}:{x+1}], v[{y}:{y+1}], v[{t}:{t+1}] op_sel:[1,1,0] op_sel_hi:[0,1,1] neg_lo:[1,0,0]")
def mfmas(a, OP):
    for R in range(2):
        for C in range(2):
            acc=ACC+4*(2*R+C); Rh=OP+8*R; Rl=Rh+4; Ch=OP+8*(2+C); Cl=Ch+4
            for (x,y) in ((Rh,Ch),(Rh,Cl),(Rl,Ch)):
                a(f"v_mfma_f32_16x16x32_bf16 v[{acc}:{acc+3}], v[{x}:{x+3}], v[{y}:{y+3}], v[{acc}:{acc+3}]")
def loop_end(a, n, advance, lbl):
    if advance: a(f"v_add_u32 v1, {16*48}, v1")
    a("s_add_u32 s45, s45, 1"); a(f"s_cmp_lt_u32 s45, {n}"); a(f"s_cbranch_scc1 {lbl}")

def base(a, n, advance=True):
    OP=80; RB=[24,36]
    def conv(x, e, q, T):
        h=OP+8*q+e; l=OP+8*q+4+e
        a(f"v_cvt_pk_bf16_f32 v{h}, v{x}, v{x+1}")
        a(f"v_lshlrev_b32 v{T}, 16, v{h}"); a(f"v_and_b32 v{T+1}, 0xffff0000, v{h}")
        a(f"v_pk_add_f32 v[{T}:{T+1}], v[{x}:{x+1}], v[{T}:{T+1}] neg_lo:[0,1] neg_hi:[0,1]")
        a(f"v_cvt_pk_bf16_f32 v{l}, v{T}, v{T+1}")
    def recld(b, off):
        a(f"ds_read_b128 v[{b}:{b+3}], v1 offset:{REC+off}"); a(f"ds_read_b128 v[{b+4}:{b+7}], v1 offset:{REC+off+16}"); a(f"ds_read_b64 v[{b+8}:{b+9}], v1 offset:{REC+off+32}")
    recld(RB[0],0)
    a("s_mov_b32 s45, 0")
    a.label('F1_kloop')
    for e in range(4):
        b=RB[e&1]; b2=RB[(e+1)&1]
        nxt = (e+1) if e<3 else 16
        recld(b2, nxt*48)
        a("s_waitcnt lgkmcnt(3)")
        a(f"v_pk_mul_f32 v[48:49], v[{b}:{b+1}], v[16:17]")
        a(f"v_pk_mul_f32 v[56:57], v[{b}:{b+1}], v[18:19]")
        a("v_exp_f32 v50, v48"); a("v_exp_f32 v58, v56")
        a("v_fract_f32 v49, v49"); a("v_fract_f32 v57, v57")
        a(f"v_fma_f32 v49, v{b+2}, v17, v49"); a(f"v_fma_f32 v57, v{b+2}, v19, v57")
        a("v_cos_f32 v52, v49"); a("v_sin_f32 v53, v49")
        a("v_cos_f32 v60, v57"); a("v_sin_f32 v61, v57")
        a("v_pk_mul_f32 v[52:53], v[52:53], v[50:51] op_sel:[0,0] op_sel_hi:[1,0]")
        a("v_pk_mul_f32 v[60:61], v[60:61], v[58:59] op_sel:[0,0] op_sel_hi:[1,0]")
        cmul(a, 54, 52, b+4, 48); cmul(a, 62, 60, b+6, 56); cmul(a, 64, 54, b+8, 48)
        conv(60, e, 2, 66); conv(54, e, 0, 68); conv(62, e, 3, 70); conv(64, e, 1, 72)
    mfmas(a, OP)
    loop_end(a,n,advance,'F1_kloop')

def nomfma(a, n, advance=True):
    import types
    global mfmas
    sv=mfmas; mfmas=lambda a,OP: None
    base(a,n,advance); mfmas=sv

def scalar(a, n, advance=True):
    OP=80; RB=[24,36]
    def recld(b, off):
        a(f"ds_read_b128 v[{b}:{b+3}], v1 offset:{REC+off}"); a(f"ds_read_b128 v[{b+4}:{b+7}], v1 offset:{REC+off+16}"); a(f"ds_read_b64 v[{b+8}:{b+9}], v1 offset:{REC+off+32}")
    def cm(d,x,y):
        return [f"v_mul_f32 v{d}, v{x}, v{y}", f"v_mul_f32 v{d+1}, v{x+1}, v{y}", f"v_fma_f32 v{d}, -v{x+1}, v{y+1}, v{d}", f"v_fmac_f32 v{d+1}, v{x}, v{y+1}"]
    recld(RB[0],0)
    a("s_mov_b32 s45, 0")
    a.label('F1_kloop')
    for e in range(4):
        b=RB[e&1]; b2=RB[(e+1)&1]
        nxt = (e+1) if e<3 else 16
        recld(b2, nxt*48)
        a("s_waitcnt lgkmcnt(3)")
        a(f"v_mul_f32 v48, v{b}, v16"); a(f"v_mul_f32 v56, v{b}, v18"); a(f"v_mul_f32 v49, v{b+1}, v17"); a(f"v_mul_f32 v57, v{b+1}, v19")
        a("v_exp_f32 v50, v48"); a("v_exp_f32 v58, v56")
        a("v_fract_f32 v49, v49"); a("v_fract_f32 v57, v57")
        a(f"v_fmac_f32 v49, v{b+2}, v17"); a(f"v_fmac_f32 v57, v{b+2}, v19")
        a("v_cos_f32 v52, v49"); a("v_sin_f32 v53, v49"); a("v_cos_f32 v60, v57"); a("v_sin_f32 v61, v57")
        a("v_mul_f32 v52, v52, v50"); a("v_mul_f32 v53, v53, v50"); a("v_mul_f32 v60, v60, v58"); a("v_mul_f32 v61, v61, v58")
        for p,q in zip(cm(54,52,b+4),cm(62,60,b+6)): a(p); a(q)
        for p in cm(64,54,b+8): a(p)
        xs=[(60,2,66),(54,0,68),(62,3,70),(64,1,72)]
        for x,q,T in xs: a(f"v_cvt_pk_bf16_f32 v{OP+8*q+e}, v{x}, v{x+1}")
        for x,q,T in xs: a(f"v_lshlrev_b32 v{T}, 16, v{OP+8*q+e}"); a(f"v_and_b32 v{T+1}, 0xffff0000, v{OP+8*q+e}")
        for x,q,T in xs: a(f"v_sub_f32 v{T}, v{x}, v{T}"); a(f"v_sub_f32 v{T+1}, v{x+1}, v{T+1}")
        for x,q,T in xs: a(f"v_cvt_pk_bf16_f32 v{OP+8*q+4+e}, v{T}, v{T+1}")
    mfmas(a, OP)
    loop_end(a,n,advance,'F1_kloop')

def inter(a, n, advance=True):
    OP=80; RB=[24,36]
    def recld(b, off):
        a(f"ds_read_b128 v[{b}:{b+3}], v1 offset:{REC+off}"); a(f"ds_read_b128 v[{b+4}:{b+7}], v1 offset:{REC+off+16}"); a(f"ds_read_b64 v[{b+8}:{b+9}], v1 offset:{REC+off+32}")
    def c1(t,x,y): a(f"v_pk_mul_f32 v[{t}:{t+1}], v[{x}:{x+1}], v[{y}:{y+1}] op_sel:[0,0] op_sel_hi:[1,0]")
    def c2(d,x,y,t): a(f"v_pk_fma_f32 v[{d}:{d+1}], v[{x}:{x+1}], v[{y}:{y+1}], v[{t}:{t+1}] op_sel:[1,1,0] op_sel_hi:[0,1,1] neg_lo:[1,0,0]")
    recld(RB[0],0)
    a("s_mov_b32 s45, 0")
    a.label('F1_kloop')
    for e in range(4):
        b=RB[e&1]; b2=RB[(e+1)&1]
        nxt = (e+1) if e<3 else 16
        recld(b2, nxt*48)
        a("s_waitcnt lgkmcnt(3)")
        a(f"v_pk_mul_f32 v[48:49], v[{b}:{b+1}], v[16:17]")
        a(f"v_pk_mul_f32 v[56:57], v[{b}:{b+1}], v[18:19]")
        a("v_fract_f32 v49, v49"); a("v_fract_f32 v57, v57")
        a("v_exp_f32 v50, v48"); a("v_exp_f32 v58, v56")
        a(f"v_fma_f32 v49, v{b+2}, v17, v49"); a(f"v_fma_f32 v57, v{b+2}, v19, v57")
        a("v_cos_f32 v52, v49"); a("v_cos_f32 v60, v57"); a("v_sin_f32 v53, v49"); a("v_sin_f32 v61, v57")
        c1(52,52,50); c1(60,60,58)
        c1(48,52,b+4); c1(56,60,b+6); c2(54,52,b+4,48); c2(62,60,b+6,56)
        a(f"v_cvt_pk_bf16_f32 v{OP+16+e}, v60, v61")
        c1(48,54,b+8)
        a(f"v_cvt_pk_bf16_f32 v{OP+0+e}, v54, v55"); a(f"v_cvt_pk_bf16_f32 v{OP+24+e}, v62, v63")
        c2(64,54,b+8,48)
        xs=[(60,2,66),(54,0,68),(62,3,70),(64,1,72)]
        for x,q,T in xs[:3]: a(f"v_lshlrev_b32 v{T}, 16, v{OP+8*q+e}"); a(f"v_and_b32 v{T+1}, 0xffff0000, v{OP+8*q+e}")
        a(f"v_cvt_pk_bf16_f32 v{OP+8+e}, v64, v65")
        for x,q,T in xs[:3]: a(f"v_pk_add_f32 v[{T}:{T+1}], v[{x}:{x+1}], v[{T}:{T+1}] neg_lo:[0,1] neg_hi:[0,1]")
        x,q,T=xs[3]; a(f"v_lshlrev_b32 v{T}, 16, v{OP+8*q+e}"); a(f"v_and_b32 v{T+1}, 0xffff0000, v{OP+8*q+e}")
        for x,q,T in xs[:3]: a(f"v_cvt_pk_bf16_f32 v{OP+8*q+4+e}, v{T}, v{T+1}")
        x,q,T=xs[3]; a(f"v_pk_add_f32 v[{T}:{T+1}], v[{x}:{x+1}], v[{T}:{T+1}] neg_lo:[0,1] neg_hi:[0,1]"); a(f"v_cvt_pk_bf16_f32 v{OP+8*q+4+e}, v{T}, v{T+1}")
    mfmas(a, OP)
    loop_end(a,n,advance,'F1_kloop')

VARIANTS={'base':base,'nomfma':nomfma,'scalar':scalar,'inter':inter}

T2=8192
PLACE=1
def v2(a, n, advance=True, dot=False, standalone=True, hook=None):
    OPS=[48,80]
    RB=[24,32]
    TMP=128
    def recld(b, off):
        a(f"ds_read_b128 v[{b}:{b+3}], v1 offset:{REC+off}"); a(f"ds_read_b128 v[{b+4}:{b+7}], v1 offset:{REC+off+16}")
    def mf(OP):
        L=[]
        for R in range(2):
            for C in range(2):
                acc=ACC+4*(2*R+C); Rh=OP+(0 if R==0 else 24); Rl=Rh+4; Ch=OP+8+8*C; Cl=Ch+4
                for (x,y) in ((Rh,Ch),(Rh,Cl),(Rl,Ch)):
                    L.append(f"v_mfma_f32_16x16x32_bf16 v[{acc}:{acc+3}], v[{x}:{x+3}], v[{y}:{y+3}], v[{acc}:{acc+3}]")
        return L
    def c1(t,x,y): a(f"v_pk_mul_f32 v[{t}:{t+1}], v[{x}:{x+1}], v[{y}:{y+1}] op_sel:[0,0] op_sel_hi:[1,0]")
    def c2(d,x,y,t): a(f"v_pk_fma_f32 v[{d}:{d+1}], v[{x}:{x+1}], v[{y}:{y+1}], v[{t}:{t+1}] op_sel:[1,1,0] op_sel_hi:[0,1,1] neg_lo:[1,0,0]")
    def kb(OP, pend, kboff):
        pend=list(pend)
        def m():
            if pend: a(pend.pop(0))
        a(f"ds_read_b64 v[{TMP+24}:{TMP+25}], v15 offset:{kboff*512}")
        for e in range(4):
            b=RB[e&1]; b2=RB[(e+1)&1]
            nxt = (e+1) if e<3 else 16
            recld(b2, kboff*512+nxt*32)
            a("s_waitcnt lgkmcnt(2)")
            T=TMP
            a(f"v_pk_mul_f32 v[{T}:{T+1}], v[{b}:{b+1}], v[16:17]")
            a(f"v_pk_mul_f32 v[{T+8}:{T+9}], v[{b}:{b+1}], v[18:19]")
            if PLACE==1: m()
            a(f"v_and_b32 v{OP+24+e}, v{20+e}, v{TMP+24}"); a(f"v_and_b32 v{OP+28+e}, v{20+e}, v{TMP+25}")
            a(f"v_exp_f32 v{T+2}, v{T}"); a(f"v_exp_f32 v{T+10}, v{T+8}")
            if PLACE==2: m()
            a(f"v_fract_f32 v{T+1}, v{T+1}"); a(f"v_fract_f32 v{T+9}, v{T+9}")
            if PLACE==0: m()
            a(f"v_fma_f32 v{T+1}, v{b+2}, v17, v{T+1}"); a(f"v_fma_f32 v{T+9}, v{b+2}, v19, v{T+9}")
            if PLACE>=1: m()
            a(f"v_cos_f32 v{T+4}, v{T+1}"); a(f"v_sin_f32 v{T+5}, v{T+1}")
            if PLACE==2: m()
            a(f"v_cos_f32 v{T+12}, v{T+9}"); a(f"v_sin_f32 v{T+13}, v{T+9}")
            c1(T+4,T+4,T+2); c1(T+12,T+12,T+10)
            if PLACE==0: m()
            c1(T,T+4,b+4); c1(T+8,T+12,b+6); c2(T+6,T+4,b+4,T); c2(T+14,T+12,b+6,T+8)
            xs=[(T+12,OP+8,T+16),(T+6,OP,T+18),(T+14,OP+16,T+20)]
            if PLACE==1: m()
            for x,o,t in xs: a(f"v_cvt_pk_bf16_f32 v{o+e}, v{x}, v{x+1}")
            if PLACE==0: m()
            if dot:
                for x,o,t in xs: a(f"v_dot2_f32_bf16 v{t}, v{o+e}, v2, v{x}"); a(f"v_dot2_f32_bf16 v{t+1}, v{o+e}, v3, v{x+1}")
            else:
                for x,o,t in xs: a(f"v_lshlrev_b32 v{t}, 16, v{o+e}"); a(f"v_and_b32 v{t+1}, 0xffff0000, v{o+e}")
                for x,o,t in xs: a(f"v_pk_add_f32 v[{t}:{t+1}], v[{x}:{x+1}], v[{t}:{t+1}] neg_lo:[0,1] neg_hi:[0,1]")
            for x,o,t in xs: a(f"v_cvt_pk_bf16_f32 v{o+4+e}, v{t}, v{t+1}")
        assert not pend
    recld(RB[0],0)
    if standalone:
        a("s_mov_b32 s45, 0")
        a.label('F1_kloop')
        kb(OPS[0], mf(OPS[1]), 0)
        kb(OPS[1], mf(OPS[0]), 1)
        a("s_add_u32 s45, s45, 1"); a(f"s_cmp_lt_u32 s45, {n//2}"); a("s_cbranch_scc1 F1_kloop")
    else:
        kb(OPS[0], [], 0)
        kb(OPS[1], mf(OPS[0]), 1)
        kb(OPS[0], mf(OPS[1]), 2)
        if hook: hook()
        kb(OPS[1], mf(OPS[0]), 3)
        for x in mf(OPS[1]): a(x)
def v2dot(a,n,advance=True): v2(a,n,advance,dot=True)
def v2p(p):
    def f(a,n,advance=True):
        global PLACE
        PLACE=p; v2(a,n,advance)
    return f
def v2nom(a,n,advance=True):
    global PLACE
    PLACE=9
    try: v2(a,n,advance)
    except AssertionError: pass
VARIANTS={'v2p0':v2p(0),'v2p1':v2p(1),'v2p2':v2p(2)}
```

```python
WS_MOD = 0
WS_MODB = 0x4000
WS_CNT = 0x8000
WS_ST  = 0x10000
WS_NB  = 0x20000
WS_X1  = 0x200000
WS_YB = 0x400000
WS_H2  = 0x600000
WS_R   = 0x800000
WS_IDX = 0x810000
WS_ACT = 0x820000
WS_P   = 0x900000
WS_PROF = 0xE00000
WS_BYTES = 0x1000000
```

```python
import sys, struct, math
sys.path.insert(0,'work')
from asmlib import Asm
from layout import *
import numpy as np

def f2u(x): return struct.unpack('<I', struct.pack('<f', x))[0]
def hx(x): return '0x%08x' % f2u(x)
LOG2E = 1.4426950408889634; L_HI = float(np.float32(LOG2E)); L_LO = float(np.float32(LOG2E-L_HI))
LN2 = 0.6931471805599453
I2P = 0.15915494309189535; I2P_HI = float(np.float32(I2P)); I2P_LO = float(np.float32(I2P-I2P_HI))
WS_SIZE = 268435456
KA = dict(A_u=0,A_re=8,A_im=16,B_re=24,B_im=32,C_re=40,C_im=48,log_dt=56,Dskip=64,B_x=72,w_r=80,w_gate=88,w_up=96,w_down=104,c=112,w_mod=120,out=128,dbg=136,ws=144)
SZ = dict(A_u=2048*896,A_re=448*512,A_im=448*512,B_re=448*512,B_im=448*512,C_re=448*512,C_im=448*512,log_dt=896,Dskip=896,w_r=896,w_gate=448*3584,w_up=448*3584,w_down=1792*896,c=896,w_mod=448*5376,out=2048*896,dbg=256,ws=WS_SIZE)

def srd_load(a, s, name):
    a(f"s_load_dwordx2 s[{s}:{s+1}], s[0:1], {KA[name]}")
    a(f"s_mov_b32 s{s+2}, {SZ[name]}")
    a(f"s_mov_b32 s{s+3}, 0x20000")

def rnd2(a, x0, x1, tmp):
    a(f"v_cvt_pk_bf16_f32 v{tmp}, v{x0}, v{x1}")
    a(f"v_lshlrev_b32 v{x0}, 16, v{tmp}")
    a(f"v_and_b32 v{x1}, 0xffff0000, v{tmp}")
def rnd1(a, x0, tmp):
    a(f"v_cvt_pk_bf16_f32 v{tmp}, v{x0}, v{x0}")
    a(f"v_lshlrev_b32 v{x0}, 16, v{tmp}")

def wave_red(a, regs, op='v_add_f32'):
    zero = ' bound_ctrl:0'
    for sh in (1,2,4,8):
        for r in regs: a(f"{op}_dpp v{r}, v{r}, v{r} row_shr:{sh} row_mask:0xf bank_mask:0xf{zero}")
    for r in regs: a(f"{op}_dpp v{r}, v{r}, v{r} row_bcast:15 row_mask:0xa bank_mask:0xf")
    for r in regs: a(f"{op}_dpp v{r}, v{r}, v{r} row_bcast:31 row_mask:0xc bank_mask:0xf")

def exp_acc(a, dst, x, t, e, sLhi, sLlo, sLn2, neg=False):
    n = '-' if neg else ''
    a(f"v_mul_f32 v{t}, s{sLhi}, v{x}")
    a(f"v_fma_f32 v{e}, v{x}, s{sLhi}, -v{t}")
    a(f"v_fma_f32 v{e}, v{x}, s{sLlo}, v{e}")
    a(f"v_exp_f32 v{dst}, v{t}" if not neg else f"v_exp_f32_e64 v{dst}, -v{t}")
    a(f"v_mul_f32 v{e}, s{sLn2}, v{e}")
    a(f"v_fma_f32 v{dst}, v{dst}, {n}v{e}, v{dst}")

def div_acc(a, q, num, den, r, e):
    a(f"v_mul_f32 v{q}, v{num}, v{r}")
    a(f"v_fma_f32 v{e}, -v{q}, v{den}, v{num}")
    a(f"v_fma_f32 v{q}, v{e}, v{r}, v{q}")

def cmul(a, d, x, y, t):
    a(f"v_pk_mul_f32 v[{t}:{t+1}], v[{x}:{x+1}], v[{y}:{y+1}] op_sel:[0,0] op_sel_hi:[1,0]")
    a(f"v_pk_fma_f32 v[{d}:{d+1}], v[{x}:{x+1}], v[{y}:{y+1}], v[{t}:{t+1}] op_sel:[1,1,0] op_sel_hi:[0,1,1] neg_lo:[1,0,0]")

def ln_stats(a, X, nrows, sums, tmp, S0):
    for i in range(nrows):
        x=X[i]; s=sums[i]
        a(f"v_add_f32 v{s}, v{x[0]}, v{x[1]}")
        for e in range(2,8): a(f"v_add_f32 v{s}, v{s}, v{x[e]}")
    wave_red(a, sums)
    for i in range(nrows): a(f"v_readlane_b32 s{S0+i}, v{sums[i]}, 63")
    mean=[tmp+i for i in range(nrows)]
    a(f"v_mov_b32 v{tmp+3*nrows}, {hx(1.0/448)}")
    for i in range(nrows): a(f"v_mul_f32 v{mean[i]}, s{S0+i}, v{tmp+3*nrows}")
    for i in range(nrows): a(f"v_mov_b32 v{sums[i]}, 0")
    a(f"s_mov_b32 exec_hi, 0x00ffffff")
    d=tmp+3*nrows+1
    for i in range(nrows):
        for e in range(8):
            a(f"v_sub_f32 v{d+(e&1)}, v{X[i][e]}, v{mean[i]}")
            a(f"v_fmac_f32 v{sums[i]}, v{d+(e&1)}, v{d+(e&1)}")
    a(f"s_mov_b32 exec_hi, -1")
    a.nop(1)
    wave_red(a, sums)
    for i in range(nrows): a(f"v_readlane_b32 s{S0+i}, v{sums[i]}, 63")
    sd=[tmp+nrows+i for i in range(nrows)]; ri=[tmp+2*nrows+i for i in range(nrows)]
    for i in range(nrows):
        a(f"v_mul_f32 v{sd[i]}, s{S0+i}, v{tmp+3*nrows}")
        rnd2(a, mean[i], sd[i], d)
        a(f"v_add_f32 v{sd[i]}, {hx(1e-5)}, v{sd[i]}")
        rnd1(a, sd[i], d)
        a(f"v_sqrt_f32 v{sd[i]}, v{sd[i]}")
        rnd1(a, sd[i], d)
        a(f"v_rcp_f32 v{ri[i]}, v{sd[i]}")
    return mean, sd, ri

def ln_norm(a, x, out, m, s, ri, t0):
    for e in range(0,8,2):
        a(f"v_sub_f32 v{out[e]}, v{x[e]}, v{m}")
        a(f"v_sub_f32 v{out[e+1]}, v{x[e+1]}, v{m}")
        rnd2(a, out[e], out[e+1], t0)
        for k in (e,e+1):
            a(f"v_mul_f32 v{out[k]}, v{out[k]}, v{ri}")
        rnd2(a, out[e], out[e+1], t0)

def unpack8(a, src, dst):
    for i in range(4):
        a(f"v_lshlrev_b32 v{dst[2*i]}, 16, v{src+i}")
        a(f"v_and_b32 v{dst[2*i+1]}, 0xffff0000, v{src+i}")

def idx_of_l(a, dst, lf, lu, t, c128, sc):
    a(f"v_cvt_pk_bf16_f32 v{t}, v{lf}, v{lf}")
    a(f"v_and_b32 v{t}, 0xffff, v{t}")
    a(f"v_subrev_u32 v{t}, {(134<<7)-128}, v{t}")
    a(f"v_cmp_lt_u32_e64 s[{sc}:{sc+1}], v{lu}, v{c128}")
    a(f"v_cndmask_b32_e64 v{dst}, v{t}, v{lu}, s[{sc}:{sc+1}]")

PROF = False
def stamp(a, i):
    if PROF:
        a(f"s_memrealtime s[{70+2*i}:{71+2*i}]")
        if i==0: a("s_memtime s[96:97]")
def prof_end(a, kidx, n, srd):
    if not PROF: return
    stamp(a, n); n+=1
    a("s_memtime s[98:99]")
    a("s_mov_b64 exec, -1")
    a("s_waitcnt lgkmcnt(0)")
    a("s_sub_u32 s98, s98, s96")
    for i in range(n): a(f"v_mov_b32 v{100+i}, s{70+2*i}")
    for i in range(n,12): a(f"v_mov_b32 v{100+i}, 0")
    a("v_lshrrev_b32 v99, 6, v0"); a("v_lshlrev_b32 v99, 6, v99")
    a(f"s_lshl_b32 s69, s2, 9"); a(f"s_add_u32 s69, s69, {WS_PROF+kidx*0x80000}")
    a("v_and_b32 v98, 63, v0"); a("v_cmp_eq_u32 vcc, 0, v98"); a("s_and_saveexec_b64 s[66:67], vcc")
    a("s_getreg_b32 s68, hwreg(HW_REG_HW_ID)"); a("v_mov_b32 v112, s68"); a("s_getreg_b32 s68, hwreg(HW_REG_XCC_ID)"); a("v_mov_b32 v113, s68"); a("v_mov_b32 v114, s98"); a("v_mov_b32 v115, 0")
    for j in range(4): a(f"buffer_store_dwordx4 v[{100+4*j}:{103+4*j}], v99, s[{srd}:{srd+3}], s69 offen offset:{16*j}")
    a("s_mov_b64 exec, -1")

N_GEMV=84; N_STAT=128; N_CONV=448; N_PROD=N_GEMV+N_STAT
REC=0; TAB=16384; TABN=664
C_P=0
C_KH=32768; C_KL=C_KH+4608; C_H0=C_KH+9216; C_H1=C_H0+4160+64+12
F1_LDS=C_H1+4160+4
assert C_H1%16==12 and F1_LDS%16==0

N_SIG=28+N_STAT
def signal(a, dbg, sidx):
    a("v_mov_b32 v1, 0"); a("v_mov_b32 v2, 1"); a("v_mov_b32 v3, 1")
    a("v_cmp_eq_u32 vcc, 0, v0"); a("s_and_saveexec_b64 s[34:35], vcc")
    a("s_cbranch_execz F1_end")
    a(f"buffer_atomic_add v2, v1, s[{dbg}:{dbg+3}], 0 offen sc0 sc1")
    a("s_waitcnt vmcnt(0)")
    a("v_readfirstlane_b32 s34, v2")
    a(f"s_cmp_lg_u32 s34, {N_SIG-1}"); a("s_cbranch_scc1 F1_end")
    a(f"buffer_store_dword v3, v1, s[{dbg}:{dbg+3}], 0 offen offset:128 sc1")

def f1(a):
    a.label('f1_kernel'); stamp(a,0)
    a(f"s_cmp_ge_u32 s2, {N_PROD+N_CONV}"); a("s_cbranch_scc1 F1_end")
    a(f"s_cmp_ge_u32 s2, {N_PROD}"); a("s_cbranch_scc1 F1_conv")
    a("s_setprio 3")
    a(f"s_cmp_ge_u32 s2, {N_GEMV}"); a("s_cbranch_scc1 F1_stat")
    srd_load(a,4,'w_mod'); srd_load(a,8,'c'); srd_load(a,12,'ws'); srd_load(a,36,'dbg')
    a(f"s_mov_b32 s30, {hx(L_HI)}"); a(f"s_mov_b32 s31, {hx(L_LO)}"); a(f"s_mov_b32 s32, {hx(LN2)}")
    a("v_lshrrev_b32 v1, 2, v0"); a("v_and_b32 v2, 3, v0")
    a("v_mul_u32_u24 v3, 5376, v1"); a("v_lshl_add_u32 v3, v2, 4, v3")
    a("s_lshl_b32 s3, s2, 6"); a("v_add_u32 v3, s3, v3")
    a("v_lshlrev_b32 v4, 1, v1")
    for i in range(7): a(f"s_mov_b32 s{20+i}, {344064*i}")
    a("s_waitcnt lgkmcnt(0)"); stamp(a,1)
    for i in range(7): a(f"buffer_load_ushort v{8+i}, v4, s[8:11], 0 offen offset:{128*i}")
    for i in range(7): a(f"buffer_load_dwordx4 v[{16+4*i}:{19+4*i}], v3, s[4:7], s{20+i} offen")
    a("s_waitcnt vmcnt(7)")
    for i in range(7):
        x=8+i
        a(f"v_lshlrev_b32 v{x}, 16, v{x}")
        exp_acc(a, 60, x, 61, 62, 30, 31, 32, neg=True)
        a("v_add_f32 v60, 1.0, v60"); a("v_rcp_f32 v61, v60")
        div_acc(a, 63, x, 60, 61, 62)
        rnd1(a, 63, 61)
        a(f"v_mov_b32 v{x}, v63")
    for e in range(8): a(f"v_mov_b32 v{48+e}, 0")
    for i in range(7):
        a(f"s_waitcnt vmcnt({6-i})")
        for j in range(4):
            a(f"v_lshlrev_b32 v60, 16, v{16+4*i+j}"); a(f"v_and_b32 v61, 0xffff0000, v{16+4*i+j}")
            a(f"v_fmac_f32 v{48+2*j}, v{8+i}, v60"); a(f"v_fmac_f32 v{49+2*j}, v{8+i}, v61")
    stamp(a,2)
    for sh in (4,8):
        for e in range(8): a(f"v_add_f32_dpp v{48+e}, v{48+e}, v{48+e} row_ror:{sh} row_mask:0xf bank_mask:0xf")
    a("v_lshrrev_b32 v5, 4, v0"); a("v_lshlrev_b32 v5, 7, v5"); a("v_lshl_add_u32 v5, v2, 5, v5")
    a("v_and_b32 v6, 12, v0"); a("v_cmp_eq_u32 vcc, 0, v6")
    a("s_and_saveexec_b64 s[34:35], vcc")
    a("ds_write_b128 v5, v[48:51]"); a("ds_write_b128 v5, v[52:55] offset:16")
    a("s_mov_b64 exec, s[34:35]")
    a("s_waitcnt lgkmcnt(0)"); a("s_barrier")
    prof_end(a,0,3,12)
    a("v_cmp_gt_u32 vcc, 32, v0"); a("s_and_saveexec_b64 s[34:35], vcc")
    a("s_cbranch_execz F1_end")
    a("v_lshlrev_b32 v5, 2, v0")
    for p in range(16): a(f"ds_read_b32 v{16+p}, v5 offset:{128*p}")
    a("s_waitcnt lgkmcnt(0)")
    for p in range(1,16): a(f"v_add_f32 v16, v16, v{16+p}")
    rnd1(a, 16, 17)
    a("s_lshl_b32 s3, s2, 7"); a("v_add_u32 v5, s3, v5")
    a(f"buffer_store_dword v16, v5, s[12:15], 0 offen offset:{WS_MOD} sc1")
    a("s_sub_u32 s3, s2, 14"); a("s_cmp_lt_u32 s3, 14"); a("s_cselect_b32 s33, 1.0, 0")
    a("s_sub_u32 s3, s2, 56"); a("s_cmp_lt_u32 s3, 14"); a("s_cselect_b32 s33, 1.0, s33")
    a("v_add_f32 v18, s33, v16"); a("v_cvt_pk_bf16_f32 v18, v18, v18")
    a("v_lshrrev_b32 v6, 1, v5"); a(f"s_mov_b32 s3, {WS_MODB}")
    a("buffer_store_short v18, v6, s[12:15], s3 offen")
    a("s_cmp_ge_u32 s2, 28"); a("s_cbranch_scc1 F1_end")
    a("s_waitcnt vmcnt(0)")
    signal(a, 36, 2)
    a("s_endpgm")
    a.label('F1_stat'); a.flush()
    srd_load(a,4,'A_u'); srd_load(a,12,'ws'); srd_load(a,36,'dbg')
    srd_load(a,40,'w_gate'); srd_load(a,44,'w_up'); srd_load(a,48,'w_down')
    a(f"s_sub_u32 s3, s2, {N_GEMV}")
    a("v_and_b32 v1, 63, v0"); a("v_lshrrev_b32 v2, 6, v0")
    a("s_mul_i32 s16, s3, 14336")
    a("v_mul_u32_u24 v3, 3584, v2"); a("v_lshl_add_u32 v3, v1, 4, v3"); a("v_add_u32 v3, s16, v3")
    for i in range(16): a(f"v_mov_b32 v{8+i}, 0")
    a("s_waitcnt lgkmcnt(0)"); stamp(a,1)
    a("s_mov_b32 exec_hi, 0x00ffffff")
    for i in range(4): a(f"buffer_load_dwordx4 v[{8+4*i}:{11+4*i}], v3, s[4:7], 0 offen offset:{896*i}")
    a("s_mov_b32 exec_hi, -1")
    a("s_waitcnt vmcnt(0)"); stamp(a,2)
    X=[[24+8*i+e for e in range(8)] for i in range(4)]
    for i in range(4): unpack8(a, 8+4*i, X[i])
    mean,sd,ri = ln_stats(a, X, 4, [56,57,58,59], 60, 20)
    for i in range(4):
        a(f"v_mov_b32 v{116+2*i}, v{mean[i]}"); a(f"v_mov_b32 v{117+2*i}, v{ri[i]}")
    a("s_lshl_b32 s16, s3, 7"); a(f"s_add_u32 s16, s16, {WS_ST}")
    a("v_lshlrev_b32 v4, 5, v2")
    a("s_mov_b32 exec_lo, 1"); a("s_mov_b32 exec_hi, 0")
    a("buffer_store_dwordx4 v[116:119], v4, s[12:15], s16 offen")
    a("buffer_store_dwordx4 v[120:123], v4, s[12:15], s16 offen offset:16")
    a("s_mov_b64 exec, -1")
    Nn=[[80+8*i+e for e in range(8)] for i in range(4)]
    for i in range(4): ln_norm(a, X[i], Nn[i], mean[i], sd[i], ri[i], 112)
    a("v_and_b32 v4, 15, v1"); a("v_lshlrev_b32 v4, 4, v4"); a("v_lshlrev_b32 v5, 3, v2"); a("v_xor_b32 v4, v4, v5")
    a("v_lshl_add_u32 v4, v1, 8, v4")
    a("s_mov_b32 exec_hi, 0x00ffffff")
    for e in range(8):
        q=8+2*(e&3)
        a(f"v_cvt_pk_bf16_f32 v{q}, v{Nn[0][e]}, v{Nn[1][e]}"); a(f"v_cvt_pk_bf16_f32 v{q+1}, v{Nn[2][e]}, v{Nn[3][e]}")
        a(f"v_xor_b32 v{16+(e&3)}, {32*e}, v4")
        a(f"ds_write_b64 v{16+(e&3)}, v[{q}:{q+1}]")
    a("s_mov_b32 exec_hi, -1")
    a("v_lshlrev_b32 v5, 4, v0"); a("v_bfe_u32 v6, v0, 4, 4"); a("v_lshlrev_b32 v6, 4, v6"); a("v_xor_b32 v6, v6, v5")
    a("s_mul_i32 s16, s3, 14336"); a(f"s_add_u32 s16, s16, {WS_NB}"); a("s_add_u32 s17, s16, 4096"); a("s_add_u32 s18, s16, 8192"); a("s_add_u32 s19, s16, 12288")
    a("s_waitcnt lgkmcnt(0)"); a("s_barrier"); stamp(a,3)
    for it in range(4): a(f"ds_read_b128 v[{24+4*it}:{27+4*it}], v6 offset:{4096*it}")
    for it in range(3):
        a(f"s_waitcnt lgkmcnt({3-it})")
        a(f"buffer_store_dwordx4 v[{24+4*it}:{27+4*it}], v5, s[12:15], s{16+it} offen sc1")
    a("s_waitcnt lgkmcnt(0)")
    a("v_cmp_gt_u32 vcc, 128, v0"); a("s_and_saveexec_b64 s[34:35], vcc")
    a("s_cbranch_execz F1_st3")
    a("buffer_store_dwordx4 v[36:39], v5, s[12:15], s19 offen sc1")
    a.label('F1_st3'); a("s_mov_b64 exec, s[34:35]")
    a("s_waitcnt vmcnt(0)"); a("s_barrier")
    prof_end(a,0,4,12)
    a("v_mov_b32 v1, 0"); a("v_mov_b32 v2, 1"); a("v_mov_b32 v3, 1")
    a("v_cmp_eq_u32 vcc, 0, v0"); a("s_and_saveexec_b64 s[34:35], vcc")
    a("s_cbranch_execz F1_pf")
    a("buffer_atomic_add v2, v1, s[36:39], 0 offen sc0 sc1")
    a("s_waitcnt vmcnt(0)")
    a("v_readfirstlane_b32 s33, v2")
    a(f"s_cmp_lg_u32 s33, {N_SIG-1}"); a("s_cbranch_scc1 F1_pf")
    a("buffer_store_dword v3, v1, s[36:39], 0 offen offset:128 sc1")
    a.label('F1_pf'); a.flush()
    a("s_mov_b64 exec, -1")
    a("s_setprio 0")
    if PREFETCH:
        a("s_and_b32 s16, s2, 7"); a("s_lshr_b32 s17, s3, 3")
        a("v_lshrrev_b32 v4, 3, v0"); a("v_and_b32 v5, 7, v0"); a("v_lshlrev_b32 v5, 6, v5"); a("v_min_u32 v5, 444, v5")
        a("v_mul_u32_u24 v4, 3584, v4"); a("v_add_u32 v4, v4, v5")
        a("s_mul_i32 s18, s17, 100352"); a("s_mul_i32 s19, s16, 448"); a("s_add_u32 s18, s18, s19")
        a("s_mul_i32 s19, s16, 224"); a("s_mul_i32 s20, s17, 14"); a("s_add_u32 s19, s19, s20"); a("s_mul_i32 s19, s19, 896")
        a("v_lshlrev_b32 v6, 6, v0")
        a("v_cmp_gt_u32 vcc, 224, v0"); a("s_and_b64 exec, exec, vcc")
        a("s_cbranch_execz F1_end")
        a("buffer_load_dword v8, v4, s[40:43], s18 offen")
        a("buffer_load_dword v9, v4, s[44:47], s18 offen")
        a("v_cmp_gt_u32 vcc, 196, v0"); a("s_and_b64 exec, exec, vcc")
        a("s_cbranch_execz F1_end")
        a("buffer_load_dword v10, v6, s[48:51], s19 offen")
    a("s_endpgm")
    a.label('F1_conv'); a.flush()
    conv_role(a)
    a.label('F1_end'); a("s_endpgm")

def conv_role(a):
    import kloop
    names=['A_re','A_im','B_re','B_im','C_re','C_im']
    for i,nm in enumerate(names): srd_load(a, 4+4*i, nm)
    srd_load(a,28,'log_dt'); srd_load(a,32,'ws'); srd_load(a,60,'dbg')
    a(f"s_sub_u32 s38, s2, {N_PROD}")
    a("s_setprio 1")
    a("s_and_b32 s3, s38, 7"); a("s_mul_i32 s3, s3, 56"); a("s_lshr_b32 s39, s38, 3"); a("s_add_u32 s3, s3, s39")
    a(f"s_mov_b32 s40, {hx(L_HI)}"); a(f"s_mov_b32 s41, {hx(L_LO)}"); a(f"s_mov_b32 s42, {hx(LN2)}")
    a(f"s_mov_b32 s43, {hx(I2P_HI)}"); a(f"s_mov_b32 s44, {hx(I2P_LO)}")
    a("s_lshl_b32 s36, s3, 9"); a("s_lshl_b32 s37, s3, 1")
    a("v_lshlrev_b32 v1, 1, v0"); a("v_mov_b32 v2, s37")
    a("s_waitcnt lgkmcnt(0)"); stamp(a,1)
    a("buffer_load_ushort v3, v2, s[28:31], 0 offen")
    for i in range(6): a(f"buffer_load_ushort v{4+i}, v1, s[{4+4*i}:{7+4*i}], s36 offen")
    a("v_and_b32 v10, 63, v0"); a("v_and_b32 v11, 15, v0"); a("v_bfe_u32 v12, v0, 4, 2"); a("v_lshrrev_b32 v13, 6, v0")
    a("v_mov_b32 v14, v11")
    a("v_lshlrev_b32 v15, 1, v11"); a("v_add_u32 v15, 240, v15")
    a("v_cmp_le_u32_e64 s[46:47], 8, v11"); a("v_cmp_le_u32_e64 s[48:49], 12, v11"); a("v_cmp_le_u32_e64 s[50:51], 14, v11")
    a("v_lshlrev_b32 v20, 2, v11"); a("v_add_u32 v21, 464, v20"); a("v_add_u32 v20, 712, v20")
    a("v_cndmask_b32_e64 v14, v14, v15, s[46:47]"); a("v_cndmask_b32_e64 v14, v14, v21, s[48:49]"); a("v_cndmask_b32_e64 v14, v14, v20, s[50:51]")
    a("v_cvt_f32_u32 v16, v14"); a("v_sub_f32 v17, 0, v16")
    a("v_lshlrev_b32 v15, 3, v11"); a("v_cvt_f32_u32 v18, v15"); a("v_mov_b32 v19, v18")
    ACC=112; SA=154
    a(f"v_mul_u32_u24 v2, {TABN*4}, v13")
    a("v_cmp_le_u32_e64 s[46:47], 2, v12"); a("v_cmp_eq_u32_e64 s[48:49], 3, v12")
    a("v_add_u32 v20, -1, v12"); a("v_max_i32 v20, 0, v20"); a("v_sub_u32 v21, 3, v20")
    a("v_lshlrev_b32 v22, v21, v11")
    a("v_lshlrev_b32 v23, 2, v12"); a("v_lshlrev_b32 v24, 7, v12"); a("v_cndmask_b32_e64 v23, v23, v24, s[46:47]")
    a("v_add_u32 v22, v22, v23"); a(f"v_lshl_add_u32 v{SA}, v22, 2, v2")
    a(f"v_add_u32 v24, 248, v{SA}"); a(f"v_cndmask_b32_e64 v{SA+1}, v{SA}, v24, s[48:49]")
    a("v_mov_b32 v25, 64"); a("v_lshlrev_b32 v24, v21, v25")
    a(f"v_add_u32 v{SA+2}, v{SA}, v24"); a(f"v_add_u32 v{SA+3}, v{SA+1}, v24")
    a("v_lshl_add_u32 v22, v12, 5, v11"); a(f"v_lshl_add_u32 v{SA+4}, v22, 2, v2")
    scat=[]
    for C in range(2):
        for r in range(4): scat.append((SA+2*C+(r>>1), 4*r, ACC+4*C+r))
        scat.append((SA+4, 2048+64*C, ACC+8+4*C))
    a("v_and_b32 v24, 3, v11")
    for e in range(4): a(f"v_cmp_eq_u32_e64 s[{46+2*e}:{47+2*e}], {e}, v24")
    for e in range(4): a(f"v_cndmask_b32_e64 v{20+e}, 0, -1, s[{46+2*e}:{47+2*e}]")
    a("v_lshlrev_b32 v159, 6, v13"); a("v_lshl_add_u32 v159, v12, 2, v159")
    a("v_add_u32 v15, v159, v24"); a("v_lshlrev_b32 v15, 5, v15"); a("v_lshrrev_b32 v24, 2, v11"); a("v_lshl_add_u32 v15, v24, 3, v15")
    a(f"v_add_u32 v15, {kloop.T2}, v15")
    a("v_lshlrev_b32 v159, 5, v159")
    for i in range(16): a(f"v_mov_b32 v{ACC+i}, 0")
    a("s_waitcnt vmcnt(6)")
    a("v_lshlrev_b32 v3, 16, v3")
    exp_acc(a, 40, 3, 41, 42, 40, 41, 42)
    rnd1(a, 40, 41)
    a("s_waitcnt vmcnt(0)"); stamp(a,2)
    for i in range(6): a(f"v_lshlrev_b32 v{4+i}, 16, v{4+i}")
    a("v_mul_f32 v4, v40, v4"); a("v_mul_f32 v5, v40, v5"); a("v_mul_f32 v6, v40, v6"); a("v_mul_f32 v7, v40, v7")
    a("v_mul_f32 v24, s40, v4")
    a("v_mul_f32 v25, s43, v5"); a("v_and_b32 v25, 0xffffff00, v25")
    a("v_fma_f32 v26, v5, s43, -v25"); a("v_fma_f32 v26, v5, s44, v26")
    cmul(a, 28, 8, 6, 36)
    a("v_sub_f32 v29, 0, v29")
    ds=[(30,128,+1,48),(32,1024,-1,56),(34,256,-1,64)]
    for (dst,l,sg,T) in ds: a(f"v_mov_b32 v{T}, {hx(float(l))}"); a(f"v_mov_b32 v{T+1}, {hx(float(sg*l))}")
    for (dst,l,sg,T) in ds: a(f"v_pk_mul_f32 v[{T+4}:{T+5}], v[24:25], v[{T}:{T+1}]")
    for (dst,l,sg,T) in ds: a(f"v_exp_f32 v{T+2}, v{T+4}")
    for (dst,l,sg,T) in ds: a(f"v_fract_f32 v{T+5}, v{T+5}")
    for (dst,l,sg,T) in ds: a(f"v_fma_f32 v{T+5}, v26, v{T+1}, v{T+5}")
    for (dst,l,sg,T) in ds: a(f"v_cos_f32 v{T+4}, v{T+5}"); a(f"v_sin_f32 v{T+5}, v{T+5}")
    for (dst,l,sg,T) in ds: a(f"v_pk_mul_f32 v[{dst}:{dst+1}], v[{T+4}:{T+5}], v[{T+2}:{T+3}] op_sel:[0,0] op_sel_hi:[1,0]")
    a("v_lshlrev_b32 v1, 5, v0")
    a(f"ds_write_b128 v1, v[24:27] offset:{REC}"); a(f"ds_write_b128 v1, v[28:31] offset:{REC+16}")
    cmul(a, 72, 32, 28, 36); cmul(a, 74, 72, 34, 36); cmul(a, 76, 74, 34, 36); cmul(a, 78, 76, 34, 36)
    a("v_mul_f32 v44, v78, v34"); a("v_fma_f32 v44, -v79, v35, v44")
    for sidx in range(4):
        x=72+2*sidx; h=80+2*sidx; T=48+2*sidx
        a(f"v_cvt_pk_bf16_f32 v{h}, v{x}, v{x+1}")
        a(f"v_lshlrev_b32 v{T}, 16, v{h}"); a(f"v_and_b32 v{T+1}, 0xffff0000, v{h}")
        a(f"v_pk_add_f32 v[{T}:{T+1}], v[{x}:{x+1}], v[{T}:{T+1}] neg_lo:[0,1] neg_hi:[0,1]")
        a(f"v_cvt_pk_bf16_f32 v{h+1}, v{T}, v{T+1}")
    a(f"ds_write_b128 v1, v[80:83] offset:{kloop.T2}"); a(f"ds_write_b128 v1, v[84:87] offset:{kloop.T2+16}")
    wave_red(a, [44])
    a("v_cmp_eq_u32 vcc, 63, v10"); a("s_and_saveexec_b64 s[46:47], vcc")
    a(f"ds_write_b32 v2, v44 offset:{TAB+640*4}")
    a("s_mov_b64 exec, s[46:47]")
    a("v_mov_b32 v1, v159")
    a("v_mov_b32 v3, 128")
    stamp(a,3)
    a("s_waitcnt lgkmcnt(0)")
    kloop.PLACE=1
    kloop.v2(a, 4, standalone=False, hook=lambda: a("buffer_load_dword v4, v3, s[60:63], 0 offen sc1"))
    stamp(a,4)
    a("s_setprio 0")
    a("v_lshrrev_b32 v5, 1, v0"); a("v_mul_u32_u24 v5, 14336, v5"); a("v_and_b32 v6, 1, v0"); a("v_lshl_add_u32 v5, v6, 4, v5")
    a("s_lshl_b32 s12, s3, 5"); a(f"s_add_u32 s12, s12, {WS_NB}")
    a("s_lshl_b32 s14, s3, 2"); a("v_mov_b32 v7, s14")
    a("v_lshlrev_b32 v6, 4, v0")
    a("v_readfirstlane_b32 s48, v13")
    a("s_mov_b32 s45, 0")
    a.label('F1_poll')
    a("s_waitcnt vmcnt(0)")
    a("v_readfirstlane_b32 s13, v4")
    a(f"s_cmp_lg_u32 s13, 0"); a("s_cbranch_scc1 F1_ready")
    a("s_add_u32 s45, s45, 1"); a("s_cmp_ge_u32 s45, 0x40000"); a("s_cbranch_scc1 F1_ready")
    a("s_sleep 4")
    a("buffer_load_dword v4, v3, s[60:63], 0 offen sc1")
    a("s_branch F1_poll")
    a.label('F1_ready'); a.flush(); stamp(a,5)
    a("buffer_load_dwordx4 v[80:83], v5, s[32:35], s12 offen sc1")
    a(f"buffer_load_dword v9, v7, s[32:35], 0 offen offset:{WS_MOD} sc1")
    a(f"buffer_load_dword v14, v7, s[32:35], 0 offen offset:{WS_MOD+1792} sc1")
    for i in range(4): a(f"v_mov_b32 v{140+i}, 0")
    for C in range(2):
        b=ACC+8+4*C
        a(f"v_add_f32 v{b}, v{b}, v{b+1}"); a(f"v_add_f32 v{b+2}, v{b+2}, v{b+3}"); a(f"v_add_f32 v{b}, v{b}, v{b+2}")
    for (sa,off,src) in scat: a(f"ds_write_b32 v{sa}, v{src} offset:{TAB+off}")
    a("v_cmp_gt_u32 vcc, 30, v0"); a("s_and_saveexec_b64 s[46:47], vcc")
    a(f"ds_write_b128 v6, v[140:143] offset:{C_KH}"); a(f"ds_write_b128 v6, v[140:143] offset:{C_KL}")
    a("v_cmp_gt_u32 vcc, 2, v0"); a("s_and_b64 exec, exec, vcc")
    a(f"ds_write_b128 v6, v[140:143] offset:{C_H0+4096}"); a(f"ds_write_b128 v6, v[140:143] offset:{C_H1+4100}")
    a("s_mov_b64 exec, s[46:47]")
    AA=20; BA=21
    a(f"v_lshlrev_b32 v{AA}, 5, v11"); a(f"v_lshl_add_u32 v{AA}, v12, 4, v{AA}"); a(f"v_lshl_add_u32 v{AA}, v13, 7, v{AA}")
    a(f"v_and_b32 v{BA}, 14, v11"); a(f"v_lshlrev_b32 v{BA}, 1, v{BA}")
    a("v_lshlrev_b32 v16, 4, v12"); a(f"v_sub_u32 v{BA}, v16, v{BA}")
    a("v_and_b32 v16, 1, v11"); a(f"v_mul_u32_u24 v16, {C_H1-C_H0}, v16")
    a(f"v_add_u32 v{BA}, v{BA}, v16"); a(f"v_add_u32 v{BA}, {C_H0+3616-512*7}, v{BA}"); a(f"v_lshl_add_u32 v{BA}, v13, 7, v{BA}")
    for q in range(1,4): a(f"v_add_u32 v{BA+q}, {1024*q}, v{BA}")
    a("v_sub_u32 v8, 4080, v6")
    a("s_waitcnt lgkmcnt(0)"); a("s_barrier"); stamp(a,6)
    W4=TABN; EB=28
    def rd2(dst, j, w): a(f"ds_read2_b32 v[{dst}:{dst+1}], v{EB+w} offset0:{j} offset1:{j+1}")
    a("s_cmp_eq_u32 s48, 0"); a("s_cbranch_scc1 F1_expA")
    a("s_cmp_eq_u32 s48, 1"); a("s_cbranch_scc1 F1_expB")
    a(f"v_lshlrev_b32 v{EB}, 2, v0"); a(f"v_add_u32 v{EB}, {TAB+384*4}, v{EB}")
    for w in range(1,4): a(f"v_add_u32 v{EB+w}, {W4*4*w}, v{EB}")
    for w in range(4): rd2(32+2*w, 0, w)
    a("v_and_b32 v16, 1, v0"); a("v_cmp_eq_u32 vcc, 1, v16")
    a("s_waitcnt lgkmcnt(0)")
    for j in range(2):
        a(f"v_add_f32 v{32+j}, v{32+j}, v{34+j}"); a(f"v_add_f32 v{36+j}, v{36+j}, v{38+j}")
    a("v_add_f32 v64, v32, v36"); a("v_add_f32 v69, v33, v37")
    a("v_cndmask_b32_e64 v68, v64, v69, vcc")
    a("v_mov_b32 v65, v64"); a("v_mov_b32 v66, v64"); a("v_mov_b32 v67, v64"); a("v_mov_b32 v70, v69"); a("v_mov_b32 v71, v69")
    a("s_branch F1_expD")
    a.label('F1_expB'); a.flush()
    a(f"v_lshlrev_b32 v{EB}, 3, v0"); a(f"v_add_u32 v{EB}, {TAB+256*4}, v{EB}")
    for w in range(1,4): a(f"v_add_u32 v{EB+w}, {W4*4*w}, v{EB}")
    for w in range(4): rd2(32+4*w, 0, w); rd2(34+4*w, 2, w)
    a("s_waitcnt lgkmcnt(0)")
    for j in range(3):
        a(f"v_add_f32 v{32+j}, v{32+j}, v{36+j}"); a(f"v_add_f32 v{40+j}, v{40+j}, v{44+j}")
    a("v_add_f32 v64, v32, v40"); a("v_add_f32 v67, v33, v41"); a("v_add_f32 v70, v34, v42")
    a("v_mov_b32 v65, v64"); a("v_mov_b32 v66, v64"); a("v_mov_b32 v68, v67"); a("v_mov_b32 v69, v67"); a("v_mov_b32 v71, v70")
    a("s_branch F1_expD")
    a.label('F1_expA'); a.flush()
    a(f"v_lshlrev_b32 v{EB}, 5, v0"); a("v_lshlrev_b32 v16, 4, v0"); a("v_add_u32 v16, 512, v16")
    a("v_cmp_gt_u32 vcc, 32, v0"); a(f"v_cndmask_b32_e64 v{EB}, v16, v{EB}, vcc"); a(f"v_add_u32 v{EB}, {TAB}, v{EB}")
    for w in range(1,4): a(f"v_add_u32 v{EB+w}, {W4*4*w}, v{EB}")
    for w in range(4):
        for j in range(0,8,2): rd2(32+8*w+j, j, w)
    a("s_waitcnt lgkmcnt(0)")
    for j in range(8):
        a(f"v_add_f32 v{32+j}, v{32+j}, v{40+j}"); a(f"v_add_f32 v{48+j}, v{48+j}, v{56+j}"); a(f"v_add_f32 v{32+j}, v{32+j}, v{48+j}")
    t1=[0,0,1,2,2,2,3,4]
    for e in range(8): a(f"v_cndmask_b32_e64 v{64+e}, v{32+t1[e]}, v{32+e}, vcc")
    a.label('F1_expD'); a.flush()
    for j in range(4):
        x=64+2*j
        a(f"v_cvt_pk_bf16_f32 v{72+j}, v{x}, v{x+1}")
        a(f"v_lshlrev_b32 v{32+2*j}, 16, v{72+j}"); a(f"v_and_b32 v{33+2*j}, 0xffff0000, v{72+j}")
        a(f"v_pk_add_f32 v[{32+2*j}:{33+2*j}], v[{x}:{x+1}], v[{32+2*j}:{33+2*j}] neg_lo:[0,1] neg_hi:[0,1]")
        a(f"v_cvt_pk_bf16_f32 v{76+j}, v{32+2*j}, v{33+2*j}")
    a(f"ds_write_b128 v6, v[72:75] offset:{C_KH+480}"); a(f"ds_write_b128 v6, v[76:79] offset:{C_KL+480}")
    a("s_waitcnt vmcnt(0)"); stamp(a,7)
    a("v_add_f32 v14, 1.0, v14"); rnd1(a, 14, 15)
    unpack8(a, 80, [48+e for e in range(8)])
    for e in range(0,8,2):
        h0,h1=48+e,49+e
        a(f"v_mul_f32 v{h0}, v{h0}, v14"); a(f"v_mul_f32 v{h1}, v{h1}, v14"); rnd2(a,h0,h1,15)
        a(f"v_add_f32 v{h0}, v{h0}, v9"); a(f"v_add_f32 v{h1}, v{h1}, v9")
    for j in range(4): a(f"v_cvt_pk_bf16_f32 v{60+j}, v{48+7-2*j}, v{48+6-2*j}")
    for j in range(1,4): a(f"v_cvt_pk_bf16_f32 v{64+j}, v{48+8-2*j}, v{48+7-2*j}")
    a(f"ds_write_b128 v8, v[60:63] offset:{C_H1+4}")
    a(f"ds_write_b16 v8, v60 offset:{C_H0+2}")
    a(f"ds_write_b32 v8, v65 offset:{C_H0+4}")
    a(f"ds_write_b64 v8, v[66:67] offset:{C_H0+8}")
    a(f"ds_write_b16_d16_hi v8, v63 offset:{C_H0+16}")
    a("v_bfe_u32 v16, v11, 1, 2"); a("v_xor_b32 v16, v16, v12"); a("v_lshlrev_b32 v16, 4, v16")
    a("v_lshl_add_u32 v16, v11, 6, v16"); a("v_lshl_add_u32 v16, v13, 13, v16")
    a("v_and_b32 v4, 1, v0"); a("v_lshlrev_b32 v4, 1, v4"); a("v_bfe_u32 v17, v0, 2, 2")
    a("v_xor_b32 v18, v4, v17"); a("v_xor_b32 v19, 1, v18")
    a("v_lshrrev_b32 v17, 1, v0"); a("v_lshlrev_b32 v17, 6, v17")
    a("v_lshl_add_u32 v18, v18, 4, v17"); a("v_lshl_add_u32 v19, v19, 4, v17")
    a("v_mul_u32_u24 v5, 7168, v0")
    a("s_lshl_b32 s12, s3, 4"); a(f"s_add_u32 s12, s12, {WS_YB}")
    ACC2=64; BTS=[96,128]; AT=[28,36,44]
    a("s_waitcnt lgkmcnt(0)"); a("s_barrier"); stamp(a,8)
    if PROF: a("s_waitcnt lgkmcnt(0)")
    bases=[BA,BA+1,BA+2,BA+3]
    ops=[]
    def issue(tag,text): a(text); ops.append(tag)
    def wait(tags):
        idx=max(i for i,t in enumerate(ops) if t in tags)
        a(f"s_waitcnt lgkmcnt({min(len(ops)-1-idx,15)})")
    def bload(rr,m):
        k=7-m; bs=bases[k>>1]; off=(k&1)*128+16*rr; BT=BTS[rr]
        issue(('B',rr,m), f"ds_read2_b32 v[{BT+4*m}:{BT+4*m+1}], v{bs} offset0:{off} offset1:{off+1}")
        issue(('B',rr,m), f"ds_read2_b32 v[{BT+4*m+2}:{BT+4*m+3}], v{bs} offset0:{off+2} offset1:{off+3}")
    steps=[(rr,s_) for rr in range(2) for s_ in range(8)]
    def aload(i):
        rr,s_=steps[i]; b=AT[i%3]; off=64*(8*s_+rr)
        issue(('A',i), f"ds_read_b128 v[{b}:{b+3}], v{AA} offset:{C_KH+off}")
        issue(('A',i), f"ds_read_b128 v[{b+4}:{b+7}], v{AA} offset:{C_KL+off}")
    aload(0)
    for m in range(8): bload(0,m)
    aload(1)
    for i,(rr,s_) in enumerate(steps):
        if i+2<len(steps): aload(i+2)
        if rr==0 and 1<=s_<=4:
            bload(1,2*(s_-1)); bload(1,2*(s_-1)+1)
        b=AT[i%3]; BT=BTS[rr]
        if s_>0: wait({('A',i)})
        for c in range(s_,8):
            bt=BT+4*(c-s_); acc=ACC2+4*c
            if s_==0: wait({('A',i),('B',rr,c)})
            cin = "0" if (rr==0 and s_==0) else f"v[{acc}:{acc+3}]"
            a(f"v_mfma_f32_16x16x32_bf16 v[{acc}:{acc+3}], v[{bt}:{bt+3}], v[{b}:{b+3}], {cin}")
            a(f"v_mfma_f32_16x16x32_bf16 v[{acc}:{acc+3}], v[{bt}:{bt+3}], v[{b+4}:{b+7}], v[{acc}:{acc+3}]")
        if rr==1:
            if s_>=1: issue(('W',s_-1), f"ds_write_b128 v16, v[{ACC2+4*(s_-1)}:{ACC2+4*(s_-1)+3}] offset:{C_P+1024*(s_-1)}")
    stamp(a,9)
    a(f"ds_write_b128 v16, v[{ACC2+28}:{ACC2+31}] offset:{C_P+1024*7}")
    a("s_waitcnt lgkmcnt(0)"); a("s_barrier"); stamp(a,10)
    for w in range(4):
        a(f"ds_read_b128 v[{64+8*w}:{67+8*w}], v18 offset:{C_P+8192*w}")
        a(f"ds_read_b128 v[{68+8*w}:{71+8*w}], v19 offset:{C_P+8192*w}")
    a("s_waitcnt lgkmcnt(0)")
    for e in range(8):
        a(f"v_add_f32 v{64+e}, v{64+e}, v{72+e}"); a(f"v_add_f32 v{80+e}, v{80+e}, v{88+e}"); a(f"v_add_f32 v{64+e}, v{64+e}, v{80+e}")
    for e in range(0,8,2): a(f"v_cvt_pk_bf16_f32 v{20+e//2}, v{64+e}, v{65+e}")
    a("buffer_store_dwordx4 v[20:23], v5, s[32:35], s12 offen")
    prof_end(a,0,11,32)

L3_C=7168
def k3(a):
    a.label('k3_kernel'); a.flush(); stamp(a,0)
    a("s_cmp_ge_u32 s2, 256"); a("s_cbranch_scc1 L3_end")
    srd_load(a,4,'ws'); srd_load(a,8,'w_r'); srd_load(a,12,'out'); srd_load(a,36,'A_u'); srd_load(a,40,'Dskip')
    a("v_and_b32 v1, 63, v0"); a("v_lshrrev_b32 v2, 6, v0")
    a("v_lshlrev_b32 v3, 5, v0")
    a("s_mul_i32 s16, s2, 7168"); a(f"s_add_u32 s17, s16, {WS_YB}")
    a("v_lshlrev_b32 v5, 4, v1")
    for i in range(36): a(f"v_mov_b32 v{88+i}, 0")
    a("v_readfirstlane_b32 s18, v2")
    a("v_mul_u32_u24 v6, 896, v2"); a("v_add_u32 v6, v6, v5")
    a("v_lshlrev_b32 v7, 3, v2"); a("s_lshl_b32 s19, s2, 6"); a(f"s_add_u32 s19, s19, {WS_ST}")
    a("s_mov_b32 s30, 0x05040100"); a("s_mov_b32 s31, 0x07060302")
    a("v_cmp_gt_u32 vcc, 224, v0")
    a("s_waitcnt lgkmcnt(0)"); stamp(a,1)
    a("s_cmp_ge_u32 s18, 4"); a("s_cbranch_scc1 L3_cw")
    a("s_and_saveexec_b64 s[20:21], vcc")
    a("buffer_load_dwordx4 v[8:11], v3, s[4:7], s17 offen")
    a("buffer_load_dwordx4 v[12:15], v3, s[4:7], s17 offen offset:16")
    a("s_mov_b64 exec, s[20:21]")
    a("buffer_load_dwordx2 v[124:125], v7, s[4:7], s19 offen")
    a("s_mov_b32 exec_hi, 0x00ffffff")
    a("buffer_load_dwordx4 v[120:123], v6, s[36:39], s16 offen")
    a("s_mov_b32 exec_hi, -1")
    a("v_lshlrev_b32 v3, 2, v0")
    a("s_waitcnt vmcnt(2)"); stamp(a,2)
    a("s_and_saveexec_b64 s[20:21], vcc")
    for j in range(4):
        a(f"v_perm_b32 v{16+2*j}, v{12+j}, v{8+j}, s30"); a(f"v_perm_b32 v{17+2*j}, v{12+j}, v{8+j}, s31")
    for j in range(8): a(f"ds_write_b32 v3, v{16+j} offset:{896*j}")
    a("s_mov_b64 exec, s[20:21]")
    a("s_branch L3_join")
    a.label('L3_cw'); a.flush()
    a("s_sub_u32 s22, s18, 4"); a("s_mul_i32 s22, s22, 1792"); a(f"s_add_u32 s23, s22, {L3_C}"); a("s_mov_b32 m0, s23")
    a(f"s_add_u32 s22, s22, {WS_MODB}")
    a("s_mov_b32 exec_hi, 0x00ffffff")
    a("s_cmp_eq_u32 s18, 7"); a("s_cbranch_scc1 L3_cw7")
    a("buffer_load_dwordx4 v5, s[4:7], s22 offen lds")
    a("buffer_load_dwordx4 v5, s[4:7], s22 offen offset:896 lds")
    a("s_branch L3_cw8")
    a.label('L3_cw7'); a.flush()
    a("buffer_load_dwordx4 v5, s[40:43], 0 offen lds")
    a("s_add_u32 s23, s23, 896"); a("s_mov_b32 m0, s23")
    a("buffer_load_dwordx4 v5, s[8:11], 0 offen lds")
    a.label('L3_cw8'); a.flush()
    a("buffer_load_dwordx4 v[120:123], v6, s[36:39], s16 offen")
    a("s_mov_b32 exec_hi, -1")
    a("buffer_load_dwordx2 v[124:125], v7, s[4:7], s19 offen")
    a.label('L3_join'); a.flush()
    X0=[24+e for e in range(8)]; H1=[32+e for e in range(8)]
    for i in range(4): a(f"v_mov_b32 v{8+i}, 0")
    a("s_waitcnt vmcnt(0)")
    unpack8(a, 120, X0)
    ln_norm(a, X0, H1, 124, None, 125, 48)
    a("s_waitcnt lgkmcnt(0)"); a("s_barrier"); stamp(a,3)
    a("s_mov_b32 exec_hi, 0x00ffffff")
    for k in (1,0,6): a(f"ds_read_b128 v[{88+4*k}:{91+4*k}], v5 offset:{L3_C+896*k}")
    a("ds_read_b128 v[8:11], v6")
    for k in (2,4,3,7,5): a(f"ds_read_b128 v[{88+4*k}:{91+4*k}], v5 offset:{L3_C+896*k}")
    a("s_mov_b32 exec_hi, -1")
    T=[64+e for e in range(8)]; T2_=[72+e for e in range(8)]; T3=[80+e for e in range(8)]
    a("s_waitcnt lgkmcnt(6)")
    unpack8(a, 92, T); unpack8(a, 88, T2_); unpack8(a, 112, T3)
    for e in range(0,8,2):
        h0,h1=H1[e],H1[e+1]
        a(f"v_mul_f32 v{h0}, v{h0}, v{T[e]}"); a(f"v_mul_f32 v{h1}, v{h1}, v{T[e+1]}"); rnd2(a,h0,h1,48)
        a(f"v_add_f32 v{h0}, v{h0}, v{T2_[e]}"); a(f"v_add_f32 v{h1}, v{h1}, v{T2_[e+1]}"); rnd2(a,h0,h1,48)
        a(f"v_mul_f32 v{h0}, v{h0}, v{T3[e]}"); a(f"v_mul_f32 v{h1}, v{h1}, v{T3[e+1]}"); rnd2(a,h0,h1,48)
    a("s_waitcnt lgkmcnt(4)")
    X=[[16+e for e in range(8)]]
    unpack8(a, 8, X[0]); unpack8(a, 96, T)
    for e in range(0,8,2):
        y0,y1=X[0][e],X[0][e+1]
        a(f"v_add_f32 v{y0}, v{y0}, v{H1[e]}"); a(f"v_add_f32 v{y1}, v{y1}, v{H1[e+1]}"); rnd2(a,y0,y1,48)
        a(f"v_mul_f32 v{y0}, v{y0}, v{T[e]}"); a(f"v_mul_f32 v{y1}, v{y1}, v{T[e+1]}"); rnd2(a,y0,y1,48)
        a(f"v_add_f32 v{y0}, v{y0}, v{X0[e]}"); a(f"v_add_f32 v{y1}, v{y1}, v{X0[e+1]}")
        a(f"v_cvt_pk_bf16_f32 v{8+e//2}, v{y0}, v{y1}")
        a(f"v_lshlrev_b32 v{y0}, 16, v{8+e//2}"); a(f"v_and_b32 v{y1}, 0xffff0000, v{8+e//2}")
    a("v_add_u32 v6, s16, v6")
    a(f"s_mov_b32 s17, {WS_X1}")
    a("s_mov_b32 exec_hi, 0x00ffffff")
    a("buffer_store_dwordx4 v[8:11], v6, s[4:7], s17 offen")
    a("s_mov_b32 exec_hi, -1")
    mean,sd,ri = ln_stats(a, X, 1, [32], 34, 28)
    H=[[48+e for e in range(8)]]
    ln_norm(a, X[0], H[0], mean[0], sd[0], ri[0], 45)
    stamp(a,4)
    a("s_waitcnt lgkmcnt(0)")
    unpack8(a, 104, T); unpack8(a, 100, T2_); unpack8(a, 116, T3)
    a("v_mov_b32 v32, 0")
    for e in range(0,8,2):
        h0,h1=H[0][e],H[0][e+1]
        a(f"v_mul_f32 v{h0}, v{h0}, v{T[e]}"); a(f"v_mul_f32 v{h1}, v{h1}, v{T[e+1]}"); rnd2(a,h0,h1,45)
        a(f"v_add_f32 v{h0}, v{h0}, v{T2_[e]}"); a(f"v_add_f32 v{h1}, v{h1}, v{T2_[e+1]}")
        a(f"v_cvt_pk_bf16_f32 v{24+e//2}, v{h0}, v{h1}")
        a(f"v_lshlrev_b32 v{h0}, 16, v{24+e//2}"); a(f"v_and_b32 v{h1}, 0xffff0000, v{24+e//2}")
        a(f"v_fmac_f32 v32, v{h0}, v{T3[e]}"); a(f"v_fmac_f32 v32, v{h1}, v{T3[e+1]}")
    a(f"s_mov_b32 s17, {WS_H2}")
    a("s_mov_b32 exec_hi, 0x00ffffff")
    a("buffer_store_dwordx4 v[24:27], v6, s[4:7], s17 offen")
    a("s_mov_b32 exec_hi, -1")
    unpack8(a, 108, T)
    wave_red(a,[32])
    for e in range(0,8,2):
        h0,h1=H[0][e],H[0][e+1]
        a(f"v_mul_f32 v{h0}, v{h0}, v{T[e]}"); a(f"v_mul_f32 v{h1}, v{h1}, v{T[e+1]}"); rnd2(a,h0,h1,45)
        a(f"v_add_f32 v{h0}, v{h0}, v{X[0][e]}"); a(f"v_add_f32 v{h1}, v{h1}, v{X[0][e+1]}")
        a(f"v_cvt_pk_bf16_f32 v{28+e//2}, v{h0}, v{h1}")
    a("v_cvt_pk_bf16_f32 v34, v32, v32")
    a("s_lshl_b32 s16, s2, 3"); a("v_add_u32 v35, s16, v2")
    a("v_and_b32 v36, 0xffff, v34")
    a("v_bfe_i32 v37, v36, 15, 1"); a("v_or_b32 v37, 0x8000, v37"); a("v_xor_b32 v36, v36, v37")
    a("v_sub_u32 v38, 2047, v35"); a("v_lshl_or_b32 v40, v36, 16, v38")
    a("v_lshlrev_b32 v35, 2, v35")
    a("s_mov_b32 exec_hi, 0x00ffffff")
    a("buffer_store_dwordx4 v[28:31], v6, s[12:15], 0 offen")
    a("s_mov_b32 exec_lo, 0"); a("s_mov_b32 exec_hi, 0x80000000")
    a(f"s_mov_b32 s17, {WS_R}")
    a("buffer_store_dword v40, v35, s[4:7], s17 offen")
    prof_end(a,1,5,4)
    a.label('L3_end'); a("s_endpgm")

def topk(a, K0, lds_off, TK):
    K=[K0+i for i in range(8)]
    free=K0+8
    net=[(0,1),(2,3),(4,5),(6,7),(0,2),(1,3),(4,6),(5,7),(1,2),(5,6),(0,4),(3,7),(1,5),(2,6),(1,4),(3,6),(2,4),(3,5),(3,4)]
    for (i,j) in net:
        a(f"v_max_u32 v{free}, v{K[i]}, v{K[j]}"); a(f"v_min_u32 v{K[j]}, v{K[i]}, v{K[j]}")
        K[i],free = free,K[i]
    T=K0+9
    pend=[]
    def fill(n=2):
        for _ in range(n):
            if pend: a(pend.pop(0))
    for rnd in range(8):
        zero=' bound_ctrl:0'
        fill()
        a(f"v_max_u32_dpp v{T}, v{K[0]}, v{K[0]} row_shr:1 row_mask:0xf bank_mask:0xf{zero}")
        for sh in (2,4,8):
            fill(); a(f"v_max_u32_dpp v{T}, v{T}, v{T} row_shr:{sh} row_mask:0xf bank_mask:0xf{zero}")
        fill(); a(f"v_max_u32_dpp v{T}, v{T}, v{T} row_bcast:15 row_mask:0xa bank_mask:0xf")
        fill(); a(f"v_max_u32_dpp v{T}, v{T}, v{T} row_bcast:31 row_mask:0xc bank_mask:0xf")
        assert not pend
        a(f"v_readlane_b32 s{TK+rnd}, v{T}, 63")
        if rnd<7:
            a(f"v_cmp_eq_u32_e64 s[20:21], s{TK+rnd}, v{K[0]}")
            a(f"v_cndmask_b32_e64 v{K[0]}, v{K[0]}, v{K[1]}, s[20:21]")
            for i in range(1,7-rnd): pend.append(f"v_cndmask_b32_e64 v{K[i]}, v{K[i]}, v{K[i+1]}, s[20:21]")
    Q=K0+12
    for i in range(8): a(f"v_mov_b32 v{Q+i}, s{TK+i}")
    a(f"v_lshlrev_b32 v{T}, 5, v2")
    a("v_cmp_eq_u32 vcc, 0, v1"); a("s_and_saveexec_b64 s[20:21], vcc")
    a(f"ds_write_b128 v{T}, v[{Q}:{Q+3}] offset:{lds_off}"); a(f"ds_write_b128 v{T}, v[{Q+4}:{Q+7}] offset:{lds_off+16}")
    a("s_mov_b64 exec, s[20:21]")
    a(f"v_and_b32 v{T}, 31, v1"); a(f"v_lshlrev_b32 v{T}, 2, v{T}")
    a(f"v_mov_b32 v{T+2}, 0")
    a("s_waitcnt lgkmcnt(0)"); a("s_barrier")
    a(f"ds_read_b32 v{T+1}, v{T} offset:{lds_off}")
    A0=K0+20
    for j in range(8): a(f"ds_read_b128 v[{A0+4*j}:{A0+4*j+3}], v{T+2} offset:{lds_off+16*j}")
    a("s_waitcnt lgkmcnt(0)")
    R=[K0,K0+1,K0+2,K0+3]
    for r in R: a(f"v_mov_b32 v{r}, 0")
    for j0 in range(0,32,4):
        for q in range(4): a(f"v_cmp_gt_u32_e64 s[{22+2*q}:{23+2*q}], v{A0+j0+q}, v{T+1}")
        for q in range(4): a(f"v_addc_co_u32_e64 v{R[q]}, s[{22+2*q}:{23+2*q}], 0, v{R[q]}, s[{22+2*q}:{23+2*q}]")
    a(f"v_add_u32 v{R[0]}, v{R[0]}, v{R[1]}"); a(f"v_add_u32 v{R[2]}, v{R[2]}, v{R[3]}"); a(f"v_add_u32 v{R[0]}, v{R[0]}, v{R[2]}")
    for r0 in range(0,8,4):
        for q in range(4): a(f"v_cmp_eq_u32_e64 s[{22+2*q}:{23+2*q}], {r0+q}, v{R[0]}")
        for q in range(4): a(f"s_ff1_i32_b32 s{22+2*q}, s{22+2*q}")
        for q in range(4): a(f"v_readlane_b32 s{TK+r0+q}, v{T+1}, s{22+2*q}")

L4_W=0; L4_WD=14336; L4_RED=L4_WD+7168; L4_TK=L4_RED+4096; L4_ACT=L4_TK+256; L4_LDS=L4_ACT+4*128
def k4(a):
    a.label('k4_kernel'); a.flush(); stamp(a,0)
    a("s_cmp_ge_u32 s2, 224"); a("s_cbranch_scc1 L4_end")
    srd_load(a,4,'ws'); srd_load(a,8,'w_gate'); srd_load(a,12,'w_up'); srd_load(a,48,'w_down')
    a(f"s_mov_b32 s30, {hx(L_HI)}"); a(f"s_mov_b32 s31, {hx(L_LO)}"); a(f"s_mov_b32 s32, {hx(LN2)}")
    a("v_and_b32 v1, 63, v0"); a("v_lshrrev_b32 v2, 6, v0")
    a("s_and_b32 s16, s2, 7"); a("s_mul_i32 s16, s16, 28"); a("s_lshr_b32 s17, s2, 3"); a("s_add_u32 s16, s16, s17")
    a("s_lshl_b32 s17, s16, 4")
    a("v_lshrrev_b32 v3, 1, v1"); a("v_lshl_add_u32 v3, v2, 5, v3"); a("v_mul_u32_u24 v3, 3584, v3"); a("v_add_u32 v3, s17, v3")
    a("v_readfirstlane_b32 s18, v2")
    a("v_lshlrev_b32 v4, 5, v0"); a("v_lshlrev_b32 v10, 4, v0")
    a(f"s_mov_b32 s19, {WS_R}")
    a("s_mul_i32 s33, s16, 7168")
    a("s_waitcnt lgkmcnt(0)"); stamp(a,1)
    a("s_cmp_ge_u32 s18, 4"); a("s_cbranch_scc0 L4_cmp")
    a("s_sub_u32 s18, s18, 4")
    a("v_subrev_u32 v3, 458752, v3")
    a("v_subrev_u32 v10, 4096, v10")
    a("s_lshl_b32 s22, s18, 10")
    a("s_mov_b32 s24, 0x55555555"); a("s_mov_b32 s25, 0x55555555"); a("s_mov_b32 s26, 0xaaaaaaaa"); a("s_mov_b32 s27, 0xaaaaaaaa")
    for it in range(3):
        a(f"s_add_u32 s23, s22, {L4_W+4096*it}"); a("s_mov_b32 m0, s23"); a(f"s_mov_b32 s28, {128*3584*it}")
        a("s_mov_b64 exec, s[24:25]"); a("buffer_load_dwordx4 v3, s[8:11], s28 offen lds")
        a("s_mov_b64 exec, s[26:27]"); a("buffer_load_dwordx4 v3, s[12:15], s28 offen lds")
    a("s_mov_b64 exec, -1")
    a("s_cmp_ge_u32 s18, 2"); a("s_cbranch_scc1 L4_alt")
    a(f"s_add_u32 s23, s22, {L4_W+4096*3}"); a("s_mov_b32 m0, s23"); a(f"s_mov_b32 s28, {128*3584*3}")
    a("s_mov_b64 exec, s[24:25]"); a("buffer_load_dwordx4 v3, s[8:11], s28 offen lds")
    a("s_mov_b64 exec, s[26:27]"); a("buffer_load_dwordx4 v3, s[12:15], s28 offen lds")
    a("s_mov_b64 exec, -1")
    a(f"s_add_u32 s23, s22, {L4_WD}"); a("s_mov_b32 m0, s23")
    a("buffer_load_dwordx4 v10, s[48:51], s33 offen lds")
    a("s_branch L4_dmadone")
    a.label('L4_alt'); a.flush()
    a(f"s_add_u32 s23, s22, {L4_WD}"); a("s_mov_b32 m0, s23")
    a("buffer_load_dwordx4 v10, s[48:51], s33 offen lds")
    a("buffer_load_dwordx4 v10, s[48:51], s33 offen offset:2048 lds")
    a("s_cmp_eq_u32 s18, 2"); a("s_cselect_b32 s28, 2048, 0"); a("s_add_u32 s23, s23, s28"); a("s_mov_b32 m0, s23"); a("s_add_u32 s28, s28, s33")
    a("buffer_load_dwordx4 v10, s[48:51], s28 offen offset:2048 lds")
    a.label('L4_dmadone'); a.flush()
    a("s_barrier")
    a("s_waitcnt vmcnt(0)")
    a("s_barrier")
    a("s_endpgm")
    a.label('L4_cmp'); a.flush()
    a("buffer_load_dwordx4 v[16:19], v4, s[4:7], s19 offen"); a("buffer_load_dwordx4 v[20:23], v4, s[4:7], s19 offen offset:16")
    a("s_waitcnt vmcnt(0)"); stamp(a,2)
    TK=40
    topk(a, 16, L4_TK, TK)
    stamp(a,3)
    a("v_and_b32 v5, 7, v1"); a("v_mov_b32 v6, 0")
    for i in range(8):
        a(f"s_and_b32 s20, s{TK+i}, 0xffff"); a("s_sub_u32 s20, 2047, s20"); a("s_mul_i32 s20, s20, 896")
        a(f"v_cmp_eq_u32_e64 s[34:35], {i}, v5"); a("v_mov_b32 v7, s20"); a("v_cndmask_b32_e64 v6, v6, v7, s[34:35]")
    a("v_lshrrev_b32 v7, 4, v1"); a("v_lshl_add_u32 v6, v7, 4, v6"); a("v_lshl_add_u32 v6, v2, 6, v6")
    a(f"s_mov_b32 s19, {WS_H2}")
    for it in range(4): a(f"buffer_load_dwordx4 v[{16+4*it}:{19+4*it}], v6, s[4:7], s19 offen offset:{256*it}")
    a("s_cmp_lg_u32 s2, 0"); a("s_cbranch_scc1 L4_nokeys")
    for i in range(8): a(f"v_mov_b32 v{64+i}, s{TK+i}")
    a("v_mov_b32 v72, 0"); a(f"s_mov_b32 s19, {WS_IDX}")
    a("v_cmp_eq_u32 vcc, 0, v0"); a("s_and_saveexec_b64 s[20:21], vcc")
    a("buffer_store_dwordx4 v[64:67], v72, s[4:7], s19 offen"); a("buffer_store_dwordx4 v[68:71], v72, s[4:7], s19 offen offset:16")
    a("s_mov_b64 exec, s[20:21]")
    a.label('L4_nokeys'); a.flush(); a.nop(2)
    a("v_and_b32 v8, 3, v1"); a("v_bfe_u32 v9, v1, 2, 2"); a("v_lshl_add_u32 v9, v7, 3, v9")
    a("v_lshlrev_b32 v9, 5, v9"); a("v_lshl_add_u32 v9, v8, 3, v9"); a("v_lshl_add_u32 v9, v2, 10, v9")
    for i in range(4): a(f"v_mov_b32 v{60+i}, 0")
    a("v_and_b32 v11, 1, v7"); a("v_bfe_u32 v12, v1, 2, 2"); a("v_lshl_add_u32 v11, v11, 2, v12"); a("v_mul_u32_u24 v11, 896, v11")
    a("v_lshl_add_u32 v11, v8, 3, v11"); a("v_mul_u32_u24 v12, 224, v2"); a("v_add_u32 v11, v11, v12")
    a("s_barrier")
    for it in range(4):
        a(f"ds_read_b64_tr_b16 v[{32+4*it}:{33+4*it}], v9 offset:{L4_W+4096*it}")
        a(f"ds_read_b64_tr_b16 v[{34+4*it}:{35+4*it}], v9 offset:{L4_W+4096*it+128}")
    a("s_waitcnt vmcnt(0)"); stamp(a,4)
    for it in range(4):
        if it==3:
            a("s_cmp_ge_u32 s18, 2"); a("s_cbranch_scc1 L4_mmdone")
        a(f"s_waitcnt lgkmcnt({6-2*it})" if not PROF else "s_waitcnt lgkmcnt(0)")
        a(f"v_mfma_f32_16x16x32_bf16 v[60:63], v[{16+4*it}:{19+4*it}], v[{32+4*it}:{35+4*it}], v[60:63]")
    a.label('L4_mmdone'); a.flush(); a.nop(8)
    a(f"ds_write_b128 v10, v[60:63] offset:{L4_RED}")
    a("v_lshlrev_b32 v13, 4, v1")
    a("s_waitcnt lgkmcnt(0)"); a("s_barrier"); stamp(a,5)
    for w in range(4): a(f"ds_read_b128 v[{16+4*w}:{19+4*w}], v13 offset:{L4_RED+1024*w}")
    for dt in range(7): a(f"ds_read_b64_tr_b16 v[{40+2*dt}:{41+2*dt}], v11 offset:{L4_WD+32*dt}")
    a("s_waitcnt lgkmcnt(7)")
    for r in range(4):
        a(f"v_add_f32 v{16+r}, v{16+r}, v{20+r}"); a(f"v_add_f32 v{24+r}, v{24+r}, v{28+r}"); a(f"v_add_f32 v{16+r}, v{16+r}, v{24+r}")
    rnd2(a,16,17,32); rnd2(a,18,19,32)
    for r in range(4): a(f"v_mul_f32 v{64+r}, s30, v{16+r}")
    for r in range(4): a(f"v_fma_f32 v{68+r}, v{16+r}, s30, -v{64+r}")
    for r in range(4): a(f"v_fma_f32 v{68+r}, v{16+r}, s31, v{68+r}")
    for r in range(4): a(f"v_exp_f32_e64 v{64+r}, -v{64+r}")
    for r in range(4): a(f"v_mul_f32 v{68+r}, s32, v{68+r}")
    for r in range(4): a(f"v_fma_f32 v{64+r}, v{64+r}, -v{68+r}, v{64+r}")
    for r in range(4): a(f"v_add_f32 v{64+r}, 1.0, v{64+r}")
    for r in range(4): a(f"v_rcp_f32 v{68+r}, v{64+r}")
    for r in range(4): a(f"v_mov_b32_dpp v{24+r}, v{16+r} row_ror:8 row_mask:0xf bank_mask:0xf")
    for r in range(4): div_acc(a, 20+r, 16+r, 64+r, 68+r, 72+r)
    rnd2(a,20,21,32); rnd2(a,22,23,32)
    for r in range(4): a(f"v_mul_f32 v{20+r}, v{20+r}, v{24+r}")
    a("v_cvt_pk_bf16_f32 v28, v20, v21"); a("v_cvt_pk_bf16_f32 v29, v22, v23")
    a("v_and_b32 v5, 15, v1")
    a("v_lshlrev_b32 v14, 6, v7"); a("v_lshl_add_u32 v14, v5, 1, v14"); a("v_lshl_add_u32 v14, v2, 7, v14")
    a("s_mov_b32 exec_lo, 0x00ff00ff"); a("s_mov_b32 exec_hi, 0")
    a(f"ds_write_b16 v14, v28 offset:{L4_ACT}"); a(f"ds_write_b16_d16_hi v14, v28 offset:{L4_ACT+16}")
    a(f"ds_write_b16 v14, v29 offset:{L4_ACT+32}"); a(f"ds_write_b16_d16_hi v14, v29 offset:{L4_ACT+48}")
    if DEBUG_ACT:
        a("v_mul_u32_u24 v6, 14336, v7"); a("v_lshl_add_u32 v6, v5, 1, v6"); a("v_add_u32 v6, s17, v6")
        a(f"s_mov_b32 s19, {WS_ACT}")
        a("buffer_store_short v28, v6, s[4:7], s19 offen"); a("buffer_store_short_d16_hi v28, v6, s[4:7], s19 offen offset:3584")
        a(f"s_add_u32 s19, s19, 7168")
        a("buffer_store_short v29, v6, s[4:7], s19 offen"); a("buffer_store_short_d16_hi v29, v6, s[4:7], s19 offen offset:3584")
    a("s_mov_b64 exec, -1")
    a("v_mov_b32 v30, 0"); a("v_mov_b32 v31, 0")
    a("v_lshlrev_b32 v14, 4, v5"); a("v_lshl_add_u32 v14, v7, 3, v14"); a("v_lshl_add_u32 v14, v2, 7, v14")
    a("s_mov_b32 exec_lo, 0x00ff00ff"); a("s_mov_b32 exec_hi, 0")
    a(f"ds_read_b64 v[30:31], v14 offset:{L4_ACT}")
    a("s_mov_b64 exec, -1")
    a("v_mul_u32_u24 v15, 28, v5"); a("v_mul_u32_u24 v12, 7, v2"); a("v_add_u32 v15, v15, v12"); a("v_mul_u32_u24 v15, 14336, v15")
    a("v_lshl_add_u32 v15, v7, 4, v15")
    a("s_lshl_b32 s19, s16, 6"); a(f"s_add_u32 s19, s19, {WS_P}")
    a("s_waitcnt lgkmcnt(0)")
    for dt in range(7):
        a(f"v_mfma_f32_16x16x16_bf16 v[{64+4*dt}:{67+4*dt}], v[{40+2*dt}:{41+2*dt}], v[30:31], 0")
    a("s_mov_b32 exec_lo, 0x00ff00ff"); a("s_mov_b32 exec_hi, 0x00ff00ff")
    for dt in range(7):
        a(f"buffer_store_dwordx4 v[{64+4*dt}:{67+4*dt}], v15, s[4:7], s19 offen")
        if dt<6: a(f"s_add_u32 s19, s19, 14336")
    prof_end(a,2,6,4)
    a.label('L4_end'); a("s_endpgm")

def k5(a):
    a.label('k5_kernel'); a.flush(); stamp(a,0)
    a("s_cmp_ge_u32 s2, 224"); a("s_cbranch_scc1 L5_end")
    srd_load(a,4,'ws'); srd_load(a,12,'out')
    a(f"s_mov_b32 s30, {hx(L_HI)}"); a(f"s_mov_b32 s31, {hx(L_LO)}"); a(f"s_mov_b32 s32, {hx(LN2)}")
    a("s_mul_hi_u32 s16, s2, 153391690"); a("s_mul_i32 s17, s16, 28"); a("s_sub_u32 s17, s2, s17")
    a("v_lshlrev_b32 v4, 4, v0")
    a("s_mul_i32 s19, s2, 14336"); a(f"s_add_u32 s19, s19, {WS_P}")
    a("s_lshl_b32 s20, s16, 2"); a(f"s_add_u32 s20, s20, {WS_IDX}")
    a("v_mov_b32 v5, 0"); a("v_mov_b32 v12, 0")
    for i in range(4): a(f"v_mov_b32 v{28+i}, 0")
    a("s_waitcnt lgkmcnt(0)"); stamp(a,1)
    a("buffer_load_dword v40, v5, s[4:7], s20 offen")
    for it in range(3):
        a(f"buffer_load_dwordx4 v[{16+4*it}:{19+4*it}], v4, s[4:7], s19 offen"); a("s_add_u32 s19, s19, 4096")
    a("v_cmp_gt_u32 vcc, 128, v0"); a("s_and_saveexec_b64 s[22:23], vcc")
    a("s_cbranch_execz L5_skip")
    a("buffer_load_dwordx4 v[28:31], v4, s[4:7], s19 offen")
    a.label('L5_skip'); a("s_mov_b64 exec, s[22:23]")
    a("v_and_b32 v6, 15, v0"); a("v_lshlrev_b32 v7, 2, v6")
    a("s_lshl_b32 s21, s17, 6"); a(f"s_add_u32 s21, s21, {WS_MOD+5*1792}")
    a("buffer_load_dword v41, v7, s[4:7], s21 offen")
    a("v_readfirstlane_b32 s24, v0")
    a("s_cmp_lg_u32 s24, 0"); a("s_cbranch_scc1 L5_nogather")
    a("s_waitcnt vmcnt(5)"); stamp(a,2)
    a("v_and_b32 v8, 0xffff, v40"); a("v_sub_u32 v8, 2047, v8")
    a("s_lshl_b32 s25, s17, 4"); a("v_add_u32 v9, s25, v6")
    a(f"s_mov_b32 s26, {WS_X1}"); a(f"s_mov_b32 s27, {WS_H2}")
    a("v_mul_u32_u24 v12, 896, v8"); a("v_lshl_add_u32 v12, v9, 1, v12")
    a("buffer_load_ushort v42, v12, s[4:7], s26 offen")
    a("buffer_load_ushort v43, v12, s[4:7], s27 offen")
    a("v_lshrrev_b32 v33, 16, v40"); a("v_bfe_i32 v34, v33, 15, 1")
    a("v_not_b32 v34, v34"); a("v_or_b32 v34, 0x8000, v34"); a("v_xor_b32 v33, v33, v34"); a("v_lshlrev_b32 v33, 16, v33")
    exp_acc(a, 34, 33, 35, 36, 30, 31, 32, neg=True)
    a("v_add_f32 v34, 1.0, v34"); a("v_rcp_f32 v35, v34"); a("v_mov_b32 v37, 1.0")
    div_acc(a, 44, 37, 34, 35, 36)
    rnd1(a,44,35)
    a("s_waitcnt vmcnt(3)")
    a("s_branch L5_sum")
    a.label('L5_nogather'); a.flush()
    a("s_waitcnt vmcnt(1)")
    a.label('L5_sum'); a.flush(); stamp(a,3)
    for i in range(4):
        a(f"v_add_f32 v{16+i}, v{16+i}, v{20+i}"); a(f"v_add_f32 v{24+i}, v{24+i}, v{28+i}"); a(f"v_add_f32 v{16+i}, v{16+i}, v{24+i}")
    for sh in (4,8):
        for i in range(4): a(f"v_add_f32_dpp v{16+i}, v{16+i}, v{16+i} row_ror:{sh} row_mask:0xf bank_mask:0xf")
    a("v_lshrrev_b32 v13, 4, v0"); a("v_lshlrev_b32 v13, 6, v13"); a("v_and_b32 v14, 3, v0"); a("v_lshl_add_u32 v13, v14, 4, v13")
    a("v_and_b32 v14, 12, v0"); a("v_cmp_eq_u32 vcc, 0, v14"); a("s_and_saveexec_b64 s[22:23], vcc")
    a("ds_write_b128 v13, v[16:19]")
    a("s_mov_b64 exec, s[22:23]")
    a("s_waitcnt lgkmcnt(0)"); a("s_barrier"); stamp(a,4)
    a("s_cmp_lg_u32 s24, 0"); a("s_cbranch_scc1 L5_end")
    for p in range(16): a(f"ds_read_b32 v{48+p}, v7 offset:{64*p}")
    a("s_waitcnt lgkmcnt(0) vmcnt(0)")
    for st in (8,4,2,1):
        for p in range(st): a(f"v_add_f32 v{48+p}, v{48+p}, v{48+p+st}")
    rnd1(a,48,35)
    a("v_mul_f32 v48, v48, v44"); rnd1(a,48,35)
    a("v_lshlrev_b32 v42, 16, v42"); a("v_lshlrev_b32 v43, 16, v43")
    a("v_add_f32 v48, v48, v43"); rnd1(a,48,35)
    a("v_mul_f32 v48, v48, v41"); rnd1(a,48,35)
    a("v_add_f32 v48, v48, v42"); a("v_cvt_pk_bf16_f32 v48, v48, v48")
    a("s_mov_b32 exec_lo, 0xffff"); a("s_mov_b32 exec_hi, 0")
    a("buffer_store_short v48, v12, s[12:15], 0 offen")
    prof_end(a,3,5,4)
    a.label('L5_end'); a("s_endpgm")

def desc(name, vgpr, sgpr=102):
    return f""".amdhsa_kernel {name}
  .amdhsa_next_free_vgpr {vgpr}
  .amdhsa_next_free_sgpr {sgpr}
  .amdhsa_accum_offset {(vgpr+3)//4*4}
  .amdhsa_group_segment_fixed_size 0
  .amdhsa_kernarg_size 152
  .amdhsa_user_sgpr_count 2
  .amdhsa_user_sgpr_kernarg_segment_ptr 1
  .amdhsa_system_sgpr_workgroup_id_x 1
  .amdhsa_float_denorm_mode_32 3
.end_amdhsa_kernel
"""
DEBUG_ACT=False
PREFETCH=int(__import__('os').environ.get('PREFETCH','1'))
PRIO=int(__import__('os').environ.get('PRIO','2'))
def main(path):
    hdr = open('adaLN_cond__ssm_conv_s4__moe_arch_mod__prompt.s.ref').read().split('; Override')[0]
    pv = 120 if PROF else 0
    kernels=[('f1_kernel',f1,N_PROD+N_CONV,256,F1_LDS,160),
             ('k3_kernel',k3,256,512,14336,128),
             ('k4_kernel',k4,224,512,L4_LDS,max(96,pv)),
             ('k5_kernel',k5,224,256,1024,max(64,pv))]
    out=hdr
    for n,f,g,b,l,v in kernels: out+=f"; @launch kernel={n} grid=({g},1,1) block=({b},1,1) lds={l}\n"
    out+='.amdgcn_target "amdgcn-amd-amdhsa--gfx950"\n.text\n'
    for n,f,g,b,l,v in kernels:
        a=Asm()
        a.raw(f".globl {n}\n.p2align 8\n.type {n},@function")
        f(a)
        out+=a.text()
    out+='.section .rodata,"a"\n'
    for n,f,g,b,l,v in kernels: out+='.p2align 6\n'+desc(n,v)
    open(path,'w').write(out)

if __name__=='__main__':
    if 'prof' in sys.argv[2:]: PROF=True
    if 'dbg' in sys.argv[2:]: DEBUG_ACT=True
    main(sys.argv[1] if len(sys.argv)>1 else 'adaLN_cond__ssm_conv_s4__moe_arch_mod__prompt.s')
```

```python
import sys, struct, math
sys.path.insert(0,'work')
from asmlib import Asm
from layout import *
import numpy as np

def f2u(x): return struct.unpack('<I', struct.pack('<f', x))[0]
def hx(x): return '0x%08x' % f2u(x)
LOG2E = 1.4426950408889634; L_HI = float(np.float32(LOG2E)); L_LO = float(np.float32(LOG2E-L_HI))
LN2 = 0.6931471805599453
I2P = 0.15915494309189535; I2P_HI = float(np.float32(I2P)); I2P_LO = float(np.float32(I2P-I2P_HI))
WS_SIZE = 268435456
KA = dict(A_u=0,A_re=8,A_im=16,B_re=24,B_im=32,C_re=40,C_im=48,log_dt=56,Dskip=64,B_x=72,w_r=80,w_gate=88,w_up=96,w_down=104,c=112,w_mod=120,out=128,dbg=136,ws=144)
SZ = dict(A_u=2048*896,A_re=448*512,A_im=448*512,B_re=448*512,B_im=448*512,C_re=448*512,C_im=448*512,log_dt=896,Dskip=896,w_r=896,w_gate=448*3584,w_up=448*3584,w_down=1792*896,c=896,w_mod=448*5376,out=2048*896,dbg=256,ws=WS_SIZE)

def srd_load(a, s, name):
    a(f"s_load_dwordx2 s[{s}:{s+1}], s[0:1], {KA[name]}")
    a(f"s_mov_b32 s{s+2}, {SZ[name]}")
    a(f"s_mov_b32 s{s+3}, 0x20000")

def rnd2(a, x0, x1, tmp):
    a(f"v_cvt_pk_bf16_f32 v{tmp}, v{x0}, v{x1}")
    a(f"v_lshlrev_b32 v{x0}, 16, v{tmp}")
    a(f"v_and_b32 v{x1}, 0xffff0000, v{tmp}")
def rnd1(a, x0, tmp):
    a(f"v_cvt_pk_bf16_f32 v{tmp}, v{x0}, v{x0}")
    a(f"v_lshlrev_b32 v{x0}, 16, v{tmp}")

def wave_red(a, regs, op='v_add_f32'):
    zero = ' bound_ctrl:0'
    for sh in (1,2,4,8):
        for r in regs: a(f"{op}_dpp v{r}, v{r}, v{r} row_shr:{sh} row_mask:0xf bank_mask:0xf{zero}")
    for r in regs: a(f"{op}_dpp v{r}, v{r}, v{r} row_bcast:15 row_mask:0xa bank_mask:0xf")
    for r in regs: a(f"{op}_dpp v{r}, v{r}, v{r} row_bcast:31 row_mask:0xc bank_mask:0xf")

def exp_acc(a, dst, x, t, e, sLhi, sLlo, sLn2, neg=False):
    n = '-' if neg else ''
    a(f"v_mul_f32 v{t}, s{sLhi}, v{x}")
    a(f"v_fma_f32 v{e}, v{x}, s{sLhi}, -v{t}")
    a(f"v_fma_f32 v{e}, v{x}, s{sLlo}, v{e}")
    a(f"v_exp_f32 v{dst}, v{t}" if not neg else f"v_exp_f32_e64 v{dst}, -v{t}")
    a(f"v_mul_f32 v{e}, s{sLn2}, v{e}")
    a(f"v_fma_f32 v{dst}, v{dst}, {n}v{e}, v{dst}")

def div_acc(a, q, num, den, r, e):
    a(f"v_mul_f32 v{q}, v{num}, v{r}")
    a(f"v_fma_f32 v{e}, -v{q}, v{den}, v{num}")
    a(f"v_fma_f32 v{q}, v{e}, v{r}, v{q}")

def cmul(a, d, x, y, t):
    a(f"v_pk_mul_f32 v[{t}:{t+1}], v[{x}:{x+1}], v[{y}:{y+1}] op_sel:[0,0] op_sel_hi:[1,0]")
    a(f"v_pk_fma_f32 v[{d}:{d+1}], v[{x}:{x+1}], v[{y}:{y+1}], v[{t}:{t+1}] op_sel:[1,1,0] op_sel_hi:[0,1,1] neg_lo:[1,0,0]")

def pk(a, op, d, x, y, z=None, bcast1=False, neg1=False):
    m=''
    n = 3 if z is not None else 2
    if bcast1: m += ' op_sel:['+','.join(['0']*n)+'] op_sel_hi:['+','.join(['1','0','1'][:n])+']'
    if neg1: m += ' neg_lo:['+','.join(['0','1','0'][:n])+'] neg_hi:['+','.join(['0','1','0'][:n])+']'
    zz = f", v[{z}:{z+1}]" if z is not None else ''
    a(f"v_pk_{op}_f32 v[{d}:{d+1}], v[{x}:{x+1}], v[{y}:{y+1}]{zz}{m}")

def ln_stats(a, X, nrows, sums, tmp, S0):
    P=tmp+6*nrows
    for i in range(nrows):
        x=X[i][0]
        pk(a,'add',P,x,x+2); pk(a,'add',P+2,x+4,x+6); pk(a,'add',P,P,P+2)
        a(f"v_add_f32 v{sums[i]}, v{P}, v{P+1}")
    wave_red(a, sums)
    for i in range(nrows): a(f"v_readlane_b32 s{S0+i}, v{sums[i]}, 63")
    mean=[tmp+6*i for i in range(nrows)]; sd=[tmp+6*i+2 for i in range(nrows)]; ri=[tmp+6*i+4 for i in range(nrows)]
    a(f"v_mov_b32 v{P+4}, {hx(1.0/448)}")
    for i in range(nrows): a(f"v_mul_f32 v{mean[i]}, s{S0+i}, v{P+4}")
    for i in range(nrows): a(f"v_mov_b32 v{sums[i]}, 0")
    a(f"s_mov_b32 exec_hi, 0x00ffffff")
    for i in range(nrows):
        x=X[i][0]; acc=sd[i]
        pk(a,'add',P,x,mean[i],bcast1=True,neg1=True); pk(a,'add',P+2,x+2,mean[i],bcast1=True,neg1=True)
        pk(a,'mul',acc,P,P); pk(a,'fma',acc,P+2,P+2,acc)
        pk(a,'add',P,x+4,mean[i],bcast1=True,neg1=True); pk(a,'add',P+2,x+6,mean[i],bcast1=True,neg1=True)
        pk(a,'fma',acc,P,P,acc); pk(a,'fma',acc,P+2,P+2,acc)
        a(f"v_add_f32 v{sums[i]}, v{acc}, v{acc+1}")
    a(f"s_mov_b32 exec_hi, -1")
    a.nop(1)
    wave_red(a, sums)
    for i in range(nrows): a(f"v_readlane_b32 s{S0+i}, v{sums[i]}, 63")
    for i in range(nrows): a(f"v_mul_f32 v{sd[i]}, s{S0+i}, v{P+4}")
    for i in range(nrows): rnd2(a, mean[i], sd[i], P+(i&3))
    for i in range(nrows): a(f"v_add_f32 v{sd[i]}, {hx(1e-5)}, v{sd[i]}")
    for i in range(nrows): rnd1(a, sd[i], P+(i&3))
    for i in range(nrows): a(f"v_sqrt_f32 v{sd[i]}, v{sd[i]}")
    for i in range(nrows): rnd1(a, sd[i], P+(i&3))
    for i in range(nrows): a(f"v_rcp_f32 v{ri[i]}, v{sd[i]}")
    return mean, sd, ri

def ln_norm(a, x, out, m, s, ri, t0, final_round=True):
    for e in range(0,8,2):
        pk(a,'add',out[e],x[e],m,bcast1=True,neg1=True)
        rnd2(a, out[e], out[e+1], t0)
        pk(a,'mul',out[e],out[e],ri,bcast1=True)
        if final_round: rnd2(a, out[e], out[e+1], t0)

def unpack8(a, src, dst):
    for i in range(4):
        a(f"v_lshlrev_b32 v{dst[2*i]}, 16, v{src+i}")
        a(f"v_and_b32 v{dst[2*i+1]}, 0xffff0000, v{src+i}")

def idx_of_l(a, dst, lf, lu, t, c128, sc):
    a(f"v_cvt_pk_bf16_f32 v{t}, v{lf}, v{lf}")
    a(f"v_and_b32 v{t}, 0xffff, v{t}")
    a(f"v_subrev_u32 v{t}, {(134<<7)-128}, v{t}")
    a(f"v_cmp_lt_u32_e64 s[{sc}:{sc+1}], v{lu}, v{c128}")
    a(f"v_cndmask_b32_e64 v{dst}, v{t}, v{lu}, s[{sc}:{sc+1}]")

PROF = False
def stamp(a, i):
    if PROF:
        a(f"s_memrealtime s[{70+2*i}:{71+2*i}]")
        if i==0: a("s_memtime s[96:97]")
        if i==8: a("s_memtime s[100:101]")
        if i==9: a("s_memtime s[64:65]")
def prof_end(a, kidx, n, srd):
    if not PROF: return
    stamp(a, n); n+=1
    a("s_memtime s[98:99]")
    a("s_mov_b64 exec, -1")
    a("s_waitcnt lgkmcnt(0)")
    a("s_sub_u32 s98, s98, s96")
    for i in range(n): a(f"v_mov_b32 v{100+i}, s{70+2*i}")
    for i in range(n,12): a(f"v_mov_b32 v{100+i}, 0")
    a("v_lshrrev_b32 v99, 6, v0"); a("v_lshlrev_b32 v99, 6, v99")
    a(f"s_lshl_b32 s69, s2, 9"); a(f"s_add_u32 s69, s69, {WS_PROF+kidx*0x80000}")
    a("v_and_b32 v98, 63, v0"); a("v_cmp_eq_u32 vcc, 0, v98"); a("s_and_saveexec_b64 s[66:67], vcc")
    a("s_getreg_b32 s68, hwreg(HW_REG_HW_ID)"); a("v_mov_b32 v112, s68"); a("s_getreg_b32 s68, hwreg(HW_REG_XCC_ID)"); a("v_mov_b32 v113, s68"); a("v_mov_b32 v114, s98"); a("s_sub_u32 s64, s64, s100"); a("v_mov_b32 v115, s64")
    for j in range(4): a(f"buffer_store_dwordx4 v[{100+4*j}:{103+4*j}], v99, s[{srd}:{srd+3}], s69 offen offset:{16*j}")
    a("s_mov_b64 exec, -1")

N_GEMV=84; N_STAT=128; N_CONV=448; N_PROD=N_GEMV+N_STAT
REC=0; TAB=16384; TABN=664
C_P=0
C_KH=32768; C_KL=C_KH+4608; C_H0=C_KH+9216; C_H1=C_H0+4160+12
F1_LDS=C_H1+4160+4
assert C_H1%16==12 and F1_LDS%16==0

N_SIG=128+28; F1_GRID=660
def sig(a, lbl):
    a("v_mov_b32 v1, 0"); a("v_mov_b32 v2, 1"); a("v_mov_b32 v3, 1")
    a("v_cmp_eq_u32 vcc, 0, v0"); a("s_and_saveexec_b64 s[34:35], vcc")
    a(f"s_cbranch_execz {lbl}")
    a("buffer_atomic_add v2, v1, s[36:39], 0 offen sc0 sc1")
    a("s_waitcnt vmcnt(0)")
    a("v_readfirstlane_b32 s33, v2")
    a(f"s_cmp_lg_u32 s33, {N_SIG-1}"); a(f"s_cbranch_scc1 {lbl}")
    a("buffer_store_dword v3, v1, s[36:39], 0 offen offset:128 sc1")

def f1(a):
    a.label('f1_kernel'); stamp(a,0)
    a(f"s_cmp_ge_u32 s2, {F1_GRID}"); a("s_cbranch_scc1 F1_end")
    a("s_cmp_ge_u32 s2, 212"); a("s_cbranch_scc1 F1_conv")
    a("s_setprio 3")
    srd_load(a,4,'A_u'); srd_load(a,12,'ws'); srd_load(a,36,'dbg'); srd_load(a,52,'w_mod'); srd_load(a,56,'c')
    a(f"s_mov_b32 s30, {hx(L_HI)}"); a(f"s_mov_b32 s31, {hx(L_LO)}"); a(f"s_mov_b32 s32, {hx(LN2)}")
    a("s_sub_u32 s50, s2, 128"); a("s_mov_b32 s3, s2")
    a("s_cmp_ge_u32 s2, 128"); a("s_cbranch_scc1 F1_gemv")
    a("v_and_b32 v1, 63, v0"); a("v_lshrrev_b32 v2, 6, v0")
    a("s_mul_i32 s16, s3, 14336")
    a("v_mul_u32_u24 v3, 3584, v2"); a("v_lshl_add_u32 v3, v1, 4, v3")
    for i in range(16): a(f"v_mov_b32 v{96+i}, 0")
    a("s_waitcnt lgkmcnt(0)"); stamp(a,1)
    a("s_mov_b32 exec_hi, 0x00ffffff")
    for i in range(4): a(f"buffer_load_dwordx4 v[{96+4*i}:{99+4*i}], v3, s[4:7], s16 offen offset:{896*i}")
    a("s_mov_b32 exec_hi, -1")
    a("v_and_b32 v4, 15, v1"); a("v_lshlrev_b32 v4, 4, v4"); a("v_lshlrev_b32 v5, 3, v2"); a("v_xor_b32 v4, v4, v5")
    a("v_lshl_add_u32 v4, v1, 8, v4")
    a("v_lshlrev_b32 v7, 5, v2")
    a("s_lshl_b32 s18, s3, 7"); a(f"s_add_u32 s18, s18, {WS_ST}")
    a("v_lshlrev_b32 v5, 4, v0"); a("v_bfe_u32 v6, v0, 4, 4"); a("v_lshlrev_b32 v6, 4, v6"); a("v_xor_b32 v6, v6, v5")
    a(f"s_add_u32 s16, s16, {WS_NB}"); a("s_add_u32 s17, s16, 4096"); a("s_add_u32 s19, s16, 8192"); a("s_add_u32 s20, s16, 12288")
    a("s_waitcnt vmcnt(0)"); stamp(a,2)
    X=[[24+8*i+e for e in range(8)] for i in range(4)]
    for i in range(4): unpack8(a, 96+4*i, X[i])
    mean,sd,ri = ln_stats(a, X, 4, [56,57,58,59], 60, 64)
    for i in range(4): ln_norm(a, X[i], X[i], mean[i], sd[i], ri[i], 92+(i&1), final_round=False)
    a("s_mov_b32 exec_hi, 0x00ffffff")
    for e in range(8):
        q=16+2*(e&3)
        a(f"v_cvt_pk_bf16_f32 v{q}, v{X[0][e]}, v{X[1][e]}"); a(f"v_cvt_pk_bf16_f32 v{q+1}, v{X[2][e]}, v{X[3][e]}")
        a(f"v_xor_b32 v{92+(e&3)}, {32*e}, v4")
        a(f"ds_write_b64 v{92+(e&3)}, v[{q}:{q+1}]")
    a("s_mov_b32 exec_hi, -1")
    for i in range(4):
        a(f"v_mov_b32 v{8+2*i}, v{mean[i]}"); a(f"v_mov_b32 v{9+2*i}, v{ri[i]}")
    a("v_cmp_gt_u32 vcc, 128, v0")
    a("s_waitcnt lgkmcnt(0)"); a("s_barrier"); stamp(a,3)
    for it in range(4): a(f"ds_read_b128 v[{24+4*it}:{27+4*it}], v6 offset:{4096*it}")
    for it,sr in enumerate((16,17,19)):
        a(f"s_waitcnt lgkmcnt({3-it})")
        a(f"buffer_store_dwordx4 v[{24+4*it}:{27+4*it}], v5, s[12:15], s{sr} offen sc1")
    a("s_waitcnt lgkmcnt(0)")
    a("s_and_saveexec_b64 s[34:35], vcc")
    a("s_cbranch_execz F1_st3")
    a("buffer_store_dwordx4 v[36:39], v5, s[12:15], s20 offen sc1")
    a.label('F1_st3'); a("s_mov_b64 exec, s[34:35]")
    a("s_waitcnt vmcnt(0)"); a("s_barrier")
    a("s_mov_b32 exec_lo, 1"); a("s_mov_b32 exec_hi, 0")
    a("buffer_store_dwordx4 v[8:11], v7, s[12:15], s18 offen")
    a("buffer_store_dwordx4 v[12:15], v7, s[12:15], s18 offen offset:16")
    a("s_mov_b64 exec, -1")
    prof_end(a,0,4,12)
    sig(a,'F1_end')
    a("s_endpgm")
    a.label('F1_gemv'); a.flush()
    for i in range(7): a(f"s_mov_b32 s{20+i}, {344064*i}")
    a("v_lshrrev_b32 v1, 2, v0"); a("v_and_b32 v2, 3, v0")
    a("v_mul_u32_u24 v3, 5376, v1"); a("v_lshl_add_u32 v3, v2, 4, v3")
    a("s_lshl_b32 s33, s50, 6"); a("v_add_u32 v3, s33, v3")
    a("v_lshlrev_b32 v4, 1, v1")
    a("s_waitcnt lgkmcnt(0)")
    for i in range(7): a(f"buffer_load_ushort v{8+i}, v4, s[56:59], 0 offen offset:{128*i}")
    for i in range(7): a(f"buffer_load_dwordx4 v[{16+4*i}:{19+4*i}], v3, s[52:55], s{20+i} offen")
    a("s_waitcnt vmcnt(7)")
    R7=range(7)
    for i in R7: a(f"v_lshlrev_b32 v{8+i}, 16, v{8+i}")
    for i in R7: a(f"v_mul_f32 v{68+i}, s30, v{8+i}")
    for i in R7: a(f"v_fma_f32 v{76+i}, v{8+i}, s30, -v{68+i}")
    for i in R7: a(f"v_fma_f32 v{76+i}, v{8+i}, s31, v{76+i}")
    for i in R7: a(f"v_exp_f32_e64 v{68+i}, -v{68+i}")
    for i in R7: a(f"v_mul_f32 v{76+i}, s32, v{76+i}")
    for i in R7: a(f"v_fma_f32 v{68+i}, v{68+i}, -v{76+i}, v{68+i}")
    for i in R7: a(f"v_add_f32 v{68+i}, 1.0, v{68+i}")
    for i in R7: a(f"v_rcp_f32 v{76+i}, v{68+i}")
    for i in R7: a(f"v_mul_f32 v{84+i}, v{8+i}, v{76+i}")
    for i in R7: a(f"v_fma_f32 v{68+i}, -v{84+i}, v{68+i}, v{8+i}")
    for i in R7: a(f"v_fma_f32 v{84+i}, v{68+i}, v{76+i}, v{84+i}")
    for i in R7: a(f"v_cvt_pk_bf16_f32 v{84+i}, v{84+i}, v{84+i}")
    for i in R7: a(f"v_lshlrev_b32 v{68+2*i}, 16, v{84+i}")
    for e in range(8): a(f"v_mov_b32 v{48+e}, 0")
    for i in R7:
        a(f"s_waitcnt vmcnt({6-i})")
        for j in range(4):
            t=56+2*(j&1)
            a(f"v_lshlrev_b32 v{t}, 16, v{16+4*i+j}"); a(f"v_and_b32 v{t+1}, 0xffff0000, v{16+4*i+j}")
            pk(a,'fma',48+2*j,t,68+2*i,48+2*j,bcast1=True)
    for sh in (4,8):
        for e in range(8): a(f"v_add_f32_dpp v{48+e}, v{48+e}, v{48+e} row_ror:{sh} row_mask:0xf bank_mask:0xf")
    a("v_lshrrev_b32 v5, 4, v0"); a("v_lshlrev_b32 v5, 7, v5"); a("v_lshl_add_u32 v5, v2, 5, v5")
    a("v_and_b32 v6, 12, v0"); a("v_cmp_eq_u32 vcc, 0, v6")
    a("s_and_saveexec_b64 s[34:35], vcc")
    a("ds_write_b128 v5, v[48:51] offset:16384"); a("ds_write_b128 v5, v[52:55] offset:16400")
    a("s_mov_b64 exec, s[34:35]")
    a("s_waitcnt lgkmcnt(0)"); a("s_barrier")
    a("v_lshlrev_b32 v5, 2, v0")
    a("v_cmp_gt_u32 vcc, 32, v0"); a("s_and_saveexec_b64 s[34:35], vcc")
    a("s_cbranch_execz F1_end")
    for p in range(16): a(f"ds_read_b32 v{16+p}, v5 offset:{16384+128*p}")
    a("s_waitcnt lgkmcnt(0)")
    for st in (8,4,2,1):
        for p in range(st): a(f"v_add_f32 v{16+p}, v{16+p}, v{16+p+st}")
    rnd1(a, 16, 17)
    a("s_lshl_b32 s33, s50, 7"); a("v_add_u32 v5, s33, v5")
    a(f"buffer_store_dword v16, v5, s[12:15], 0 offen offset:{WS_MOD} sc1")
    a("s_sub_u32 s33, s50, 14"); a("s_cmp_lt_u32 s33, 14"); a("s_cselect_b32 s28, 1.0, 0")
    a("s_sub_u32 s33, s50, 56"); a("s_cmp_lt_u32 s33, 14"); a("s_cselect_b32 s28, 1.0, s28")
    a("v_add_f32 v18, s28, v16"); a("v_cvt_pk_bf16_f32 v18, v18, v18")
    a("v_lshrrev_b32 v6, 1, v5"); a(f"s_mov_b32 s33, {WS_MODB}")
    a("s_waitcnt vmcnt(0)")
    a("buffer_store_short v18, v6, s[12:15], s33 offen")
    a("s_cmp_ge_u32 s50, 28"); a("s_cbranch_scc1 F1_end")
    sig(a,'F1_end')
    a("s_endpgm")
    a.label('F1_conv'); a.flush()
    conv_role(a)
    a.label('F1_end'); a("s_endpgm")

def conv_mfma(a,AA,BA,ACC2,BTS,NOLDS=False,NOMF=False):
    bases=[BA,BA+1,BA+2,BA+3]
    ops=[]
    def issue(tag,text):
        if (not NOLDS) or (NOLDS is not True and NOLDS!=1 and tag[0] in NOLDS): a(text)
        ops.append(tag)
    pendq=[]
    real_issue=issue
    def defer(tag,text): pendq.append((tag,text))
    def drain(n=1):
        for _ in range(n):
            if pendq: real_issue(*pendq.pop(0))
    def wait(tags):
        idx=max(i for i,t in enumerate(ops) if t in tags)
        a(f"s_waitcnt lgkmcnt({min(len(ops)-1-idx,15)})")
    def bload(rr,m):
        k=7-m; bs=bases[k>>1]; off=(k&1)*128+16*rr; BT=BTS[rr]
        issue(('B',rr,m), f"ds_read2_b32 v[{BT+4*m}:{BT+4*m+1}], v{bs} offset0:{off} offset1:{off+1}")
        issue(('B',rr,m), f"ds_read2_b32 v[{BT+4*m+2}:{BT+4*m+3}], v{bs} offset0:{off+2} offset1:{off+3}")
    groups=[(rr,k) for rr in range(2) for k in range(4)]
    ATG=[28,44]
    def aload(gi):
        rr,k=groups[gi]; b=ATG[gi&1]
        for j,s_ in enumerate((k,7-k)):
            off=64*(8*s_+rr)
            issue(('A',gi,2*j), f"ds_read_b128 v[{b+8*j}:{b+8*j+3}], v{AA} offset:{C_KH+off}")
            issue(('A',gi,2*j+1), f"ds_read_b128 v[{b+8*j+4}:{b+8*j+7}], v{AA} offset:{C_KL+off}")
    issue(('A',0,0), f"ds_read_b128 v[{ATG[0]}:{ATG[0]+3}], v{AA} offset:{C_KH}")
    for m in range(8): bload(0,m)
    issue(('A',0,1), f"ds_read_b128 v[{ATG[0]+4}:{ATG[0]+7}], v{AA} offset:{C_KL}")
    issue(('A',0,2), f"ds_read_b128 v[{ATG[0]+8}:{ATG[0]+11}], v{AA} offset:{C_KH+64*56}")
    issue(('A',0,3), f"ds_read_b128 v[{ATG[0]+12}:{ATG[0]+15}], v{AA} offset:{C_KL+64*56}")
    last=[-99]*8; inited=[False]*8; slot=0; waited=set()
    remaining={c: sum(1 for (rr,k) in groups for s_ in (k,7-k) if c>=s_)*2 for c in range(8)}
    done_at={}; written=set()
    for gi,(rr,k) in enumerate(groups):
        drain(99)
        issue=defer
        if gi+1<len(groups): aload(gi+1)
        if rr==0:
            for m in range(2*k,2*k+2): bload(1,m)
        for c in list(done_at):
            if c not in written and slot-done_at[c]>=0:
                issue(('W',c), f"ds_write_b128 v16, v[{ACC2+4*c}:{ACC2+4*c+3}] offset:{C_P+1024*c}"); written.add(c)
        b=ATG[gi&1]; BT=BTS[rr]
        todo=[(c,j,hl) for j,s_ in enumerate((k,7-k)) for hl in range(2) for c in range(s_,8)]
        while todo:
            if gi==0 and slot<8: pick=(slot,0,0)
            else:
                cnt={}
                for (c,j,hl) in todo: cnt[c]=cnt.get(c,0)+1
                pick=max(todo, key=lambda t:(min(slot-last[t[0]],3), cnt[t[0]], slot-last[t[0]], -t[1], -t[2]))
            todo.remove(pick); c,j,hl=pick
            s_=(k,7-k)[j]
            need={('A',gi,2*j+hl),('B',rr,c-s_)}-waited
            if need: wait(need);
            if need:
                idx=max(i for i,t in enumerate(ops) if t in need)
                waited|=set(ops[:idx+1])
            bt=BT+4*(c-s_); acc=ACC2+4*c; ar=b+8*j+4*hl
            cin = f"v[{acc}:{acc+3}]" if inited[c] else "0"
            if not NOMF: a(f"v_mfma_f32_16x16x32_bf16 v[{acc}:{acc+3}], v[{bt}:{bt+3}], v[{ar}:{ar+3}], {cin}")
            inited[c]=True; last[c]=slot; slot+=1
            if slot%2==0: drain(1)
            remaining[c]-=1
            if remaining[c]==0: done_at[c]=slot
    drain(99)
    return written,done_at

def conv_role(a):
    import kloop
    names=['A_re','A_im','B_re','B_im','C_re','C_im']
    for i,nm in enumerate(names): srd_load(a, 4+4*i, nm)
    srd_load(a,28,'log_dt'); srd_load(a,32,'ws'); srd_load(a,60,'dbg')
    a("s_sub_u32 s38, s2, 212")
    a("s_setprio 1")
    a("s_cmp_lt_u32 s38, 256"); a("s_cbranch_scc1 F1_p1"); a("s_setprio 2")
    a.label('F1_p1')
    a("s_and_b32 s3, s38, 7"); a("s_mul_i32 s3, s3, 56"); a("s_lshr_b32 s39, s38, 3"); a("s_add_u32 s3, s3, s39")
    a(f"s_mov_b32 s40, {hx(L_HI)}"); a(f"s_mov_b32 s41, {hx(L_LO)}"); a(f"s_mov_b32 s42, {hx(LN2)}")
    a(f"s_mov_b32 s43, {hx(I2P_HI)}"); a(f"s_mov_b32 s44, {hx(I2P_LO)}")
    a("s_lshl_b32 s36, s3, 9"); a("s_lshl_b32 s37, s3, 1")
    a("v_lshlrev_b32 v1, 1, v0"); a("v_mov_b32 v2, s37")
    a("s_waitcnt lgkmcnt(0)"); stamp(a,1)
    a("buffer_load_ushort v3, v2, s[28:31], 0 offen")
    for i in range(6): a(f"buffer_load_ushort v{4+i}, v1, s[{4+4*i}:{7+4*i}], s36 offen")
    a("v_and_b32 v10, 63, v0"); a("v_and_b32 v11, 15, v0"); a("v_bfe_u32 v12, v0, 4, 2"); a("v_lshrrev_b32 v13, 6, v0")
    a("v_mov_b32 v14, v11")
    a("v_lshlrev_b32 v15, 1, v11"); a("v_add_u32 v15, 240, v15")
    a("v_cmp_le_u32_e64 s[46:47], 8, v11"); a("v_cmp_le_u32_e64 s[48:49], 12, v11"); a("v_cmp_le_u32_e64 s[50:51], 14, v11")
    a("v_lshlrev_b32 v20, 2, v11"); a("v_add_u32 v21, 464, v20"); a("v_add_u32 v20, 712, v20")
    a("v_cndmask_b32_e64 v14, v14, v15, s[46:47]"); a("v_cndmask_b32_e64 v14, v14, v21, s[48:49]"); a("v_cndmask_b32_e64 v14, v14, v20, s[50:51]")
    a("v_cvt_f32_u32 v16, v14"); a("v_sub_f32 v17, 0, v16")
    a("v_lshlrev_b32 v15, 3, v11"); a("v_cvt_f32_u32 v18, v15"); a("v_mov_b32 v19, v18")
    ACC=112; SA=154
    a(f"v_mul_u32_u24 v2, {TABN*4}, v13")
    a("v_cmp_le_u32_e64 s[46:47], 2, v12"); a("v_cmp_eq_u32_e64 s[48:49], 3, v12")
    a("v_add_u32 v20, -1, v12"); a("v_max_i32 v20, 0, v20"); a("v_sub_u32 v21, 3, v20")
    a("v_lshlrev_b32 v22, v21, v11")
    a("v_lshlrev_b32 v23, 2, v12"); a("v_lshlrev_b32 v24, 7, v12"); a("v_cndmask_b32_e64 v23, v23, v24, s[46:47]")
    a("v_add_u32 v22, v22, v23"); a(f"v_lshl_add_u32 v{SA}, v22, 2, v2")
    a(f"v_add_u32 v24, 248, v{SA}"); a(f"v_cndmask_b32_e64 v{SA+1}, v{SA}, v24, s[48:49]")
    a("v_mov_b32 v25, 64"); a("v_lshlrev_b32 v24, v21, v25")
    a(f"v_add_u32 v{SA+2}, v{SA}, v24"); a(f"v_add_u32 v{SA+3}, v{SA+1}, v24")
    a("v_lshl_add_u32 v22, v12, 5, v11"); a(f"v_lshl_add_u32 v{SA+4}, v22, 2, v2")
    scat=[]
    for C in range(2):
        for r in range(4): scat.append((SA+2*C+(r>>1), 4*r, ACC+4*C+r))
        scat.append((SA+4, 2048+64*C, ACC+8+4*C))
    a("v_and_b32 v24, 3, v11")
    for e in range(4): a(f"v_cmp_eq_u32_e64 s[{46+2*e}:{47+2*e}], {e}, v24")
    for e in range(4): a(f"v_cndmask_b32_e64 v{20+e}, 0, -1, s[{46+2*e}:{47+2*e}]")
    a("v_lshlrev_b32 v159, 6, v13"); a("v_lshl_add_u32 v159, v12, 2, v159")
    a("v_add_u32 v15, v159, v24"); a("v_lshlrev_b32 v15, 5, v15"); a("v_lshrrev_b32 v24, 2, v11"); a("v_lshl_add_u32 v15, v24, 3, v15")
    a(f"v_add_u32 v15, {kloop.T2}, v15")
    a("v_lshlrev_b32 v159, 5, v159")
    for i in range(16): a(f"v_mov_b32 v{ACC+i}, 0")
    a("s_waitcnt vmcnt(6)")
    a("v_lshlrev_b32 v3, 16, v3")
    exp_acc(a, 40, 3, 41, 42, 40, 41, 42)
    rnd1(a, 40, 41)
    a("s_waitcnt vmcnt(0)"); stamp(a,2)
    for i in range(6): a(f"v_lshlrev_b32 v{4+i}, 16, v{4+i}")
    a("v_mul_f32 v4, v40, v4"); a("v_mul_f32 v5, v40, v5"); a("v_mul_f32 v6, v40, v6"); a("v_mul_f32 v7, v40, v7")
    a("v_mul_f32 v24, s40, v4")
    a("v_mul_f32 v25, s43, v5"); a("v_and_b32 v25, 0xffffff00, v25")
    a("v_fma_f32 v26, v5, s43, -v25"); a("v_fma_f32 v26, v5, s44, v26")
    cmul(a, 28, 8, 6, 36)
    a("v_sub_f32 v29, 0, v29")
    ds=[(30,128,+1,48),(32,1024,-1,56),(34,256,-1,64)]
    for (dst,l,sg,T) in ds: a(f"v_mov_b32 v{T}, {hx(float(l))}"); a(f"v_mov_b32 v{T+1}, {hx(float(sg*l))}")
    for (dst,l,sg,T) in ds: a(f"v_pk_mul_f32 v[{T+4}:{T+5}], v[24:25], v[{T}:{T+1}]")
    for (dst,l,sg,T) in ds: a(f"v_exp_f32 v{T+2}, v{T+4}")
    for (dst,l,sg,T) in ds: a(f"v_fract_f32 v{T+5}, v{T+5}")
    for (dst,l,sg,T) in ds: a(f"v_fma_f32 v{T+5}, v26, v{T+1}, v{T+5}")
    for (dst,l,sg,T) in ds: a(f"v_cos_f32 v{T+4}, v{T+5}"); a(f"v_sin_f32 v{T+5}, v{T+5}")
    for (dst,l,sg,T) in ds: a(f"v_pk_mul_f32 v[{dst}:{dst+1}], v[{T+4}:{T+5}], v[{T+2}:{T+3}] op_sel:[0,0] op_sel_hi:[1,0]")
    a("v_lshlrev_b32 v1, 5, v0")
    a(f"ds_write_b128 v1, v[24:27] offset:{REC}"); a(f"ds_write_b128 v1, v[28:31] offset:{REC+16}")
    cmul(a, 72, 32, 28, 36); cmul(a, 74, 72, 34, 36); cmul(a, 76, 74, 34, 36); cmul(a, 78, 76, 34, 36)
    a("v_mul_f32 v44, v78, v34"); a("v_fma_f32 v44, -v79, v35, v44")
    for sidx in range(4):
        x=72+2*sidx; h=80+2*sidx; T=48+2*sidx
        a(f"v_cvt_pk_bf16_f32 v{h}, v{x}, v{x+1}")
        a(f"v_lshlrev_b32 v{T}, 16, v{h}"); a(f"v_and_b32 v{T+1}, 0xffff0000, v{h}")
        a(f"v_pk_add_f32 v[{T}:{T+1}], v[{x}:{x+1}], v[{T}:{T+1}] neg_lo:[0,1] neg_hi:[0,1]")
        a(f"v_cvt_pk_bf16_f32 v{h+1}, v{T}, v{T+1}")
    a(f"ds_write_b128 v1, v[80:83] offset:{kloop.T2}"); a(f"ds_write_b128 v1, v[84:87] offset:{kloop.T2+16}")
    wave_red(a, [44])
    a("v_cmp_eq_u32 vcc, 63, v10"); a("s_and_saveexec_b64 s[46:47], vcc")
    a(f"ds_write_b32 v2, v44 offset:{TAB+640*4}")
    a("s_mov_b64 exec, s[46:47]")
    a("v_mov_b32 v1, v159")
    a("v_mov_b32 v3, 128")
    stamp(a,3)
    a("s_waitcnt lgkmcnt(0)")
    kloop.PLACE=1
    kloop.v2(a, 4, standalone=False, hook=lambda: a("buffer_load_dword v4, v3, s[60:63], 0 offen sc1"))
    stamp(a,4)
    a("s_setprio 0")
    a("v_lshrrev_b32 v5, 1, v0"); a("v_mul_u32_u24 v5, 14336, v5"); a("v_and_b32 v6, 1, v0"); a("v_lshl_add_u32 v5, v6, 4, v5")
    a("s_lshl_b32 s12, s3, 5"); a(f"s_add_u32 s12, s12, {WS_NB}")
    a("s_lshl_b32 s14, s3, 2"); a("v_mov_b32 v7, s14")
    a("v_lshlrev_b32 v6, 4, v0")
    a("v_readfirstlane_b32 s48, v13")
    def nloads():
        a("buffer_load_dwordx4 v[80:83], v5, s[32:35], s12 offen sc1")
        a(f"buffer_load_dword v9, v7, s[32:35], 0 offen offset:{WS_MOD} sc1")
        a(f"buffer_load_dword v14, v7, s[32:35], 0 offen offset:{WS_MOD+1792} sc1")
    a("s_waitcnt vmcnt(0)")
    a("v_readfirstlane_b32 s13, v4")
    a("s_cmp_eq_u32 s13, 0"); a("s_cbranch_scc1 F1_notyet")
    nloads()
    a.label('F1_notyet'); a.flush(); stamp(a,5)
    for i in range(4): a(f"v_mov_b32 v{140+i}, 0")
    for C in range(2):
        b=ACC+8+4*C
        a(f"v_add_f32 v{b}, v{b}, v{b+1}"); a(f"v_add_f32 v{b+2}, v{b+2}, v{b+3}"); a(f"v_add_f32 v{b}, v{b}, v{b+2}")
    for (sa,off,src) in scat: a(f"ds_write_b32 v{sa}, v{src} offset:{TAB+off}")
    a("v_cmp_gt_u32 vcc, 30, v0"); a("s_and_saveexec_b64 s[46:47], vcc")
    a(f"ds_write_b128 v6, v[140:143] offset:{C_KH}"); a(f"ds_write_b128 v6, v[140:143] offset:{C_KL}")
    a("v_cmp_gt_u32 vcc, 2, v0"); a("s_and_b64 exec, exec, vcc")
    a(f"ds_write_b128 v6, v[140:143] offset:{C_H0+4096}"); a(f"ds_write_b128 v6, v[140:143] offset:{C_H1+4100}")
    a("s_mov_b64 exec, s[46:47]")
    AA=20; BA=21
    a(f"v_lshlrev_b32 v{AA}, 5, v11"); a(f"v_lshl_add_u32 v{AA}, v12, 4, v{AA}"); a(f"v_lshl_add_u32 v{AA}, v13, 7, v{AA}")
    a(f"v_and_b32 v{BA}, 14, v11"); a(f"v_lshlrev_b32 v{BA}, 1, v{BA}")
    a("v_lshlrev_b32 v16, 4, v12"); a(f"v_sub_u32 v{BA}, v16, v{BA}")
    a("v_and_b32 v16, 1, v11"); a(f"v_mul_u32_u24 v16, {C_H1-C_H0}, v16")
    a(f"v_add_u32 v{BA}, v{BA}, v16"); a(f"v_add_u32 v{BA}, {C_H0+3616-512*7}, v{BA}"); a(f"v_lshl_add_u32 v{BA}, v13, 7, v{BA}")
    for q in range(1,4): a(f"v_add_u32 v{BA+q}, {1024*q}, v{BA}")
    a("v_sub_u32 v8, 4080, v6")
    a("s_waitcnt lgkmcnt(0)"); a("s_barrier"); stamp(a,6)
    W4=TABN; EB=28
    def rd2(dst, j, w): a(f"ds_read2_b32 v[{dst}:{dst+1}], v{EB+w} offset0:{j} offset1:{j+1}")
    a("s_cmp_eq_u32 s48, 0"); a("s_cbranch_scc1 F1_expA")
    a("s_cmp_eq_u32 s48, 1"); a("s_cbranch_scc1 F1_expB")
    a(f"v_lshlrev_b32 v{EB}, 2, v0"); a(f"v_add_u32 v{EB}, {TAB+384*4}, v{EB}")
    for w in range(1,4): a(f"v_add_u32 v{EB+w}, {W4*4*w}, v{EB}")
    for w in range(4): rd2(32+2*w, 0, w)
    a("v_and_b32 v16, 1, v0"); a("v_cmp_eq_u32 vcc, 1, v16")
    a("s_waitcnt lgkmcnt(0)")
    for j in range(2):
        a(f"v_add_f32 v{32+j}, v{32+j}, v{34+j}"); a(f"v_add_f32 v{36+j}, v{36+j}, v{38+j}")
    a("v_add_f32 v64, v32, v36"); a("v_add_f32 v69, v33, v37")
    a("v_cndmask_b32_e64 v68, v64, v69, vcc")
    a("v_mov_b32 v65, v64"); a("v_mov_b32 v66, v64"); a("v_mov_b32 v67, v64"); a("v_mov_b32 v70, v69"); a("v_mov_b32 v71, v69")
    a("s_branch F1_expD")
    a.label('F1_expB'); a.flush()
    a(f"v_lshlrev_b32 v{EB}, 3, v0"); a(f"v_add_u32 v{EB}, {TAB+256*4}, v{EB}")
    for w in range(1,4): a(f"v_add_u32 v{EB+w}, {W4*4*w}, v{EB}")
    for w in range(4): rd2(32+4*w, 0, w); rd2(34+4*w, 2, w)
    a("s_waitcnt lgkmcnt(0)")
    for j in range(3):
        a(f"v_add_f32 v{32+j}, v{32+j}, v{36+j}"); a(f"v_add_f32 v{40+j}, v{40+j}, v{44+j}")
    a("v_add_f32 v64, v32, v40"); a("v_add_f32 v67, v33, v41"); a("v_add_f32 v70, v34, v42")
    a("v_mov_b32 v65, v64"); a("v_mov_b32 v66, v64"); a("v_mov_b32 v68, v67"); a("v_mov_b32 v69, v67"); a("v_mov_b32 v71, v70")
    a("s_branch F1_expD")
    a.label('F1_expA'); a.flush()
    a(f"v_lshlrev_b32 v{EB}, 5, v0"); a("v_lshlrev_b32 v16, 4, v0"); a("v_add_u32 v16, 512, v16")
    a("v_cmp_gt_u32 vcc, 32, v0"); a(f"v_cndmask_b32_e64 v{EB}, v16, v{EB}, vcc"); a(f"v_add_u32 v{EB}, {TAB}, v{EB}")
    for w in range(1,4): a(f"v_add_u32 v{EB+w}, {W4*4*w}, v{EB}")
    for w in range(4):
        for j in range(0,8,2): rd2(32+8*w+j, j, w)
    a("s_waitcnt lgkmcnt(0)")
    for j in range(8):
        a(f"v_add_f32 v{32+j}, v{32+j}, v{40+j}"); a(f"v_add_f32 v{48+j}, v{48+j}, v{56+j}"); a(f"v_add_f32 v{32+j}, v{32+j}, v{48+j}")
    t1=[0,0,1,2,2,2,3,4]
    for e in range(8): a(f"v_cndmask_b32_e64 v{64+e}, v{32+t1[e]}, v{32+e}, vcc")
    a.label('F1_expD'); a.flush()
    for j in range(4):
        x=64+2*j
        a(f"v_cvt_pk_bf16_f32 v{72+j}, v{x}, v{x+1}")
        a(f"v_lshlrev_b32 v{32+2*j}, 16, v{72+j}"); a(f"v_and_b32 v{33+2*j}, 0xffff0000, v{72+j}")
        a(f"v_pk_add_f32 v[{32+2*j}:{33+2*j}], v[{x}:{x+1}], v[{32+2*j}:{33+2*j}] neg_lo:[0,1] neg_hi:[0,1]")
        a(f"v_cvt_pk_bf16_f32 v{76+j}, v{32+2*j}, v{33+2*j}")
    a(f"ds_write_b128 v6, v[72:75] offset:{C_KH+480}"); a(f"ds_write_b128 v6, v[76:79] offset:{C_KL+480}")
    a("s_cmp_lg_u32 s13, 0"); a("s_cbranch_scc1 F1_ready")
    a("s_setprio 0")
    a("s_mov_b32 s45, 0")
    a.label('F1_poll')
    a("buffer_load_dword v4, v3, s[60:63], 0 offen sc1")
    a("s_waitcnt vmcnt(0)")
    a("v_readfirstlane_b32 s13, v4")
    a("s_cmp_lg_u32 s13, 0"); a("s_cbranch_scc1 F1_got")
    a("s_add_u32 s45, s45, 1"); a("s_cmp_ge_u32 s45, 0x40000"); a("s_cbranch_scc1 F1_got")
    a("s_sleep 2")
    a("s_branch F1_poll")
    a.label('F1_got'); a.flush()
    a("s_setprio 2")
    nloads()
    a.label('F1_ready'); a.flush()
    a("s_waitcnt vmcnt(0)"); stamp(a,7)
    a("v_add_f32 v14, 1.0, v14"); rnd1(a, 14, 15)
    unpack8(a, 80, [48+e for e in range(8)])
    for e in range(0,8,2):
        h0,h1=48+e,49+e
        a(f"v_mul_f32 v{h0}, v{h0}, v14"); a(f"v_mul_f32 v{h1}, v{h1}, v14"); rnd2(a,h0,h1,15)
        a(f"v_add_f32 v{h0}, v{h0}, v9"); a(f"v_add_f32 v{h1}, v{h1}, v9")
    for j in range(4): a(f"v_cvt_pk_bf16_f32 v{60+j}, v{48+7-2*j}, v{48+6-2*j}")
    for j in range(1,4): a(f"v_cvt_pk_bf16_f32 v{64+j}, v{48+8-2*j}, v{48+7-2*j}")
    a(f"ds_write_b128 v8, v[60:63] offset:{C_H1+4}")
    a(f"ds_write_b16 v8, v60 offset:{C_H0+2}")
    a(f"ds_write_b32 v8, v65 offset:{C_H0+4}")
    a(f"ds_write_b64 v8, v[66:67] offset:{C_H0+8}")
    a(f"ds_write_b16_d16_hi v8, v63 offset:{C_H0+16}")
    a("v_bfe_u32 v16, v11, 1, 2"); a("v_xor_b32 v16, v16, v12"); a("v_lshlrev_b32 v16, 4, v16")
    a("v_lshl_add_u32 v16, v11, 6, v16"); a("v_lshl_add_u32 v16, v13, 13, v16")
    a("v_and_b32 v4, 1, v0"); a("v_lshlrev_b32 v4, 1, v4"); a("v_bfe_u32 v17, v0, 2, 2")
    a("v_xor_b32 v18, v4, v17"); a("v_xor_b32 v19, 1, v18")
    a("v_lshrrev_b32 v17, 1, v0"); a("v_lshlrev_b32 v17, 6, v17")
    a("v_lshl_add_u32 v18, v18, 4, v17"); a("v_lshl_add_u32 v19, v19, 4, v17")
    a("v_mul_u32_u24 v5, 7168, v0")
    a("s_lshl_b32 s12, s3, 4"); a(f"s_add_u32 s12, s12, {WS_YB}")
    ACC2=64; BTS=[96,128]; AT=[28,36,44]
    a("s_waitcnt lgkmcnt(0)"); a("s_barrier"); stamp(a,8)
    a("s_setprio 0")
    if PROF: a("s_waitcnt lgkmcnt(0)")
    written,done_at=conv_mfma(a,AA,BA,ACC2,BTS)
    stamp(a,9)
    a("s_setprio 2")
    for c in sorted(set(range(8))-written, key=lambda c: done_at[c]):
        a(f"ds_write_b128 v16, v[{ACC2+4*c}:{ACC2+4*c+3}] offset:{C_P+1024*c}")
    a("s_waitcnt lgkmcnt(0)"); a("s_barrier"); stamp(a,10)
    for w in range(4):
        a(f"ds_read_b128 v[{64+8*w}:{67+8*w}], v18 offset:{C_P+8192*w}")
        a(f"ds_read_b128 v[{68+8*w}:{71+8*w}], v19 offset:{C_P+8192*w}")
    a("s_waitcnt lgkmcnt(0)")
    for e in range(8):
        a(f"v_add_f32 v{64+e}, v{64+e}, v{72+e}"); a(f"v_add_f32 v{80+e}, v{80+e}, v{88+e}"); a(f"v_add_f32 v{64+e}, v{64+e}, v{80+e}")
    for e in range(0,8,2): a(f"v_cvt_pk_bf16_f32 v{20+e//2}, v{64+e}, v{65+e}")
    a("buffer_store_dwordx4 v[20:23], v5, s[32:35], s12 offen")
    prof_end(a,0,11,32)

L3_C=7168
def k3(a):
    a.label('k3_kernel'); a.flush(); stamp(a,0)
    a("s_cmp_ge_u32 s2, 256"); a("s_cbranch_scc1 L3_end")
    srd_load(a,4,'ws'); srd_load(a,8,'w_r'); srd_load(a,12,'out'); srd_load(a,36,'A_u'); srd_load(a,40,'Dskip')
    srd_load(a,44,'w_gate'); srd_load(a,48,'w_up'); srd_load(a,52,'w_down')
    a("v_and_b32 v1, 63, v0"); a("v_lshrrev_b32 v2, 6, v0")
    a("v_lshlrev_b32 v3, 5, v0")
    a("s_mul_i32 s16, s2, 7168"); a(f"s_add_u32 s17, s16, {WS_YB}")
    a("v_lshlrev_b32 v5, 4, v1")
    for i in range(36): a(f"v_mov_b32 v{88+i}, 0")
    a("v_readfirstlane_b32 s18, v2")
    a("v_mul_u32_u24 v6, 896, v2"); a("v_add_u32 v6, v6, v5")
    a("v_lshlrev_b32 v7, 3, v2"); a("s_lshl_b32 s19, s2, 6"); a(f"s_add_u32 s19, s19, {WS_ST}")
    a("s_mov_b32 s30, 0x05040100"); a("s_mov_b32 s31, 0x07060302")
    a("v_cmp_gt_u32 vcc, 224, v0")
    a("s_waitcnt lgkmcnt(0)"); stamp(a,1)
    a("s_cmp_ge_u32 s18, 4"); a("s_cbranch_scc1 L3_cw")
    a("s_and_saveexec_b64 s[20:21], vcc")
    a("buffer_load_dwordx4 v[8:11], v3, s[4:7], s17 offen")
    a("buffer_load_dwordx4 v[12:15], v3, s[4:7], s17 offen offset:16")
    a("s_mov_b64 exec, s[20:21]")
    a("buffer_load_dwordx2 v[124:125], v7, s[4:7], s19 offen")
    a("s_mov_b32 exec_hi, 0x00ffffff")
    a("buffer_load_dwordx4 v[120:123], v6, s[36:39], s16 offen")
    a("s_mov_b32 exec_hi, -1")
    a("v_lshlrev_b32 v3, 2, v0")
    a("s_waitcnt vmcnt(2)"); stamp(a,2)
    a("s_and_saveexec_b64 s[20:21], vcc")
    for j in range(4):
        a(f"v_perm_b32 v{16+2*j}, v{12+j}, v{8+j}, s30"); a(f"v_perm_b32 v{17+2*j}, v{12+j}, v{8+j}, s31")
    for j in range(8): a(f"ds_write_b32 v3, v{16+j} offset:{896*j}")
    a("s_mov_b64 exec, s[20:21]")
    a("s_branch L3_join")
    a.label('L3_cw'); a.flush()
    a("s_sub_u32 s22, s18, 4"); a("s_mul_i32 s22, s22, 1792"); a(f"s_add_u32 s23, s22, {L3_C}"); a("s_mov_b32 m0, s23")
    a(f"s_add_u32 s22, s22, {WS_MODB}")
    a("s_mov_b32 exec_hi, 0x00ffffff")
    a("s_cmp_eq_u32 s18, 7"); a("s_cbranch_scc1 L3_cw7")
    a("buffer_load_dwordx4 v5, s[4:7], s22 offen lds")
    a("buffer_load_dwordx4 v5, s[4:7], s22 offen offset:896 lds")
    a("s_branch L3_cw8")
    a.label('L3_cw7'); a.flush()
    a("buffer_load_dwordx4 v5, s[40:43], 0 offen lds")
    a("s_add_u32 s23, s23, 896"); a("s_mov_b32 m0, s23")
    a("buffer_load_dwordx4 v5, s[8:11], 0 offen lds")
    a.label('L3_cw8'); a.flush()
    a("buffer_load_dwordx4 v[120:123], v6, s[36:39], s16 offen")
    a("s_mov_b32 exec_hi, -1")
    a("buffer_load_dwordx2 v[124:125], v7, s[4:7], s19 offen")
    if PREFETCH:
        a("s_and_b32 s33, s2, 7"); a("s_lshr_b32 s34, s2, 3")
        a("v_subrev_u32 v16, 256, v0")
        a("v_subrev_u32 v17, 112, v16"); a("v_cmp_gt_u32 vcc, 112, v16"); a("s_mov_b64 s[56:57], vcc"); a("v_cndmask_b32_e64 v17, v17, v16, vcc")
        a("v_lshrrev_b32 v18, 3, v17"); a("v_and_b32 v19, 7, v17"); a("v_lshlrev_b32 v19, 6, v19"); a("v_min_u32 v19, 444, v19")
        a("v_mul_u32_u24 v18, 3584, v18"); a("v_add_u32 v18, v18, v19")
        a("s_mul_i32 s35, s34, 50176"); a("s_mul_i32 s58, s33, 448"); a("s_add_u32 s35, s35, s58")
        a("s_mul_i32 s58, s33, 224"); a("s_mul_i32 s59, s34, 7"); a("s_add_u32 s58, s58, s59"); a("s_mul_i32 s58, s58, 896")
        a("v_lshlrev_b32 v19, 6, v16")
        a("v_cmp_gt_u32 vcc, 224, v16"); a("s_mov_b64 s[60:61], vcc"); a("v_cmp_gt_u32 vcc, 98, v16"); a("s_mov_b64 s[62:63], vcc")
        a("s_waitcnt vmcnt(0)")
        a("s_andn2_b64 s[60:61], s[60:61], s[56:57]")
        a("s_mov_b64 exec, s[56:57]"); a("buffer_load_dword v127, v18, s[44:47], s35 offen")
        a("s_mov_b64 exec, s[60:61]"); a("buffer_load_dword v127, v18, s[48:51], s35 offen")
        a("s_mov_b64 exec, s[62:63]"); a("buffer_load_dword v127, v19, s[52:55], s58 offen")
        a("s_mov_b64 exec, -1")
        a("s_branch L3_join2")
    a.label('L3_join'); a.flush()
    a("s_waitcnt vmcnt(0)")
    a.label('L3_join2'); a.flush()
    X0=[24+e for e in range(8)]; H1=[32+e for e in range(8)]
    for i in range(4): a(f"v_mov_b32 v{8+i}, 0")
    unpack8(a, 120, X0)
    a("v_mov_b32 v126, v125")
    ln_norm(a, X0, H1, 124, None, 126, 48)
    a("s_waitcnt lgkmcnt(0)"); a("s_barrier"); stamp(a,3)
    a("s_mov_b32 exec_hi, 0x00ffffff")
    for k in (1,0,6): a(f"ds_read_b128 v[{88+4*k}:{91+4*k}], v5 offset:{L3_C+896*k}")
    a("ds_read_b128 v[8:11], v6")
    for k in (2,4,3,7,5): a(f"ds_read_b128 v[{88+4*k}:{91+4*k}], v5 offset:{L3_C+896*k}")
    a("s_mov_b32 exec_hi, -1")
    T=[64+e for e in range(8)]; T2_=[72+e for e in range(8)]; T3=[80+e for e in range(8)]
    a("s_waitcnt lgkmcnt(6)")
    unpack8(a, 92, T); unpack8(a, 88, T2_); unpack8(a, 112, T3)
    for e in range(0,8,2):
        h0,h1=H1[e],H1[e+1]
        pk(a,'mul',h0,h0,T[e]); rnd2(a,h0,h1,48)
        pk(a,'add',h0,h0,T2_[e]); rnd2(a,h0,h1,48)
        pk(a,'mul',h0,h0,T3[e]); rnd2(a,h0,h1,48)
    a("s_waitcnt lgkmcnt(4)")
    X=[[16+e for e in range(8)]]
    unpack8(a, 8, X[0]); unpack8(a, 96, T)
    for e in range(0,8,2):
        y0,y1=X[0][e],X[0][e+1]
        pk(a,'add',y0,y0,H1[e]); rnd2(a,y0,y1,48)
        pk(a,'mul',y0,y0,T[e]); rnd2(a,y0,y1,48)
        pk(a,'add',y0,y0,X0[e])
        a(f"v_cvt_pk_bf16_f32 v{8+e//2}, v{y0}, v{y1}")
        a(f"v_lshlrev_b32 v{y0}, 16, v{8+e//2}"); a(f"v_and_b32 v{y1}, 0xffff0000, v{8+e//2}")
    a("v_add_u32 v6, s16, v6")
    a(f"s_mov_b32 s17, {WS_X1}")
    a("s_mov_b32 exec_hi, 0x00ffffff")
    a("buffer_store_dwordx4 v[8:11], v6, s[4:7], s17 offen")
    a("s_mov_b32 exec_hi, -1")
    mean,sd,ri = ln_stats(a, X, 1, [32], 34, 28)
    H=[[48+e for e in range(8)]]
    ln_norm(a, X[0], H[0], mean[0], sd[0], ri[0], 46)
    stamp(a,4)
    a("s_waitcnt lgkmcnt(0)")
    unpack8(a, 104, T); unpack8(a, 100, T2_); unpack8(a, 116, T3)
    for e in range(0,8,2):
        h0,h1=H[0][e],H[0][e+1]
        pk(a,'mul',h0,h0,T[e]); rnd2(a,h0,h1,46)
        pk(a,'add',h0,h0,T2_[e])
        a(f"v_cvt_pk_bf16_f32 v{24+e//2}, v{h0}, v{h1}")
        a(f"v_lshlrev_b32 v{h0}, 16, v{24+e//2}"); a(f"v_and_b32 v{h1}, 0xffff0000, v{24+e//2}")
        if e==0: pk(a,'mul',32,h0,T3[e])
        else: pk(a,'fma',32,h0,T3[e],32)
    a("v_add_f32 v32, v32, v33")
    a(f"s_mov_b32 s17, {WS_H2}")
    a("s_mov_b32 exec_hi, 0x00ffffff")
    a("buffer_store_dwordx4 v[24:27], v6, s[4:7], s17 offen")
    a("s_mov_b32 exec_hi, -1")
    unpack8(a, 108, T)
    wave_red(a,[32])
    for e in range(0,8,2):
        h0,h1=H[0][e],H[0][e+1]
        pk(a,'mul',h0,h0,T[e]); rnd2(a,h0,h1,46)
        pk(a,'add',h0,h0,X[0][e])
        a(f"v_cvt_pk_bf16_f32 v{28+e//2}, v{h0}, v{h1}")
    a("v_cvt_pk_bf16_f32 v34, v32, v32")
    a("s_lshl_b32 s16, s2, 3"); a("v_add_u32 v35, s16, v2")
    a("v_and_b32 v36, 0xffff, v34")
    a("v_bfe_i32 v37, v36, 15, 1"); a("v_or_b32 v37, 0x8000, v37"); a("v_xor_b32 v36, v36, v37")
    a("v_sub_u32 v38, 2047, v35"); a("v_lshl_or_b32 v40, v36, 16, v38")
    a("v_lshlrev_b32 v35, 2, v35")
    a("s_mov_b32 exec_hi, 0x00ffffff")
    a("buffer_store_dwordx4 v[28:31], v6, s[12:15], 0 offen")
    a("s_mov_b32 exec_lo, 0"); a("s_mov_b32 exec_hi, 0x80000000")
    a(f"s_mov_b32 s17, {WS_R}")
    a("buffer_store_dword v40, v35, s[4:7], s17 offen")
    prof_end(a,1,5,4)
    a.label('L3_end'); a("s_endpgm")

def topk(a, K0, lds_off, TK):
    K=[K0+i for i in range(8)]
    free=K0+8
    net=[(0,1),(2,3),(4,5),(6,7),(0,2),(1,3),(4,6),(5,7),(1,2),(5,6),(0,4),(3,7),(1,5),(2,6),(1,4),(3,6),(2,4),(3,5),(3,4)]
    for (i,j) in net:
        a(f"v_max_u32 v{free}, v{K[i]}, v{K[j]}"); a(f"v_min_u32 v{K[j]}, v{K[i]}, v{K[j]}")
        K[i],free = free,K[i]
    T=K0+9
    pend=[]
    def fill(n=2):
        for _ in range(n):
            if pend: a(pend.pop(0))
    for rnd in range(8):
        zero=' bound_ctrl:0'
        fill()
        a(f"v_max_u32_dpp v{T}, v{K[0]}, v{K[0]} row_shr:1 row_mask:0xf bank_mask:0xf{zero}")
        for sh in (2,4,8):
            fill(); a(f"v_max_u32_dpp v{T}, v{T}, v{T} row_shr:{sh} row_mask:0xf bank_mask:0xf{zero}")
        fill(); a(f"v_max_u32_dpp v{T}, v{T}, v{T} row_bcast:15 row_mask:0xa bank_mask:0xf")
        fill(); a(f"v_max_u32_dpp v{T}, v{T}, v{T} row_bcast:31 row_mask:0xc bank_mask:0xf")
        assert not pend
        a(f"v_readlane_b32 s{TK+rnd}, v{T}, 63")
        if rnd<7:
            a(f"v_cmp_eq_u32_e64 s[20:21], s{TK+rnd}, v{K[0]}")
            a(f"v_cndmask_b32_e64 v{K[0]}, v{K[0]}, v{K[1]}, s[20:21]")
            for i in range(1,7-rnd): pend.append(f"v_cndmask_b32_e64 v{K[i]}, v{K[i]}, v{K[i+1]}, s[20:21]")
    Q=K0+12
    for i in range(8): a(f"v_mov_b32 v{Q+i}, s{TK+i}")
    a(f"v_lshlrev_b32 v{T}, 5, v2")
    a("v_cmp_eq_u32 vcc, 0, v1"); a("s_and_saveexec_b64 s[20:21], vcc")
    a(f"ds_write_b128 v{T}, v[{Q}:{Q+3}] offset:{lds_off}"); a(f"ds_write_b128 v{T}, v[{Q+4}:{Q+7}] offset:{lds_off+16}")
    a("s_mov_b64 exec, s[20:21]")
    a(f"v_and_b32 v{T}, 31, v1"); a(f"v_lshlrev_b32 v{T}, 2, v{T}")
    a(f"v_mov_b32 v{T+2}, 0")
    a("s_waitcnt lgkmcnt(0)"); a("s_barrier")
    a(f"ds_read_b32 v{T+1}, v{T} offset:{lds_off}")
    A0=K0+20
    for j in range(8): a(f"ds_read_b128 v[{A0+4*j}:{A0+4*j+3}], v{T+2} offset:{lds_off+16*j}")
    a("s_waitcnt lgkmcnt(0)")
    R=[K0,K0+1,K0+2,K0+3]
    for r in R: a(f"v_mov_b32 v{r}, 0")
    for j0 in range(0,32,4):
        for q in range(4): a(f"v_cmp_gt_u32_e64 s[{22+2*q}:{23+2*q}], v{A0+j0+q}, v{T+1}")
        for q in range(4): a(f"v_addc_co_u32_e64 v{R[q]}, s[{22+2*q}:{23+2*q}], 0, v{R[q]}, s[{22+2*q}:{23+2*q}]")
    a(f"v_add_u32 v{R[0]}, v{R[0]}, v{R[1]}"); a(f"v_add_u32 v{R[2]}, v{R[2]}, v{R[3]}"); a(f"v_add_u32 v{R[0]}, v{R[0]}, v{R[2]}")
    for r0 in range(0,8,4):
        for q in range(4): a(f"v_cmp_eq_u32_e64 s[{22+2*q}:{23+2*q}], {r0+q}, v{R[0]}")
        for q in range(4): a(f"s_ff1_i32_b32 s{22+2*q}, s{22+2*q}")
        for q in range(4): a(f"v_readlane_b32 s{TK+r0+q}, v{T+1}, s{22+2*q}")

L4_W=0; L4_WD=14336; L4_RED=L4_WD+7168; L4_TK=L4_RED+4096; L4_ACT=L4_TK+256; L4_LDS=L4_ACT+4*128
def k4(a):
    a.label('k4_kernel'); a.flush(); stamp(a,0)
    a("s_cmp_ge_u32 s2, 224"); a("s_cbranch_scc1 L4_end")
    srd_load(a,4,'ws'); srd_load(a,8,'w_gate'); srd_load(a,12,'w_up'); srd_load(a,48,'w_down')
    a(f"s_mov_b32 s30, {hx(L_HI)}"); a(f"s_mov_b32 s31, {hx(L_LO)}"); a(f"s_mov_b32 s32, {hx(LN2)}")
    a("v_and_b32 v1, 63, v0"); a("v_lshrrev_b32 v2, 6, v0")
    a("s_and_b32 s16, s2, 7"); a("s_mul_i32 s16, s16, 28"); a("s_lshr_b32 s17, s2, 3"); a("s_add_u32 s16, s16, s17")
    a("s_lshl_b32 s17, s16, 4")
    a("v_lshrrev_b32 v3, 1, v1"); a("v_lshl_add_u32 v3, v2, 5, v3"); a("v_mul_u32_u24 v3, 3584, v3"); a("v_add_u32 v3, s17, v3")
    a("v_readfirstlane_b32 s18, v2")
    a("v_lshlrev_b32 v4, 5, v0"); a("v_lshlrev_b32 v10, 4, v0")
    a(f"s_mov_b32 s19, {WS_R}")
    a("s_mul_i32 s33, s16, 7168")
    a("s_waitcnt lgkmcnt(0)"); stamp(a,1)
    a("s_cmp_ge_u32 s18, 4"); a("s_cbranch_scc0 L4_cmp")
    a("s_sub_u32 s18, s18, 4")
    a("v_subrev_u32 v3, 458752, v3")
    a("v_subrev_u32 v10, 4096, v10")
    a("s_lshl_b32 s22, s18, 10")
    a("s_mov_b32 s24, 0x55555555"); a("s_mov_b32 s25, 0x55555555"); a("s_mov_b32 s26, 0xaaaaaaaa"); a("s_mov_b32 s27, 0xaaaaaaaa")
    for it in range(3):
        a(f"s_add_u32 s23, s22, {L4_W+4096*it}"); a("s_mov_b32 m0, s23"); a(f"s_mov_b32 s28, {128*3584*it}")
        a("s_mov_b64 exec, s[24:25]"); a("buffer_load_dwordx4 v3, s[8:11], s28 offen lds")
        a("s_mov_b64 exec, s[26:27]"); a("buffer_load_dwordx4 v3, s[12:15], s28 offen lds")
    a("s_mov_b64 exec, -1")
    a("s_cmp_ge_u32 s18, 2"); a("s_cbranch_scc1 L4_alt")
    a(f"s_add_u32 s23, s22, {L4_W+4096*3}"); a("s_mov_b32 m0, s23"); a(f"s_mov_b32 s28, {128*3584*3}")
    a("s_mov_b64 exec, s[24:25]"); a("buffer_load_dwordx4 v3, s[8:11], s28 offen lds")
    a("s_mov_b64 exec, s[26:27]"); a("buffer_load_dwordx4 v3, s[12:15], s28 offen lds")
    a("s_mov_b64 exec, -1")
    a(f"s_add_u32 s23, s22, {L4_WD}"); a("s_mov_b32 m0, s23")
    a("buffer_load_dwordx4 v10, s[48:51], s33 offen lds")
    a("s_branch L4_dmadone")
    a.label('L4_alt'); a.flush()
    a(f"s_add_u32 s23, s22, {L4_WD}"); a("s_mov_b32 m0, s23")
    a("buffer_load_dwordx4 v10, s[48:51], s33 offen lds")
    a("buffer_load_dwordx4 v10, s[48:51], s33 offen offset:2048 lds")
    a("s_cmp_eq_u32 s18, 2"); a("s_cselect_b32 s28, 2048, 0"); a("s_add_u32 s23, s23, s28"); a("s_mov_b32 m0, s23"); a("s_add_u32 s28, s28, s33")
    a("buffer_load_dwordx4 v10, s[48:51], s28 offen offset:2048 lds")
    a.label('L4_dmadone'); a.flush()
    a("s_barrier")
    a("s_waitcnt vmcnt(0)")
    a("s_barrier")
    a("s_endpgm")
    a.label('L4_cmp'); a.flush()
    a("buffer_load_dwordx4 v[16:19], v4, s[4:7], s19 offen"); a("buffer_load_dwordx4 v[20:23], v4, s[4:7], s19 offen offset:16")
    a("s_waitcnt vmcnt(0)"); stamp(a,2)
    TK=40
    topk(a, 16, L4_TK, TK)
    stamp(a,3)
    a("v_and_b32 v5, 7, v1"); a("v_mov_b32 v6, 0")
    for i in range(8):
        a(f"s_and_b32 s20, s{TK+i}, 0xffff"); a("s_sub_u32 s20, 2047, s20"); a("s_mul_i32 s20, s20, 896")
        a(f"v_cmp_eq_u32_e64 s[34:35], {i}, v5"); a("v_mov_b32 v7, s20"); a("v_cndmask_b32_e64 v6, v6, v7, s[34:35]")
    a("v_lshrrev_b32 v7, 4, v1"); a("v_lshl_add_u32 v6, v7, 4, v6"); a("v_lshl_add_u32 v6, v2, 6, v6")
    a(f"s_mov_b32 s19, {WS_H2}")
    for it in range(4): a(f"buffer_load_dwordx4 v[{16+4*it}:{19+4*it}], v6, s[4:7], s19 offen offset:{256*it}")
    a("s_cmp_lg_u32 s2, 0"); a("s_cbranch_scc1 L4_nokeys")
    for i in range(8): a(f"v_mov_b32 v{64+i}, s{TK+i}")
    a("v_mov_b32 v72, 0"); a(f"s_mov_b32 s19, {WS_IDX}")
    a("v_cmp_eq_u32 vcc, 0, v0"); a("s_and_saveexec_b64 s[20:21], vcc")
    a("buffer_store_dwordx4 v[64:67], v72, s[4:7], s19 offen"); a("buffer_store_dwordx4 v[68:71], v72, s[4:7], s19 offen offset:16")
    a("s_mov_b64 exec, s[20:21]")
    a.label('L4_nokeys'); a.flush(); a.nop(2)
    a("v_and_b32 v8, 3, v1"); a("v_bfe_u32 v9, v1, 2, 2"); a("v_lshl_add_u32 v9, v7, 3, v9")
    a("v_lshlrev_b32 v9, 5, v9"); a("v_lshl_add_u32 v9, v8, 3, v9"); a("v_lshl_add_u32 v9, v2, 10, v9")
    for i in range(4): a(f"v_mov_b32 v{60+i}, 0")
    a("v_and_b32 v11, 1, v7"); a("v_bfe_u32 v12, v1, 2, 2"); a("v_lshl_add_u32 v11, v11, 2, v12"); a("v_mul_u32_u24 v11, 896, v11")
    a("v_lshl_add_u32 v11, v8, 3, v11"); a("v_mul_u32_u24 v12, 224, v2"); a("v_add_u32 v11, v11, v12")
    a("s_barrier")
    for it in range(4):
        a(f"ds_read_b64_tr_b16 v[{32+4*it}:{33+4*it}], v9 offset:{L4_W+4096*it}")
        a(f"ds_read_b64_tr_b16 v[{34+4*it}:{35+4*it}], v9 offset:{L4_W+4096*it+128}")
    a("s_waitcnt vmcnt(0)"); stamp(a,4)
    for it in range(4):
        if it==3:
            a("s_cmp_ge_u32 s18, 2"); a("s_cbranch_scc1 L4_mmdone")
        a(f"s_waitcnt lgkmcnt({6-2*it})" if not PROF else "s_waitcnt lgkmcnt(0)")
        a(f"v_mfma_f32_16x16x32_bf16 v[60:63], v[{16+4*it}:{19+4*it}], v[{32+4*it}:{35+4*it}], v[60:63]")
    a.label('L4_mmdone'); a.flush(); a.nop(8)
    a(f"ds_write_b128 v10, v[60:63] offset:{L4_RED}")
    a("v_lshlrev_b32 v13, 4, v1")
    a("s_waitcnt lgkmcnt(0)"); a("s_barrier"); stamp(a,5)
    for w in range(4): a(f"ds_read_b128 v[{16+4*w}:{19+4*w}], v13 offset:{L4_RED+1024*w}")
    for dt in range(7): a(f"ds_read_b64_tr_b16 v[{40+2*dt}:{41+2*dt}], v11 offset:{L4_WD+32*dt}")
    a("s_waitcnt lgkmcnt(7)")
    for r in range(4):
        a(f"v_add_f32 v{16+r}, v{16+r}, v{20+r}"); a(f"v_add_f32 v{24+r}, v{24+r}, v{28+r}"); a(f"v_add_f32 v{16+r}, v{16+r}, v{24+r}")
    rnd2(a,16,17,32); rnd2(a,18,19,32)
    for r in range(4): a(f"v_mul_f32 v{64+r}, s30, v{16+r}")
    for r in range(4): a(f"v_fma_f32 v{68+r}, v{16+r}, s30, -v{64+r}")
    for r in range(4): a(f"v_fma_f32 v{68+r}, v{16+r}, s31, v{68+r}")
    for r in range(4): a(f"v_exp_f32_e64 v{64+r}, -v{64+r}")
    for r in range(4): a(f"v_mul_f32 v{68+r}, s32, v{68+r}")
    for r in range(4): a(f"v_fma_f32 v{64+r}, v{64+r}, -v{68+r}, v{64+r}")
    for r in range(4): a(f"v_add_f32 v{64+r}, 1.0, v{64+r}")
    for r in range(4): a(f"v_rcp_f32 v{68+r}, v{64+r}")
    for r in range(4): a(f"v_mov_b32_dpp v{24+r}, v{16+r} row_ror:8 row_mask:0xf bank_mask:0xf")
    for r in range(4): div_acc(a, 20+r, 16+r, 64+r, 68+r, 72+r)
    rnd2(a,20,21,32); rnd2(a,22,23,32)
    for r in range(4): a(f"v_mul_f32 v{20+r}, v{20+r}, v{24+r}")
    a("v_cvt_pk_bf16_f32 v28, v20, v21"); a("v_cvt_pk_bf16_f32 v29, v22, v23")
    a("v_and_b32 v5, 15, v1")
    a("v_lshlrev_b32 v14, 6, v7"); a("v_lshl_add_u32 v14, v5, 1, v14"); a("v_lshl_add_u32 v14, v2, 7, v14")
    a("s_mov_b32 exec_lo, 0x00ff00ff"); a("s_mov_b32 exec_hi, 0")
    a(f"ds_write_b16 v14, v28 offset:{L4_ACT}"); a(f"ds_write_b16_d16_hi v14, v28 offset:{L4_ACT+16}")
    a(f"ds_write_b16 v14, v29 offset:{L4_ACT+32}"); a(f"ds_write_b16_d16_hi v14, v29 offset:{L4_ACT+48}")
    if DEBUG_ACT:
        a("v_mul_u32_u24 v6, 14336, v7"); a("v_lshl_add_u32 v6, v5, 1, v6"); a("v_add_u32 v6, s17, v6")
        a(f"s_mov_b32 s19, {WS_ACT}")
        a("buffer_store_short v28, v6, s[4:7], s19 offen"); a("buffer_store_short_d16_hi v28, v6, s[4:7], s19 offen offset:3584")
        a(f"s_add_u32 s19, s19, 7168")
        a("buffer_store_short v29, v6, s[4:7], s19 offen"); a("buffer_store_short_d16_hi v29, v6, s[4:7], s19 offen offset:3584")
    a("s_mov_b64 exec, -1")
    a("v_mov_b32 v30, 0"); a("v_mov_b32 v31, 0")
    a("v_lshlrev_b32 v14, 4, v5"); a("v_lshl_add_u32 v14, v7, 3, v14"); a("v_lshl_add_u32 v14, v2, 7, v14")
    a("s_mov_b32 exec_lo, 0x00ff00ff"); a("s_mov_b32 exec_hi, 0")
    a(f"ds_read_b64 v[30:31], v14 offset:{L4_ACT}")
    a("s_mov_b64 exec, -1")
    a("v_mul_u32_u24 v15, 28, v5"); a("v_mul_u32_u24 v12, 7, v2"); a("v_add_u32 v15, v15, v12"); a("v_mul_u32_u24 v15, 14336, v15")
    a("v_lshl_add_u32 v15, v7, 4, v15")
    a("s_lshl_b32 s19, s16, 6"); a(f"s_add_u32 s19, s19, {WS_P}")
    a("s_waitcnt lgkmcnt(0)")
    for dt in range(7):
        a(f"v_mfma_f32_16x16x16_bf16 v[{64+4*dt}:{67+4*dt}], v[{40+2*dt}:{41+2*dt}], v[30:31], 0")
    a("s_mov_b32 exec_lo, 0x00ff00ff"); a("s_mov_b32 exec_hi, 0x00ff00ff")
    for dt in range(7):
        a(f"buffer_store_dwordx4 v[{64+4*dt}:{67+4*dt}], v15, s[4:7], s19 offen")
        if dt<6: a(f"s_add_u32 s19, s19, 14336")
    prof_end(a,2,6,4)
    a.label('L4_end'); a("s_endpgm")

def k5(a):
    a.label('k5_kernel'); a.flush(); stamp(a,0)
    a("s_cmp_ge_u32 s2, 224"); a("s_cbranch_scc1 L5_end")
    srd_load(a,4,'ws'); srd_load(a,12,'out')
    a(f"s_mov_b32 s30, {hx(L_HI)}"); a(f"s_mov_b32 s31, {hx(L_LO)}"); a(f"s_mov_b32 s32, {hx(LN2)}")
    a("s_mul_hi_u32 s16, s2, 153391690"); a("s_mul_i32 s17, s16, 28"); a("s_sub_u32 s17, s2, s17")
    a("v_lshlrev_b32 v4, 4, v0")
    a("s_mul_i32 s19, s2, 14336"); a(f"s_add_u32 s19, s19, {WS_P}")
    a("s_lshl_b32 s20, s16, 2"); a(f"s_add_u32 s20, s20, {WS_IDX}")
    a("v_mov_b32 v5, 0"); a("v_mov_b32 v12, 0")
    for i in range(4): a(f"v_mov_b32 v{28+i}, 0")
    a("s_waitcnt lgkmcnt(0)"); stamp(a,1)
    a("buffer_load_dword v40, v5, s[4:7], s20 offen")
    for it in range(3):
        a(f"buffer_load_dwordx4 v[{16+4*it}:{19+4*it}], v4, s[4:7], s19 offen"); a("s_add_u32 s19, s19, 4096")
    a("v_cmp_gt_u32 vcc, 128, v0"); a("s_and_saveexec_b64 s[22:23], vcc")
    a("s_cbranch_execz L5_skip")
    a("buffer_load_dwordx4 v[28:31], v4, s[4:7], s19 offen")
    a.label('L5_skip'); a("s_mov_b64 exec, s[22:23]")
    a("v_and_b32 v6, 15, v0"); a("v_lshlrev_b32 v7, 2, v6")
    a("s_lshl_b32 s21, s17, 6"); a(f"s_add_u32 s21, s21, {WS_MOD+5*1792}")
    a("buffer_load_dword v41, v7, s[4:7], s21 offen")
    a("v_readfirstlane_b32 s24, v0")
    a("s_cmp_lg_u32 s24, 0"); a("s_cbranch_scc1 L5_nogather")
    a("s_waitcnt vmcnt(5)"); stamp(a,2)
    a("v_and_b32 v8, 0xffff, v40"); a("v_sub_u32 v8, 2047, v8")
    a("s_lshl_b32 s25, s17, 4"); a("v_add_u32 v9, s25, v6")
    a(f"s_mov_b32 s26, {WS_X1}"); a(f"s_mov_b32 s27, {WS_H2}")
    a("v_mul_u32_u24 v12, 896, v8"); a("v_lshl_add_u32 v12, v9, 1, v12")
    a("buffer_load_ushort v42, v12, s[4:7], s26 offen")
    a("buffer_load_ushort v43, v12, s[4:7], s27 offen")
    a("v_lshrrev_b32 v33, 16, v40"); a("v_bfe_i32 v34, v33, 15, 1")
    a("v_not_b32 v34, v34"); a("v_or_b32 v34, 0x8000, v34"); a("v_xor_b32 v33, v33, v34"); a("v_lshlrev_b32 v33, 16, v33")
    exp_acc(a, 34, 33, 35, 36, 30, 31, 32, neg=True)
    a("v_add_f32 v34, 1.0, v34"); a("v_rcp_f32 v35, v34"); a("v_mov_b32 v37, 1.0")
    div_acc(a, 44, 37, 34, 35, 36)
    rnd1(a,44,35)
    a("s_waitcnt vmcnt(3)")
    a("s_branch L5_sum")
    a.label('L5_nogather'); a.flush()
    a("s_waitcnt vmcnt(1)")
    a.label('L5_sum'); a.flush(); stamp(a,3)
    for i in range(4):
        a(f"v_add_f32 v{16+i}, v{16+i}, v{20+i}"); a(f"v_add_f32 v{24+i}, v{24+i}, v{28+i}"); a(f"v_add_f32 v{16+i}, v{16+i}, v{24+i}")
    for sh in (4,8):
        for i in range(4): a(f"v_add_f32_dpp v{16+i}, v{16+i}, v{16+i} row_ror:{sh} row_mask:0xf bank_mask:0xf")
    a("v_lshrrev_b32 v13, 4, v0"); a("v_lshlrev_b32 v13, 6, v13"); a("v_and_b32 v14, 3, v0"); a("v_lshl_add_u32 v13, v14, 4, v13")
    a("v_and_b32 v14, 12, v0"); a("v_cmp_eq_u32 vcc, 0, v14"); a("s_and_saveexec_b64 s[22:23], vcc")
    a("ds_write_b128 v13, v[16:19]")
    a("s_mov_b64 exec, s[22:23]")
    a("s_waitcnt lgkmcnt(0)"); a("s_barrier"); stamp(a,4)
    a("s_cmp_lg_u32 s24, 0"); a("s_cbranch_scc1 L5_end")
    for p in range(16): a(f"ds_read_b32 v{48+p}, v7 offset:{64*p}")
    a("s_waitcnt lgkmcnt(0) vmcnt(0)")
    for st in (8,4,2,1):
        for p in range(st): a(f"v_add_f32 v{48+p}, v{48+p}, v{48+p+st}")
    rnd1(a,48,35)
    a("v_mul_f32 v48, v48, v44"); rnd1(a,48,35)
    a("v_lshlrev_b32 v42, 16, v42"); a("v_lshlrev_b32 v43, 16, v43")
    a("v_add_f32 v48, v48, v43"); rnd1(a,48,35)
    a("v_mul_f32 v48, v48, v41"); rnd1(a,48,35)
    a("v_add_f32 v48, v48, v42"); a("v_cvt_pk_bf16_f32 v48, v48, v48")
    a("s_mov_b32 exec_lo, 0xffff"); a("s_mov_b32 exec_hi, 0")
    a("buffer_store_short v48, v12, s[12:15], 0 offen")
    prof_end(a,3,5,4)
    a.label('L5_end'); a("s_endpgm")

def desc(name, vgpr, sgpr=102):
    return f""".amdhsa_kernel {name}
  .amdhsa_next_free_vgpr {vgpr}
  .amdhsa_next_free_sgpr {sgpr}
  .amdhsa_accum_offset {(vgpr+3)//4*4}
  .amdhsa_group_segment_fixed_size 0
  .amdhsa_kernarg_size 152
  .amdhsa_user_sgpr_count 2
  .amdhsa_user_sgpr_kernarg_segment_ptr 1
  .amdhsa_system_sgpr_workgroup_id_x 1
  .amdhsa_float_denorm_mode_32 3
.end_amdhsa_kernel
"""
DEBUG_ACT=False
PREFETCH=int(__import__('os').environ.get('PREFETCH','1'))
PRIO=int(__import__('os').environ.get('PRIO','2'))
def main(path):
    hdr = open('adaLN_cond__ssm_conv_s4__moe_arch_mod__prompt.s.ref').read().split('; Override')[0]
    pv = 120 if PROF else 0
    kernels=[('f1_kernel',f1,F1_GRID,256,F1_LDS,160),
             ('k3_kernel',k3,256,512,14336,128),
             ('k4_kernel',k4,224,512,L4_LDS,max(96,pv)),
             ('k5_kernel',k5,224,256,1024,max(64,pv))]
    out=hdr
    for n,f,g,b,l,v in kernels: out+=f"; @launch kernel={n} grid=({g},1,1) block=({b},1,1) lds={l}\n"
    out+='.amdgcn_target "amdgcn-amd-amdhsa--gfx950"\n.text\n'
    for n,f,g,b,l,v in kernels:
        a=Asm()
        a.raw(f".globl {n}\n.p2align 8\n.type {n},@function")
        f(a)
        out+=a.text()
    out+='.section .rodata,"a"\n'
    for n,f,g,b,l,v in kernels: out+='.p2align 6\n'+desc(n,v)
    open(path,'w').write(out)

if __name__=='__main__':
    if 'prof' in sys.argv[2:]: PROF=True
    if 'dbg' in sys.argv[2:]: DEBUG_ACT=True
    main(sys.argv[1] if len(sys.argv)>1 else 'adaLN_cond__ssm_conv_s4__moe_arch_mod__prompt.s')
```

```python
import sys, struct, math
sys.path.insert(0,'work')
from asmlib import Asm
from layout import *
import numpy as np

def f2u(x): return struct.unpack('<I', struct.pack('<f', x))[0]
def hx(x): return '0x%08x' % f2u(x)
LOG2E = 1.4426950408889634; L_HI = float(np.float32(LOG2E)); L_LO = float(np.float32(LOG2E-L_HI))
LN2 = 0.6931471805599453
I2P = 0.15915494309189535; I2P_HI = float(np.float32(I2P)); I2P_LO = float(np.float32(I2P-I2P_HI))
WS_SIZE = 268435456
KA = dict(A_u=0,A_re=8,A_im=16,B_re=24,B_im=32,C_re=40,C_im=48,log_dt=56,Dskip=64,B_x=72,w_r=80,w_gate=88,w_up=96,w_down=104,c=112,w_mod=120,out=128,dbg=136,ws=144)
SZ = dict(A_u=2048*896,A_re=448*512,A_im=448*512,B_re=448*512,B_im=448*512,C_re=448*512,C_im=448*512,log_dt=896,Dskip=896,w_r=896,w_gate=448*3584,w_up=448*3584,w_down=1792*896,c=896,w_mod=448*5376,out=2048*896,dbg=256,ws=WS_SIZE)

def srd_load(a, s, name):
    a(f"s_load_dwordx2 s[{s}:{s+1}], s[0:1], {KA[name]}")
    a(f"s_mov_b32 s{s+2}, {SZ[name]}")
    a(f"s_mov_b32 s{s+3}, 0x20000")

def rnd2(a, x0, x1, tmp):
    a(f"v_cvt_pk_bf16_f32 v{tmp}, v{x0}, v{x1}")
    a(f"v_lshlrev_b32 v{x0}, 16, v{tmp}")
    a(f"v_and_b32 v{x1}, 0xffff0000, v{tmp}")
def rnd1(a, x0, tmp):
    a(f"v_cvt_pk_bf16_f32 v{tmp}, v{x0}, v{x0}")
    a(f"v_lshlrev_b32 v{x0}, 16, v{tmp}")

def wave_red(a, regs, op='v_add_f32'):
    zero = ' bound_ctrl:0'
    for sh in (1,2,4,8):
        for r in regs: a(f"{op}_dpp v{r}, v{r}, v{r} row_shr:{sh} row_mask:0xf bank_mask:0xf{zero}")
    for r in regs: a(f"{op}_dpp v{r}, v{r}, v{r} row_bcast:15 row_mask:0xa bank_mask:0xf")
    for r in regs: a(f"{op}_dpp v{r}, v{r}, v{r} row_bcast:31 row_mask:0xc bank_mask:0xf")

def exp_acc(a, dst, x, t, e, sLhi, sLlo, sLn2, neg=False):
    n = '-' if neg else ''
    a(f"v_mul_f32 v{t}, s{sLhi}, v{x}")
    a(f"v_fma_f32 v{e}, v{x}, s{sLhi}, -v{t}")
    a(f"v_fma_f32 v{e}, v{x}, s{sLlo}, v{e}")
    a(f"v_exp_f32 v{dst}, v{t}" if not neg else f"v_exp_f32_e64 v{dst}, -v{t}")
    a(f"v_mul_f32 v{e}, s{sLn2}, v{e}")
    a(f"v_fma_f32 v{dst}, v{dst}, {n}v{e}, v{dst}")

def div_acc(a, q, num, den, r, e):
    a(f"v_mul_f32 v{q}, v{num}, v{r}")
    a(f"v_fma_f32 v{e}, -v{q}, v{den}, v{num}")
    a(f"v_fma_f32 v{q}, v{e}, v{r}, v{q}")

def cmul(a, d, x, y, t):
    a(f"v_pk_mul_f32 v[{t}:{t+1}], v[{x}:{x+1}], v[{y}:{y+1}] op_sel:[0,0] op_sel_hi:[1,0]")
    a(f"v_pk_fma_f32 v[{d}:{d+1}], v[{x}:{x+1}], v[{y}:{y+1}], v[{t}:{t+1}] op_sel:[1,1,0] op_sel_hi:[0,1,1] neg_lo:[1,0,0]")

def pk(a, op, d, x, y, z=None, bcast1=False, neg1=False):
    m=''
    n = 3 if z is not None else 2
    if bcast1: m += ' op_sel:['+','.join(['0']*n)+'] op_sel_hi:['+','.join(['1','0','1'][:n])+']'
    if neg1: m += ' neg_lo:['+','.join(['0','1','0'][:n])+'] neg_hi:['+','.join(['0','1','0'][:n])+']'
    zz = f", v[{z}:{z+1}]" if z is not None else ''
    a(f"v_pk_{op}_f32 v[{d}:{d+1}], v[{x}:{x+1}], v[{y}:{y+1}]{zz}{m}")

def ln_stats(a, X, nrows, sums, tmp, S0):
    P=tmp+6*nrows
    for i in range(nrows):
        x=X[i][0]
        pk(a,'add',P,x,x+2); pk(a,'add',P+2,x+4,x+6); pk(a,'add',P,P,P+2)
        a(f"v_add_f32 v{sums[i]}, v{P}, v{P+1}")
    wave_red(a, sums)
    for i in range(nrows): a(f"v_readlane_b32 s{S0+i}, v{sums[i]}, 63")
    mean=[tmp+6*i for i in range(nrows)]; sd=[tmp+6*i+2 for i in range(nrows)]; ri=[tmp+6*i+4 for i in range(nrows)]
    a(f"v_mov_b32 v{P+4}, {hx(1.0/448)}")
    for i in range(nrows): a(f"v_mul_f32 v{mean[i]}, s{S0+i}, v{P+4}")
    for i in range(nrows): a(f"v_mov_b32 v{sums[i]}, 0")
    a(f"s_mov_b32 exec_hi, 0x00ffffff")
    for i in range(nrows):
        x=X[i][0]; acc=sd[i]
        pk(a,'add',P,x,mean[i],bcast1=True,neg1=True); pk(a,'add',P+2,x+2,mean[i],bcast1=True,neg1=True)
        pk(a,'mul',acc,P,P); pk(a,'fma',acc,P+2,P+2,acc)
        pk(a,'add',P,x+4,mean[i],bcast1=True,neg1=True); pk(a,'add',P+2,x+6,mean[i],bcast1=True,neg1=True)
        pk(a,'fma',acc,P,P,acc); pk(a,'fma',acc,P+2,P+2,acc)
        a(f"v_add_f32 v{sums[i]}, v{acc}, v{acc+1}")
    a(f"s_mov_b32 exec_hi, -1")
    a.nop(1)
    wave_red(a, sums)
    for i in range(nrows): a(f"v_readlane_b32 s{S0+i}, v{sums[i]}, 63")
    for i in range(nrows): a(f"v_mul_f32 v{sd[i]}, s{S0+i}, v{P+4}")
    for i in range(nrows): rnd2(a, mean[i], sd[i], P+(i&3))
    for i in range(nrows): a(f"v_add_f32 v{sd[i]}, {hx(1e-5)}, v{sd[i]}")
    for i in range(nrows): rnd1(a, sd[i], P+(i&3))
    for i in range(nrows): a(f"v_sqrt_f32 v{sd[i]}, v{sd[i]}")
    for i in range(nrows): rnd1(a, sd[i], P+(i&3))
    for i in range(nrows): a(f"v_rcp_f32 v{ri[i]}, v{sd[i]}")
    return mean, sd, ri

def ln_norm(a, x, out, m, s, ri, t0, final_round=True):
    for e in range(0,8,2):
        pk(a,'add',out[e],x[e],m,bcast1=True,neg1=True)
        rnd2(a, out[e], out[e+1], t0)
        pk(a,'mul',out[e],out[e],ri,bcast1=True)
        if final_round: rnd2(a, out[e], out[e+1], t0)

def unpack8(a, src, dst):
    for i in range(4):
        a(f"v_lshlrev_b32 v{dst[2*i]}, 16, v{src+i}")
        a(f"v_and_b32 v{dst[2*i+1]}, 0xffff0000, v{src+i}")

def idx_of_l(a, dst, lf, lu, t, c128, sc):
    a(f"v_cvt_pk_bf16_f32 v{t}, v{lf}, v{lf}")
    a(f"v_and_b32 v{t}, 0xffff, v{t}")
    a(f"v_subrev_u32 v{t}, {(134<<7)-128}, v{t}")
    a(f"v_cmp_lt_u32_e64 s[{sc}:{sc+1}], v{lu}, v{c128}")
    a(f"v_cndmask_b32_e64 v{dst}, v{t}, v{lu}, s[{sc}:{sc+1}]")

PROF = False
DIAG=False
def diag_end(a, kidx, slots):
    if not DIAG: return
    a("s_memrealtime s[94:95]")
    a("s_load_dwordx2 s[88:89], s[0:1], 136"); a("s_mov_b32 s90, 256"); a("s_mov_b32 s91, 0x20000")
    a("s_mov_b64 exec, 1")
    a("s_waitcnt lgkmcnt(0)")
    a("v_mov_b32 v98, 0")
    a("s_not_b32 s92, s70"); a("v_mov_b32 v99, s92"); a("buffer_atomic_umax v99, v98, s[88:91], 0 offen offset:192 sc1")
    a("v_mov_b32 v99, s94"); a("buffer_atomic_umax v99, v98, s[88:91], 0 offen offset:196 sc1")
    for j,sl in enumerate(slots):
        a(f"v_mov_b32 v99, s{70+2*sl}"); a(f"buffer_atomic_umax v99, v98, s[88:91], 0 offen offset:{200+4*j} sc1")
    a("s_mov_b64 exec, -1")
def stamp(a, i):
    if DIAG: a(f"s_memrealtime s[{70+2*i}:{71+2*i}]")
    if PROF:
        a(f"s_memrealtime s[{70+2*i}:{71+2*i}]")
        if i==0: a("s_memtime s[96:97]")
        if i==8: a("s_memtime s[100:101]")
        if i==9: a("s_memtime s[64:65]")
def prof_end(a, kidx, n, srd):
    if DIAG:
        diag_end(a, kidx, {(0,11):[2,4,7],(0,4):[]}.get((kidx,n),[]))
    if not PROF: return
    stamp(a, n); n+=1
    a("s_memtime s[98:99]")
    a("s_mov_b64 exec, -1")
    a("s_waitcnt lgkmcnt(0)")
    a("s_sub_u32 s98, s98, s96")
    for i in range(n): a(f"v_mov_b32 v{100+i}, s{70+2*i}")
    for i in range(n,12): a(f"v_mov_b32 v{100+i}, 0")
    a("v_lshrrev_b32 v99, 6, v0"); a("v_lshlrev_b32 v99, 6, v99")
    a(f"s_lshl_b32 s69, s2, 9"); a(f"s_add_u32 s69, s69, {WS_PROF+kidx*0x80000}")
    a("v_and_b32 v98, 63, v0"); a("v_cmp_eq_u32 vcc, 0, v98"); a("s_and_saveexec_b64 s[66:67], vcc")
    a("s_getreg_b32 s68, hwreg(HW_REG_HW_ID)"); a("v_mov_b32 v112, s68"); a("s_getreg_b32 s68, hwreg(HW_REG_XCC_ID)"); a("v_mov_b32 v113, s68"); a("v_mov_b32 v114, s98"); a("s_sub_u32 s64, s64, s100"); a("v_mov_b32 v115, s64")
    for j in range(4): a(f"buffer_store_dwordx4 v[{100+4*j}:{103+4*j}], v99, s[{srd}:{srd+3}], s69 offen offset:{16*j}")
    a("s_mov_b64 exec, -1")

N_GEMV=84; N_STAT=128; N_CONV=448; N_PROD=N_GEMV+N_STAT
REC=0; TAB=16384; TABN=664
C_P=0
C_KH=32768; C_KL=C_KH+4608; C_H0=C_KH+9216; C_H1=C_H0+4160+12
F1_LDS=C_H1+4160+4
assert C_H1%16==12 and F1_LDS%16==0

N_SIG=128+28; F1_GRID=660
def sig(a, lbl):
    a("v_mov_b32 v1, 0"); a("v_mov_b32 v2, 1"); a("v_mov_b32 v3, 1")
    a("v_cmp_eq_u32 vcc, 0, v0"); a("s_and_saveexec_b64 s[34:35], vcc")
    a(f"s_cbranch_execz {lbl}")
    a("buffer_atomic_add v2, v1, s[36:39], 0 offen sc0 sc1")
    a("s_waitcnt vmcnt(0)")
    a("v_readfirstlane_b32 s33, v2")
    a(f"s_cmp_lg_u32 s33, {N_SIG-1}"); a(f"s_cbranch_scc1 {lbl}")
    a("buffer_store_dword v3, v1, s[36:39], 0 offen offset:128 sc1")

def f1(a):
    a.label('f1_kernel'); stamp(a,0)
    a(f"s_cmp_ge_u32 s2, {F1_GRID}"); a("s_cbranch_scc1 F1_end")
    a("s_cmp_ge_u32 s2, 212"); a("s_cbranch_scc1 F1_conv")
    a("s_setprio 3")
    srd_load(a,4,'A_u'); srd_load(a,12,'ws'); srd_load(a,36,'dbg'); srd_load(a,52,'w_mod'); srd_load(a,56,'c')
    a(f"s_mov_b32 s30, {hx(L_HI)}"); a(f"s_mov_b32 s31, {hx(L_LO)}"); a(f"s_mov_b32 s32, {hx(LN2)}")
    a("s_sub_u32 s50, s2, 128"); a("s_mov_b32 s3, s2")
    a("s_cmp_ge_u32 s2, 128"); a("s_cbranch_scc1 F1_gemv")
    a("v_and_b32 v1, 63, v0"); a("v_lshrrev_b32 v2, 6, v0")
    a("s_mul_i32 s16, s3, 14336")
    a("v_mul_u32_u24 v3, 3584, v2"); a("v_lshl_add_u32 v3, v1, 4, v3")
    for i in range(16): a(f"v_mov_b32 v{96+i}, 0")
    a("s_waitcnt lgkmcnt(0)"); stamp(a,1)
    a("s_mov_b32 exec_hi, 0x00ffffff")
    for i in range(4): a(f"buffer_load_dwordx4 v[{96+4*i}:{99+4*i}], v3, s[4:7], s16 offen offset:{896*i}")
    a("s_mov_b32 exec_hi, -1")
    a("v_and_b32 v4, 15, v1"); a("v_lshlrev_b32 v4, 4, v4"); a("v_lshlrev_b32 v5, 3, v2"); a("v_xor_b32 v4, v4, v5")
    a("v_lshl_add_u32 v4, v1, 8, v4")
    a("v_lshlrev_b32 v7, 5, v2")
    a("s_lshl_b32 s18, s3, 7"); a(f"s_add_u32 s18, s18, {WS_ST}")
    a("v_lshlrev_b32 v5, 4, v0"); a("v_bfe_u32 v6, v0, 4, 4"); a("v_lshlrev_b32 v6, 4, v6"); a("v_xor_b32 v6, v6, v5")
    a(f"s_add_u32 s16, s16, {WS_NB}"); a("s_add_u32 s17, s16, 4096"); a("s_add_u32 s19, s16, 8192"); a("s_add_u32 s20, s16, 12288")
    a("s_waitcnt vmcnt(0)"); stamp(a,2)
    X=[[24+8*i+e for e in range(8)] for i in range(4)]
    for i in range(4): unpack8(a, 96+4*i, X[i])
    mean,sd,ri = ln_stats(a, X, 4, [56,57,58,59], 60, 64)
    for i in range(4): ln_norm(a, X[i], X[i], mean[i], sd[i], ri[i], 92+(i&1), final_round=False)
    a("s_mov_b32 exec_hi, 0x00ffffff")
    for e in range(8):
        q=16+2*(e&3)
        a(f"v_cvt_pk_bf16_f32 v{q}, v{X[0][e]}, v{X[1][e]}"); a(f"v_cvt_pk_bf16_f32 v{q+1}, v{X[2][e]}, v{X[3][e]}")
        a(f"v_xor_b32 v{92+(e&3)}, {32*e}, v4")
        a(f"ds_write_b64 v{92+(e&3)}, v[{q}:{q+1}]")
    a("s_mov_b32 exec_hi, -1")
    for i in range(4):
        a(f"v_mov_b32 v{8+2*i}, v{mean[i]}"); a(f"v_mov_b32 v{9+2*i}, v{ri[i]}")
    a("v_cmp_gt_u32 vcc, 128, v0")
    a("s_waitcnt lgkmcnt(0)"); a("s_barrier"); stamp(a,3)
    for it in range(4): a(f"ds_read_b128 v[{24+4*it}:{27+4*it}], v6 offset:{4096*it}")
    for it,sr in enumerate((16,17,19)):
        a(f"s_waitcnt lgkmcnt({3-it})")
        a(f"buffer_store_dwordx4 v[{24+4*it}:{27+4*it}], v5, s[12:15], s{sr} offen sc1")
    a("s_waitcnt lgkmcnt(0)")
    a("s_and_saveexec_b64 s[34:35], vcc")
    a("s_cbranch_execz F1_st3")
    a("buffer_store_dwordx4 v[36:39], v5, s[12:15], s20 offen sc1")
    a.label('F1_st3'); a("s_mov_b64 exec, s[34:35]")
    a("s_waitcnt vmcnt(0)"); a("s_barrier")
    a("s_mov_b32 exec_lo, 1"); a("s_mov_b32 exec_hi, 0")
    a("buffer_store_dwordx4 v[8:11], v7, s[12:15], s18 offen")
    a("buffer_store_dwordx4 v[12:15], v7, s[12:15], s18 offen offset:16")
    a("s_mov_b64 exec, -1")
    prof_end(a,0,4,12)
    sig(a,'F1_end')
    a("s_endpgm")
    a.label('F1_gemv'); a.flush()
    for i in range(7): a(f"s_mov_b32 s{20+i}, {344064*i}")
    a("v_lshrrev_b32 v1, 2, v0"); a("v_and_b32 v2, 3, v0")
    a("v_mul_u32_u24 v3, 5376, v1"); a("v_lshl_add_u32 v3, v2, 4, v3")
    a("s_lshl_b32 s33, s50, 6"); a("v_add_u32 v3, s33, v3")
    a("v_lshlrev_b32 v4, 1, v1")
    a("s_waitcnt lgkmcnt(0)")
    for i in range(7): a(f"buffer_load_ushort v{8+i}, v4, s[56:59], 0 offen offset:{128*i}")
    for i in range(7): a(f"buffer_load_dwordx4 v[{16+4*i}:{19+4*i}], v3, s[52:55], s{20+i} offen")
    a("s_waitcnt vmcnt(7)")
    R7=range(7)
    for i in R7: a(f"v_lshlrev_b32 v{8+i}, 16, v{8+i}")
    for i in R7: a(f"v_mul_f32 v{68+i}, s30, v{8+i}")
    for i in R7: a(f"v_fma_f32 v{76+i}, v{8+i}, s30, -v{68+i}")
    for i in R7: a(f"v_fma_f32 v{76+i}, v{8+i}, s31, v{76+i}")
    for i in R7: a(f"v_exp_f32_e64 v{68+i}, -v{68+i}")
    for i in R7: a(f"v_mul_f32 v{76+i}, s32, v{76+i}")
    for i in R7: a(f"v_fma_f32 v{68+i}, v{68+i}, -v{76+i}, v{68+i}")
    for i in R7: a(f"v_add_f32 v{68+i}, 1.0, v{68+i}")
    for i in R7: a(f"v_rcp_f32 v{76+i}, v{68+i}")
    for i in R7: a(f"v_mul_f32 v{84+i}, v{8+i}, v{76+i}")
    for i in R7: a(f"v_fma_f32 v{68+i}, -v{84+i}, v{68+i}, v{8+i}")
    for i in R7: a(f"v_fma_f32 v{84+i}, v{68+i}, v{76+i}, v{84+i}")
    for i in R7: a(f"v_cvt_pk_bf16_f32 v{84+i}, v{84+i}, v{84+i}")
    for i in R7: a(f"v_lshlrev_b32 v{68+2*i}, 16, v{84+i}")
    for e in range(8): a(f"v_mov_b32 v{48+e}, 0")
    for i in R7:
        a(f"s_waitcnt vmcnt({6-i})")
        for j in range(4):
            t=56+2*(j&1)
            a(f"v_lshlrev_b32 v{t}, 16, v{16+4*i+j}"); a(f"v_and_b32 v{t+1}, 0xffff0000, v{16+4*i+j}")
            pk(a,'fma',48+2*j,t,68+2*i,48+2*j,bcast1=True)
    for sh in (4,8):
        for e in range(8): a(f"v_add_f32_dpp v{48+e}, v{48+e}, v{48+e} row_ror:{sh} row_mask:0xf bank_mask:0xf")
    a("v_lshrrev_b32 v5, 4, v0"); a("v_lshlrev_b32 v5, 7, v5"); a("v_lshl_add_u32 v5, v2, 5, v5")
    a("v_and_b32 v6, 12, v0"); a("v_cmp_eq_u32 vcc, 0, v6")
    a("s_and_saveexec_b64 s[34:35], vcc")
    a("ds_write_b128 v5, v[48:51] offset:16384"); a("ds_write_b128 v5, v[52:55] offset:16400")
    a("s_mov_b64 exec, s[34:35]")
    a("s_waitcnt lgkmcnt(0)"); a("s_barrier")
    a("v_lshlrev_b32 v5, 2, v0")
    a("v_cmp_gt_u32 vcc, 32, v0"); a("s_and_saveexec_b64 s[34:35], vcc")
    a("s_cbranch_execz F1_end")
    for p in range(16): a(f"ds_read_b32 v{16+p}, v5 offset:{16384+128*p}")
    a("s_waitcnt lgkmcnt(0)")
    for st in (8,4,2,1):
        for p in range(st): a(f"v_add_f32 v{16+p}, v{16+p}, v{16+p+st}")
    rnd1(a, 16, 17)
    a("s_lshl_b32 s33, s50, 7"); a("v_add_u32 v5, s33, v5")
    a(f"buffer_store_dword v16, v5, s[12:15], 0 offen offset:{WS_MOD} sc1")
    a("s_sub_u32 s33, s50, 14"); a("s_cmp_lt_u32 s33, 14"); a("s_cselect_b32 s28, 1.0, 0")
    a("s_sub_u32 s33, s50, 56"); a("s_cmp_lt_u32 s33, 14"); a("s_cselect_b32 s28, 1.0, s28")
    a("v_add_f32 v18, s28, v16"); a("v_cvt_pk_bf16_f32 v18, v18, v18")
    a("v_lshrrev_b32 v6, 1, v5"); a(f"s_mov_b32 s33, {WS_MODB}")
    a("s_waitcnt vmcnt(0)")
    a("buffer_store_short v18, v6, s[12:15], s33 offen")
    a("s_cmp_ge_u32 s50, 28"); a("s_cbranch_scc1 F1_end")
    sig(a,'F1_end')
    a("s_endpgm")
    a.label('F1_conv'); a.flush()
    conv_role(a)
    a.label('F1_end'); a("s_endpgm")

def conv_mfma(a,AA,BA,ACC2,BTS,NOLDS=False,NOMF=False):
    bases=[BA,BA+1,BA+2,BA+3]
    ops=[]
    def issue(tag,text):
        if (not NOLDS) or (NOLDS is not True and NOLDS!=1 and tag[0] in NOLDS): a(text)
        ops.append(tag)
    pendq=[]
    real_issue=issue
    def defer(tag,text): pendq.append((tag,text))
    def drain(n=1):
        for _ in range(n):
            if pendq: real_issue(*pendq.pop(0))
    def wait(tags):
        idx=max(i for i,t in enumerate(ops) if t in tags)
        a(f"s_waitcnt lgkmcnt({min(len(ops)-1-idx,15)})")
    def bload(rr,m):
        k=7-m; bs=bases[k>>1]; off=(k&1)*128+16*rr; BT=BTS[rr]
        issue(('B',rr,m), f"ds_read2_b32 v[{BT+4*m}:{BT+4*m+1}], v{bs} offset0:{off} offset1:{off+1}")
        issue(('B',rr,m), f"ds_read2_b32 v[{BT+4*m+2}:{BT+4*m+3}], v{bs} offset0:{off+2} offset1:{off+3}")
    groups=[(rr,k) for rr in range(2) for k in range(4)]
    ATG=[28,44]
    def aload(gi):
        rr,k=groups[gi]; b=ATG[gi&1]
        for j,s_ in enumerate((k,7-k)):
            off=64*(8*s_+rr)
            issue(('A',gi,2*j), f"ds_read_b128 v[{b+8*j}:{b+8*j+3}], v{AA} offset:{C_KH+off}")
            issue(('A',gi,2*j+1), f"ds_read_b128 v[{b+8*j+4}:{b+8*j+7}], v{AA} offset:{C_KL+off}")
    issue(('A',0,0), f"ds_read_b128 v[{ATG[0]}:{ATG[0]+3}], v{AA} offset:{C_KH}")
    for m in range(8): bload(0,m)
    issue(('A',0,1), f"ds_read_b128 v[{ATG[0]+4}:{ATG[0]+7}], v{AA} offset:{C_KL}")
    issue(('A',0,2), f"ds_read_b128 v[{ATG[0]+8}:{ATG[0]+11}], v{AA} offset:{C_KH+64*56}")
    issue(('A',0,3), f"ds_read_b128 v[{ATG[0]+12}:{ATG[0]+15}], v{AA} offset:{C_KL+64*56}")
    last=[-99]*8; inited=[False]*8; slot=0; waited=set()
    remaining={c: sum(1 for (rr,k) in groups for s_ in (k,7-k) if c>=s_)*2 for c in range(8)}
    done_at={}; written=set()
    for gi,(rr,k) in enumerate(groups):
        drain(99)
        issue=defer
        if gi+1<len(groups): aload(gi+1)
        if rr==0:
            for m in range(2*k,2*k+2): bload(1,m)
        for c in list(done_at):
            if c not in written and slot-done_at[c]>=0:
                issue(('W',c), f"ds_write_b128 v16, v[{ACC2+4*c}:{ACC2+4*c+3}] offset:{C_P+1024*c}"); written.add(c)
        b=ATG[gi&1]; BT=BTS[rr]
        todo=[(c,j,hl) for j,s_ in enumerate((k,7-k)) for hl in range(2) for c in range(s_,8)]
        while todo:
            if gi==0 and slot<8: pick=(slot,0,0)
            else:
                cnt={}
                for (c,j,hl) in todo: cnt[c]=cnt.get(c,0)+1
                pick=max(todo, key=lambda t:(min(slot-last[t[0]],3), cnt[t[0]], slot-last[t[0]], -t[1], -t[2]))
            todo.remove(pick); c,j,hl=pick
            s_=(k,7-k)[j]
            need={('A',gi,2*j+hl),('B',rr,c-s_)}-waited
            if need: wait(need);
            if need:
                idx=max(i for i,t in enumerate(ops) if t in need)
                waited|=set(ops[:idx+1])
            bt=BT+4*(c-s_); acc=ACC2+4*c; ar=b+8*j+4*hl
            cin = f"v[{acc}:{acc+3}]" if inited[c] else "0"
            if not NOMF: a(f"v_mfma_f32_16x16x32_bf16 v[{acc}:{acc+3}], v[{bt}:{bt+3}], v[{ar}:{ar+3}], {cin}")
            inited[c]=True; last[c]=slot; slot+=1
            if slot%2==0: drain(1)
            remaining[c]-=1
            if remaining[c]==0: done_at[c]=slot
    drain(99)
    return written,done_at

def conv_role(a):
    import kloop
    names=['A_re','A_im','B_re','B_im','C_re','C_im']
    for i,nm in enumerate(names): srd_load(a, 4+4*i, nm)
    srd_load(a,28,'log_dt'); srd_load(a,32,'ws'); srd_load(a,60,'dbg')
    a("s_sub_u32 s38, s2, 212")
    a("s_setprio 1")
    a("s_cmp_lt_u32 s38, 256"); a("s_cbranch_scc1 F1_p1"); a("s_setprio 2")
    a.label('F1_p1')
    if CODEPF>=2:
        a("s_cmp_ge_u32 s38, 16"); a("s_cbranch_scc1 F1_cpf2")
        a("s_getpc_b64 s[46:47]")
        a.label('F1_pcref2')
        a("v_lshlrev_b32 v4, 6, v0"); a("v_mov_b32 v5, s47"); a("v_add_co_u32 v4, vcc, s46, v4"); a("v_addc_co_u32 v5, vcc, 0, v5, vcc")
        a(f"v_cmp_gt_u32 vcc, (k3_kernel-F1_pcref2)/64, v0"); a("s_and_saveexec_b64 s[48:49], vcc")
        a("s_cbranch_execz F1_cpf1")
        a("global_load_dword v153, v[4:5], off")
        a.label('F1_cpf1'); a("s_mov_b64 exec, -1")
        a.label('F1_cpf2'); a.flush()
    a("s_and_b32 s3, s38, 7"); a("s_mul_i32 s3, s3, 56"); a("s_lshr_b32 s39, s38, 3"); a("s_add_u32 s3, s3, s39")
    a(f"s_mov_b32 s40, {hx(L_HI)}"); a(f"s_mov_b32 s41, {hx(L_LO)}"); a(f"s_mov_b32 s42, {hx(LN2)}")
    a(f"s_mov_b32 s43, {hx(I2P_HI)}"); a(f"s_mov_b32 s44, {hx(I2P_LO)}")
    a("s_lshl_b32 s36, s3, 9"); a("s_lshl_b32 s37, s3, 1")
    a("v_lshlrev_b32 v1, 1, v0"); a("v_mov_b32 v2, s37")
    a("s_waitcnt lgkmcnt(0)"); stamp(a,1)
    a("buffer_load_ushort v3, v2, s[28:31], 0 offen")
    for i in range(6): a(f"buffer_load_ushort v{4+i}, v1, s[{4+4*i}:{7+4*i}], s36 offen")
    a("v_and_b32 v10, 63, v0"); a("v_and_b32 v11, 15, v0"); a("v_bfe_u32 v12, v0, 4, 2"); a("v_lshrrev_b32 v13, 6, v0")
    a("v_mov_b32 v14, v11")
    a("v_lshlrev_b32 v15, 1, v11"); a("v_add_u32 v15, 240, v15")
    a("v_cmp_le_u32_e64 s[46:47], 8, v11"); a("v_cmp_le_u32_e64 s[48:49], 12, v11"); a("v_cmp_le_u32_e64 s[50:51], 14, v11")
    a("v_lshlrev_b32 v20, 2, v11"); a("v_add_u32 v21, 464, v20"); a("v_add_u32 v20, 712, v20")
    a("v_cndmask_b32_e64 v14, v14, v15, s[46:47]"); a("v_cndmask_b32_e64 v14, v14, v21, s[48:49]"); a("v_cndmask_b32_e64 v14, v14, v20, s[50:51]")
    a("v_cvt_f32_u32 v16, v14"); a("v_sub_f32 v17, 0, v16")
    a("v_lshlrev_b32 v15, 3, v11"); a("v_cvt_f32_u32 v18, v15"); a("v_mov_b32 v19, v18")
    ACC=112; SA=154
    a(f"v_mul_u32_u24 v2, {TABN*4}, v13")
    a("v_cmp_le_u32_e64 s[46:47], 2, v12"); a("v_cmp_eq_u32_e64 s[48:49], 3, v12")
    a("v_add_u32 v20, -1, v12"); a("v_max_i32 v20, 0, v20"); a("v_sub_u32 v21, 3, v20")
    a("v_lshlrev_b32 v22, v21, v11")
    a("v_lshlrev_b32 v23, 2, v12"); a("v_lshlrev_b32 v24, 7, v12"); a("v_cndmask_b32_e64 v23, v23, v24, s[46:47]")
    a("v_add_u32 v22, v22, v23"); a(f"v_lshl_add_u32 v{SA}, v22, 2, v2")
    a(f"v_add_u32 v24, 248, v{SA}"); a(f"v_cndmask_b32_e64 v{SA+1}, v{SA}, v24, s[48:49]")
    a("v_mov_b32 v25, 64"); a("v_lshlrev_b32 v24, v21, v25")
    a(f"v_add_u32 v{SA+2}, v{SA}, v24"); a(f"v_add_u32 v{SA+3}, v{SA+1}, v24")
    a("v_lshl_add_u32 v22, v12, 5, v11"); a(f"v_lshl_add_u32 v{SA+4}, v22, 2, v2")
    scat=[]
    for C in range(2):
        for r in range(4): scat.append((SA+2*C+(r>>1), 4*r, ACC+4*C+r))
        scat.append((SA+4, 2048+64*C, ACC+8+4*C))
    a("v_and_b32 v24, 3, v11")
    for e in range(4): a(f"v_cmp_eq_u32_e64 s[{46+2*e}:{47+2*e}], {e}, v24")
    for e in range(4): a(f"v_cndmask_b32_e64 v{20+e}, 0, -1, s[{46+2*e}:{47+2*e}]")
    a("v_lshlrev_b32 v159, 6, v13"); a("v_lshl_add_u32 v159, v12, 2, v159")
    a("v_add_u32 v15, v159, v24"); a("v_lshlrev_b32 v15, 5, v15"); a("v_lshrrev_b32 v24, 2, v11"); a("v_lshl_add_u32 v15, v24, 3, v15")
    a(f"v_add_u32 v15, {kloop.T2}, v15")
    a("v_lshlrev_b32 v159, 5, v159")
    for i in range(16): a(f"v_mov_b32 v{ACC+i}, 0")
    a("s_waitcnt vmcnt(6)")
    a("v_lshlrev_b32 v3, 16, v3")
    exp_acc(a, 40, 3, 41, 42, 40, 41, 42)
    rnd1(a, 40, 41)
    a("s_waitcnt vmcnt(0)"); stamp(a,2)
    for i in range(6): a(f"v_lshlrev_b32 v{4+i}, 16, v{4+i}")
    a("v_mul_f32 v4, v40, v4"); a("v_mul_f32 v5, v40, v5"); a("v_mul_f32 v6, v40, v6"); a("v_mul_f32 v7, v40, v7")
    a("v_mul_f32 v24, s40, v4")
    a("v_mul_f32 v25, s43, v5"); a("v_and_b32 v25, 0xffffff00, v25")
    a("v_fma_f32 v26, v5, s43, -v25"); a("v_fma_f32 v26, v5, s44, v26")
    cmul(a, 28, 8, 6, 36)
    a("v_sub_f32 v29, 0, v29")
    ds=[(30,128,+1,48),(32,1024,-1,56),(34,256,-1,64)]
    for (dst,l,sg,T) in ds: a(f"v_mov_b32 v{T}, {hx(float(l))}"); a(f"v_mov_b32 v{T+1}, {hx(float(sg*l))}")
    for (dst,l,sg,T) in ds: a(f"v_pk_mul_f32 v[{T+4}:{T+5}], v[24:25], v[{T}:{T+1}]")
    for (dst,l,sg,T) in ds: a(f"v_exp_f32 v{T+2}, v{T+4}")
    for (dst,l,sg,T) in ds: a(f"v_fract_f32 v{T+5}, v{T+5}")
    for (dst,l,sg,T) in ds: a(f"v_fma_f32 v{T+5}, v26, v{T+1}, v{T+5}")
    for (dst,l,sg,T) in ds: a(f"v_cos_f32 v{T+4}, v{T+5}"); a(f"v_sin_f32 v{T+5}, v{T+5}")
    for (dst,l,sg,T) in ds: a(f"v_pk_mul_f32 v[{dst}:{dst+1}], v[{T+4}:{T+5}], v[{T+2}:{T+3}] op_sel:[0,0] op_sel_hi:[1,0]")
    a("v_lshlrev_b32 v1, 5, v0")
    a(f"ds_write_b128 v1, v[24:27] offset:{REC}"); a(f"ds_write_b128 v1, v[28:31] offset:{REC+16}")
    cmul(a, 72, 32, 28, 36); cmul(a, 74, 72, 34, 36); cmul(a, 76, 74, 34, 36); cmul(a, 78, 76, 34, 36)
    a("v_mul_f32 v44, v78, v34"); a("v_fma_f32 v44, -v79, v35, v44")
    for sidx in range(4):
        x=72+2*sidx; h=80+2*sidx; T=48+2*sidx
        a(f"v_cvt_pk_bf16_f32 v{h}, v{x}, v{x+1}")
        a(f"v_lshlrev_b32 v{T}, 16, v{h}"); a(f"v_and_b32 v{T+1}, 0xffff0000, v{h}")
        a(f"v_pk_add_f32 v[{T}:{T+1}], v[{x}:{x+1}], v[{T}:{T+1}] neg_lo:[0,1] neg_hi:[0,1]")
        a(f"v_cvt_pk_bf16_f32 v{h+1}, v{T}, v{T+1}")
    a(f"ds_write_b128 v1, v[80:83] offset:{kloop.T2}"); a(f"ds_write_b128 v1, v[84:87] offset:{kloop.T2+16}")
    wave_red(a, [44])
    a("v_cmp_eq_u32 vcc, 63, v10"); a("s_and_saveexec_b64 s[46:47], vcc")
    a(f"ds_write_b32 v2, v44 offset:{TAB+640*4}")
    a("s_mov_b64 exec, s[46:47]")
    a("v_mov_b32 v1, v159")
    a("v_mov_b32 v3, 128")
    stamp(a,3)
    a("s_waitcnt lgkmcnt(0)")
    kloop.PLACE=1
    kloop.v2(a, 4, standalone=False, hook=lambda: a("buffer_load_dword v4, v3, s[60:63], 0 offen sc1"))
    stamp(a,4)
    a(f"s_setprio {PREPPRIO}")
    srd_load(a,4,'w_gate'); srd_load(a,8,'w_up'); srd_load(a,16,'w_down')
    a("v_lshrrev_b32 v5, 1, v0"); a("v_mul_u32_u24 v5, 14336, v5"); a("v_and_b32 v6, 1, v0"); a("v_lshl_add_u32 v5, v6, 4, v5")
    a("s_lshl_b32 s12, s3, 5"); a(f"s_add_u32 s12, s12, {WS_NB}")
    a("s_lshl_b32 s14, s3, 2"); a("v_mov_b32 v7, s14")
    a("v_lshlrev_b32 v6, 4, v0")
    a("v_readfirstlane_b32 s48, v13")
    def nloads():
        a("buffer_load_dwordx4 v[80:83], v5, s[32:35], s12 offen sc1")
        a(f"buffer_load_dword v9, v7, s[32:35], 0 offen offset:{WS_MOD} sc1")
        a(f"buffer_load_dword v14, v7, s[32:35], 0 offen offset:{WS_MOD+1792} sc1")
    a("s_waitcnt vmcnt(0)")
    a("v_readfirstlane_b32 s13, v4")
    a("s_cmp_eq_u32 s13, 0"); a("s_cbranch_scc1 F1_notyet")
    nloads()
    a.label('F1_notyet'); a.flush(); stamp(a,5)
    for i in range(4): a(f"v_mov_b32 v{140+i}, 0")
    for C in range(2):
        b=ACC+8+4*C
        a(f"v_add_f32 v{b}, v{b}, v{b+1}"); a(f"v_add_f32 v{b+2}, v{b+2}, v{b+3}"); a(f"v_add_f32 v{b}, v{b}, v{b+2}")
    for (sa,off,src) in scat: a(f"ds_write_b32 v{sa}, v{src} offset:{TAB+off}")
    a("v_cmp_gt_u32 vcc, 30, v0"); a("s_and_saveexec_b64 s[46:47], vcc")
    a(f"ds_write_b128 v6, v[140:143] offset:{C_KH}"); a(f"ds_write_b128 v6, v[140:143] offset:{C_KL}")
    a("v_cmp_gt_u32 vcc, 2, v0"); a("s_and_b64 exec, exec, vcc")
    a(f"ds_write_b128 v6, v[140:143] offset:{C_H0+4096}"); a(f"ds_write_b128 v6, v[140:143] offset:{C_H1+4100}")
    a("s_mov_b64 exec, s[46:47]")
    AA=20; BA=21
    a(f"v_lshlrev_b32 v{AA}, 5, v11"); a(f"v_lshl_add_u32 v{AA}, v12, 4, v{AA}"); a(f"v_lshl_add_u32 v{AA}, v13, 7, v{AA}")
    a(f"v_and_b32 v{BA}, 14, v11"); a(f"v_lshlrev_b32 v{BA}, 1, v{BA}")
    a("v_lshlrev_b32 v16, 4, v12"); a(f"v_sub_u32 v{BA}, v16, v{BA}")
    a("v_and_b32 v16, 1, v11"); a(f"v_mul_u32_u24 v16, {C_H1-C_H0}, v16")
    a(f"v_add_u32 v{BA}, v{BA}, v16"); a(f"v_add_u32 v{BA}, {C_H0+3616-512*7}, v{BA}"); a(f"v_lshl_add_u32 v{BA}, v13, 7, v{BA}")
    for q in range(1,4): a(f"v_add_u32 v{BA+q}, {1024*q}, v{BA}")
    a("v_sub_u32 v8, 4080, v6")
    a("s_waitcnt lgkmcnt(0)"); a("s_barrier"); stamp(a,6)
    W4=TABN; EB=28
    def rd2(dst, j, w): a(f"ds_read2_b32 v[{dst}:{dst+1}], v{EB+w} offset0:{j} offset1:{j+1}")
    a("s_cmp_eq_u32 s48, 0"); a("s_cbranch_scc1 F1_expA")
    a("s_cmp_eq_u32 s48, 1"); a("s_cbranch_scc1 F1_expB")
    a(f"v_lshlrev_b32 v{EB}, 2, v0"); a(f"v_add_u32 v{EB}, {TAB+384*4}, v{EB}")
    for w in range(1,4): a(f"v_add_u32 v{EB+w}, {W4*4*w}, v{EB}")
    for w in range(4): rd2(32+2*w, 0, w)
    a("v_and_b32 v16, 1, v0"); a("v_cmp_eq_u32 vcc, 1, v16")
    a("s_waitcnt lgkmcnt(0)")
    for j in range(2):
        a(f"v_add_f32 v{32+j}, v{32+j}, v{34+j}"); a(f"v_add_f32 v{36+j}, v{36+j}, v{38+j}")
    a("v_add_f32 v64, v32, v36"); a("v_add_f32 v69, v33, v37")
    a("v_cndmask_b32_e64 v68, v64, v69, vcc")
    a("v_mov_b32 v65, v64"); a("v_mov_b32 v66, v64"); a("v_mov_b32 v67, v64"); a("v_mov_b32 v70, v69"); a("v_mov_b32 v71, v69")
    a("s_branch F1_expD")
    a.label('F1_expB'); a.flush()
    a(f"v_lshlrev_b32 v{EB}, 3, v0"); a(f"v_add_u32 v{EB}, {TAB+256*4}, v{EB}")
    for w in range(1,4): a(f"v_add_u32 v{EB+w}, {W4*4*w}, v{EB}")
    for w in range(4): rd2(32+4*w, 0, w); rd2(34+4*w, 2, w)
    a("s_waitcnt lgkmcnt(0)")
    for j in range(3):
        a(f"v_add_f32 v{32+j}, v{32+j}, v{36+j}"); a(f"v_add_f32 v{40+j}, v{40+j}, v{44+j}")
    a("v_add_f32 v64, v32, v40"); a("v_add_f32 v67, v33, v41"); a("v_add_f32 v70, v34, v42")
    a("v_mov_b32 v65, v64"); a("v_mov_b32 v66, v64"); a("v_mov_b32 v68, v67"); a("v_mov_b32 v69, v67"); a("v_mov_b32 v71, v70")
    a("s_branch F1_expD")
    a.label('F1_expA'); a.flush()
    a(f"v_lshlrev_b32 v{EB}, 5, v0"); a("v_lshlrev_b32 v16, 4, v0"); a("v_add_u32 v16, 512, v16")
    a("v_cmp_gt_u32 vcc, 32, v0"); a(f"v_cndmask_b32_e64 v{EB}, v16, v{EB}, vcc"); a(f"v_add_u32 v{EB}, {TAB}, v{EB}")
    for w in range(1,4): a(f"v_add_u32 v{EB+w}, {W4*4*w}, v{EB}")
    for w in range(4):
        for j in range(0,8,2): rd2(32+8*w+j, j, w)
    a("s_waitcnt lgkmcnt(0)")
    for j in range(8):
        a(f"v_add_f32 v{32+j}, v{32+j}, v{40+j}"); a(f"v_add_f32 v{48+j}, v{48+j}, v{56+j}"); a(f"v_add_f32 v{32+j}, v{32+j}, v{48+j}")
    t1=[0,0,1,2,2,2,3,4]
    for e in range(8): a(f"v_cndmask_b32_e64 v{64+e}, v{32+t1[e]}, v{32+e}, vcc")
    a.label('F1_expD'); a.flush()
    for j in range(4):
        x=64+2*j
        a(f"v_cvt_pk_bf16_f32 v{72+j}, v{x}, v{x+1}")
        a(f"v_lshlrev_b32 v{32+2*j}, 16, v{72+j}"); a(f"v_and_b32 v{33+2*j}, 0xffff0000, v{72+j}")
        a(f"v_pk_add_f32 v[{32+2*j}:{33+2*j}], v[{x}:{x+1}], v[{32+2*j}:{33+2*j}] neg_lo:[0,1] neg_hi:[0,1]")
        a(f"v_cvt_pk_bf16_f32 v{76+j}, v{32+2*j}, v{33+2*j}")
    a(f"ds_write_b128 v6, v[72:75] offset:{C_KH+480}"); a(f"ds_write_b128 v6, v[76:79] offset:{C_KL+480}")
    a("s_cmp_lg_u32 s13, 0"); a("s_cbranch_scc1 F1_ready")
    a("s_setprio 0")
    a("s_mov_b32 s45, 0")
    a.label('F1_poll')
    a("buffer_load_dword v4, v3, s[60:63], 0 offen sc1")
    a("s_waitcnt vmcnt(0)")
    a("v_readfirstlane_b32 s13, v4")
    a("s_cmp_lg_u32 s13, 0"); a("s_cbranch_scc1 F1_got")
    a("s_add_u32 s45, s45, 1"); a("s_cmp_ge_u32 s45, 0x40000"); a("s_cbranch_scc1 F1_got")
    a("s_sleep 2")
    a("s_branch F1_poll")
    a.label('F1_got'); a.flush()
    a("s_setprio 2")
    nloads()
    a.label('F1_ready'); a.flush()
    a("s_waitcnt vmcnt(0)"); stamp(a,7)
    a("v_add_f32 v14, 1.0, v14"); rnd1(a, 14, 15)
    unpack8(a, 80, [48+e for e in range(8)])
    for e in range(0,8,2):
        h0,h1=48+e,49+e
        a(f"v_mul_f32 v{h0}, v{h0}, v14"); a(f"v_mul_f32 v{h1}, v{h1}, v14"); rnd2(a,h0,h1,15)
        a(f"v_add_f32 v{h0}, v{h0}, v9"); a(f"v_add_f32 v{h1}, v{h1}, v9")
    for j in range(4): a(f"v_cvt_pk_bf16_f32 v{60+j}, v{48+7-2*j}, v{48+6-2*j}")
    for j in range(1,4): a(f"v_cvt_pk_bf16_f32 v{64+j}, v{48+8-2*j}, v{48+7-2*j}")
    a(f"ds_write_b128 v8, v[60:63] offset:{C_H1+4}")
    a(f"ds_write_b16 v8, v60 offset:{C_H0+2}")
    a(f"ds_write_b32 v8, v65 offset:{C_H0+4}")
    a(f"ds_write_b64 v8, v[66:67] offset:{C_H0+8}")
    a(f"ds_write_b16_d16_hi v8, v63 offset:{C_H0+16}")
    a("v_bfe_u32 v16, v11, 1, 2"); a("v_xor_b32 v16, v16, v12"); a("v_lshlrev_b32 v16, 4, v16")
    a("v_lshl_add_u32 v16, v11, 6, v16"); a("v_lshl_add_u32 v16, v13, 13, v16")
    a("v_and_b32 v4, 1, v0"); a("v_lshlrev_b32 v4, 1, v4"); a("v_bfe_u32 v17, v0, 2, 2")
    a("v_xor_b32 v18, v4, v17"); a("v_xor_b32 v19, 1, v18")
    a("v_lshrrev_b32 v17, 1, v0"); a("v_lshlrev_b32 v17, 6, v17")
    a("v_lshl_add_u32 v18, v18, 4, v17"); a("v_lshl_add_u32 v19, v19, 4, v17")
    a("v_mul_u32_u24 v5, 7168, v0")
    a("s_lshl_b32 s12, s3, 4"); a(f"s_add_u32 s12, s12, {WS_YB}")
    ACC2=64; BTS=[96,128]; AT=[28,36,44]
    a("s_and_b32 s22, s2, 7"); a("s_lshr_b32 s23, s38, 3")
    a("s_cmp_ge_u32 s48, 2"); a("s_cbranch_scc1 F1_pfB")
    a("v_lshrrev_b32 v4, 3, v10"); a("v_and_b32 v7, 7, v10"); a("v_lshlrev_b32 v7, 6, v7"); a("v_min_u32 v7, 444, v7")
    a("v_mul_u32_u24 v4, 3584, v4"); a("v_add_u32 v4, v4, v7")
    a("s_mul_i32 s24, s23, 28672"); a("s_mul_i32 s25, s22, 448"); a("s_add_u32 s24, s24, s25")
    a("s_cmp_eq_u32 s48, 1"); a("s_cbranch_scc1 F1_pfU")
    a("buffer_load_dword v3, v4, s[4:7], s24 offen"); a("s_branch F1_pfE")
    a.label('F1_pfU'); a("buffer_load_dword v3, v4, s[8:11], s24 offen"); a("s_branch F1_pfE")
    a.label('F1_pfB'); a.flush()
    a("s_cmp_eq_u32 s48, 3"); a("s_cbranch_scc1 F1_pfC")
    a("s_mul_i32 s24, s22, 224"); a("s_lshl_b32 s25, s23, 2"); a("s_add_u32 s24, s24, s25"); a("s_mul_i32 s24, s24, 896")
    a("v_lshlrev_b32 v4, 6, v10"); a("v_min_u32 v4, 3520, v4")
    a("buffer_load_dword v3, v4, s[16:19], s24 offen"); a("s_branch F1_pfE")
    a.label('F1_pfC'); a.flush()
    if CODEPF:
        a("s_cmp_ge_u32 s23, 3"); a("s_cbranch_scc1 F1_pfE")
        a("s_getpc_b64 s[24:25]")
        a.label('F1_pcref')
        a("s_add_u32 s24, s24, k3_kernel-F1_pcref"); a("s_addc_u32 s25, s25, 0")
        a("s_lshl_b32 s26, s23, 12"); a("v_lshlrev_b32 v4, 6, v10"); a("v_add_u32 v4, s26, v4"); a("v_min_u32 v4, CODE_END-k3_kernel-4, v4")
        a("v_mov_b32 v15, s25"); a("v_add_co_u32 v14, vcc, s24, v4"); a("v_addc_co_u32 v15, vcc, 0, v15, vcc")
        a("global_load_dword v3, v[14:15], off")
    a.label('F1_pfE'); a.flush()
    a("s_waitcnt lgkmcnt(0)"); a("s_barrier"); stamp(a,8)
    a("s_setprio 0")
    if PROF or DIAG: a("s_waitcnt lgkmcnt(0)")
    written,done_at=conv_mfma(a,AA,BA,ACC2,BTS)
    stamp(a,9)
    a("s_setprio 2")
    for c in sorted(set(range(8))-written, key=lambda c: done_at[c]):
        a(f"ds_write_b128 v16, v[{ACC2+4*c}:{ACC2+4*c+3}] offset:{C_P+1024*c}")
    a("s_waitcnt lgkmcnt(0)"); a("s_barrier"); stamp(a,10)
    for w in range(4):
        a(f"ds_read_b128 v[{64+8*w}:{67+8*w}], v18 offset:{C_P+8192*w}")
        a(f"ds_read_b128 v[{68+8*w}:{71+8*w}], v19 offset:{C_P+8192*w}")
    a("s_waitcnt lgkmcnt(0)")
    for e in range(8):
        a(f"v_add_f32 v{64+e}, v{64+e}, v{72+e}"); a(f"v_add_f32 v{80+e}, v{80+e}, v{88+e}"); a(f"v_add_f32 v{64+e}, v{64+e}, v{80+e}")
    for e in range(0,8,2): a(f"v_cvt_pk_bf16_f32 v{20+e//2}, v{64+e}, v{65+e}")
    a("buffer_store_dwordx4 v[20:23], v5, s[32:35], s12 offen"+STF[0])
    prof_end(a,0,11,32)

L3_C=7168
def k3(a):
    a.label('k3_kernel'); a.flush(); stamp(a,0)
    a("s_cmp_ge_u32 s2, 256"); a("s_cbranch_scc1 L3_end")
    srd_load(a,4,'ws'); srd_load(a,8,'w_r'); srd_load(a,12,'out'); srd_load(a,36,'A_u'); srd_load(a,40,'Dskip')
    srd_load(a,44,'w_gate'); srd_load(a,48,'w_up'); srd_load(a,52,'w_down')
    a("v_and_b32 v1, 63, v0"); a("v_lshrrev_b32 v2, 6, v0")
    a("v_lshlrev_b32 v3, 5, v0")
    a("s_mul_i32 s16, s2, 7168"); a(f"s_add_u32 s17, s16, {WS_YB}")
    a("v_lshlrev_b32 v5, 4, v1")
    for i in range(36): a(f"v_mov_b32 v{88+i}, 0")
    a("v_readfirstlane_b32 s18, v2")
    a("v_mul_u32_u24 v6, 896, v2"); a("v_add_u32 v6, v6, v5")
    a("v_lshlrev_b32 v7, 3, v2"); a("s_lshl_b32 s19, s2, 6"); a(f"s_add_u32 s19, s19, {WS_ST}")
    a("s_mov_b32 s30, 0x05040100"); a("s_mov_b32 s31, 0x07060302")
    a("v_cmp_gt_u32 vcc, 224, v0")
    a("s_waitcnt lgkmcnt(0)"); stamp(a,1)
    a("s_cmp_ge_u32 s18, 4"); a("s_cbranch_scc1 L3_cw")
    a("s_and_saveexec_b64 s[20:21], vcc")
    a("buffer_load_dwordx4 v[8:11], v3, s[4:7], s17 offen")
    a("buffer_load_dwordx4 v[12:15], v3, s[4:7], s17 offen offset:16")
    a("s_mov_b64 exec, s[20:21]")
    a("buffer_load_dwordx2 v[124:125], v7, s[4:7], s19 offen")
    a("s_mov_b32 exec_hi, 0x00ffffff")
    a("buffer_load_dwordx4 v[120:123], v6, s[36:39], s16 offen")
    a("s_mov_b32 exec_hi, -1")
    a("v_lshlrev_b32 v3, 2, v0")
    a("s_waitcnt vmcnt(2)"); stamp(a,2)
    a("s_and_saveexec_b64 s[20:21], vcc")
    for j in range(4):
        a(f"v_perm_b32 v{16+2*j}, v{12+j}, v{8+j}, s30"); a(f"v_perm_b32 v{17+2*j}, v{12+j}, v{8+j}, s31")
    for j in range(8): a(f"ds_write_b32 v3, v{16+j} offset:{896*j}")
    a("s_mov_b64 exec, s[20:21]")
    a("s_branch L3_join")
    a.label('L3_cw'); a.flush()
    a("s_sub_u32 s22, s18, 4"); a("s_mul_i32 s22, s22, 1792"); a(f"s_add_u32 s23, s22, {L3_C}"); a("s_mov_b32 m0, s23")
    a(f"s_add_u32 s22, s22, {WS_MODB}")
    a("s_mov_b32 exec_hi, 0x00ffffff")
    a("s_cmp_eq_u32 s18, 7"); a("s_cbranch_scc1 L3_cw7")
    a("buffer_load_dwordx4 v5, s[4:7], s22 offen lds")
    a("buffer_load_dwordx4 v5, s[4:7], s22 offen offset:896 lds")
    a("s_branch L3_cw8")
    a.label('L3_cw7'); a.flush()
    a("buffer_load_dwordx4 v5, s[40:43], 0 offen lds")
    a("s_add_u32 s23, s23, 896"); a("s_mov_b32 m0, s23")
    a("buffer_load_dwordx4 v5, s[8:11], 0 offen lds")
    a.label('L3_cw8'); a.flush()
    a("buffer_load_dwordx4 v[120:123], v6, s[36:39], s16 offen")
    a("s_mov_b32 exec_hi, -1")
    a("buffer_load_dwordx2 v[124:125], v7, s[4:7], s19 offen")
    if PREFETCH==2:
        a("s_and_b32 s33, s2, 7"); a("s_lshr_b32 s34, s2, 3")
        a("v_subrev_u32 v16, 256, v0")
        a("v_subrev_u32 v17, 112, v16"); a("v_cmp_gt_u32 vcc, 112, v16"); a("s_mov_b64 s[56:57], vcc"); a("v_cndmask_b32_e64 v17, v17, v16, vcc")
        a("v_lshrrev_b32 v18, 3, v17"); a("v_and_b32 v19, 7, v17"); a("v_lshlrev_b32 v19, 6, v19"); a("v_min_u32 v19, 444, v19")
        a("v_mul_u32_u24 v18, 3584, v18"); a("v_add_u32 v18, v18, v19")
        a("s_mul_i32 s35, s34, 50176"); a("s_mul_i32 s58, s33, 448"); a("s_add_u32 s35, s35, s58")
        a("s_mul_i32 s58, s33, 224"); a("s_mul_i32 s59, s34, 7"); a("s_add_u32 s58, s58, s59"); a("s_mul_i32 s58, s58, 896")
        a("v_lshlrev_b32 v19, 6, v16")
        a("v_cmp_gt_u32 vcc, 224, v16"); a("s_mov_b64 s[60:61], vcc"); a("v_cmp_gt_u32 vcc, 98, v16"); a("s_mov_b64 s[62:63], vcc")
        a("s_waitcnt vmcnt(0)")
        a("s_andn2_b64 s[60:61], s[60:61], s[56:57]")
        a("s_mov_b64 exec, s[56:57]"); a("buffer_load_dword v127, v18, s[44:47], s35 offen")
        a("s_mov_b64 exec, s[60:61]"); a("buffer_load_dword v127, v18, s[48:51], s35 offen")
        a("s_mov_b64 exec, s[62:63]"); a("buffer_load_dword v127, v19, s[52:55], s58 offen")
        a("s_mov_b64 exec, -1")
        a("s_branch L3_join2")
    a.label('L3_join'); a.flush()
    a("s_waitcnt vmcnt(0)")
    a.label('L3_join2'); a.flush()
    X0=[24+e for e in range(8)]; H1=[32+e for e in range(8)]
    for i in range(4): a(f"v_mov_b32 v{8+i}, 0")
    unpack8(a, 120, X0)
    a("v_mov_b32 v126, v125")
    ln_norm(a, X0, H1, 124, None, 126, 48)
    a("s_waitcnt lgkmcnt(0)"); a("s_barrier"); stamp(a,3)
    a("s_mov_b32 exec_hi, 0x00ffffff")
    for k in (1,0,6): a(f"ds_read_b128 v[{88+4*k}:{91+4*k}], v5 offset:{L3_C+896*k}")
    a("ds_read_b128 v[8:11], v6")
    for k in (2,4,3,7,5): a(f"ds_read_b128 v[{88+4*k}:{91+4*k}], v5 offset:{L3_C+896*k}")
    a("s_mov_b32 exec_hi, -1")
    T=[64+e for e in range(8)]; T2_=[72+e for e in range(8)]; T3=[80+e for e in range(8)]
    a("s_waitcnt lgkmcnt(6)")
    unpack8(a, 92, T); unpack8(a, 88, T2_); unpack8(a, 112, T3)
    for e in range(0,8,2):
        h0,h1=H1[e],H1[e+1]
        pk(a,'mul',h0,h0,T[e]); rnd2(a,h0,h1,48)
        pk(a,'add',h0,h0,T2_[e]); rnd2(a,h0,h1,48)
        pk(a,'mul',h0,h0,T3[e]); rnd2(a,h0,h1,48)
    a("s_waitcnt lgkmcnt(4)")
    X=[[16+e for e in range(8)]]
    unpack8(a, 8, X[0]); unpack8(a, 96, T)
    for e in range(0,8,2):
        y0,y1=X[0][e],X[0][e+1]
        pk(a,'add',y0,y0,H1[e]); rnd2(a,y0,y1,48)
        pk(a,'mul',y0,y0,T[e]); rnd2(a,y0,y1,48)
        pk(a,'add',y0,y0,X0[e])
        a(f"v_cvt_pk_bf16_f32 v{8+e//2}, v{y0}, v{y1}")
        a(f"v_lshlrev_b32 v{y0}, 16, v{8+e//2}"); a(f"v_and_b32 v{y1}, 0xffff0000, v{8+e//2}")
    a("v_add_u32 v6, s16, v6")
    a(f"s_mov_b32 s17, {WS_X1}")
    a("s_mov_b32 exec_hi, 0x00ffffff")
    a("buffer_store_dwordx4 v[8:11], v6, s[4:7], s17 offen"+STF[1])
    a("s_mov_b32 exec_hi, -1")
    mean,sd,ri = ln_stats(a, X, 1, [32], 34, 28)
    H=[[48+e for e in range(8)]]
    ln_norm(a, X[0], H[0], mean[0], sd[0], ri[0], 46)
    stamp(a,4)
    a("s_waitcnt lgkmcnt(0)")
    unpack8(a, 104, T); unpack8(a, 100, T2_); unpack8(a, 116, T3)
    for e in range(0,8,2):
        h0,h1=H[0][e],H[0][e+1]
        pk(a,'mul',h0,h0,T[e]); rnd2(a,h0,h1,46)
        pk(a,'add',h0,h0,T2_[e])
        a(f"v_cvt_pk_bf16_f32 v{24+e//2}, v{h0}, v{h1}")
        a(f"v_lshlrev_b32 v{h0}, 16, v{24+e//2}"); a(f"v_and_b32 v{h1}, 0xffff0000, v{24+e//2}")
        if e==0: pk(a,'mul',32,h0,T3[e])
        else: pk(a,'fma',32,h0,T3[e],32)
    a("v_add_f32 v32, v32, v33")
    a(f"s_mov_b32 s17, {WS_H2}")
    a("s_mov_b32 exec_hi, 0x00ffffff")
    a("buffer_store_dwordx4 v[24:27], v6, s[4:7], s17 offen"+STF[1])
    a("s_mov_b32 exec_hi, -1")
    unpack8(a, 108, T)
    wave_red(a,[32])
    for e in range(0,8,2):
        h0,h1=H[0][e],H[0][e+1]
        pk(a,'mul',h0,h0,T[e]); rnd2(a,h0,h1,46)
        pk(a,'add',h0,h0,X[0][e])
        a(f"v_cvt_pk_bf16_f32 v{28+e//2}, v{h0}, v{h1}")
    a("v_cvt_pk_bf16_f32 v34, v32, v32")
    a("s_lshl_b32 s16, s2, 3"); a("v_add_u32 v35, s16, v2")
    a("v_and_b32 v36, 0xffff, v34")
    a("v_bfe_i32 v37, v36, 15, 1"); a("v_or_b32 v37, 0x8000, v37"); a("v_xor_b32 v36, v36, v37")
    a("v_sub_u32 v38, 2047, v35"); a("v_lshl_or_b32 v40, v36, 16, v38")
    a("v_lshlrev_b32 v35, 2, v35")
    a("s_mov_b32 exec_hi, 0x00ffffff")
    a("buffer_store_dwordx4 v[28:31], v6, s[12:15], 0 offen"+STF[1])
    a("s_mov_b32 exec_lo, 0"); a("s_mov_b32 exec_hi, 0x80000000")
    a(f"s_mov_b32 s17, {WS_R}")
    a("buffer_store_dword v40, v35, s[4:7], s17 offen")
    prof_end(a,1,5,4)
    a.label('L3_end'); a("s_endpgm")

def topk(a, K0, lds_off, TK):
    K=[K0+i for i in range(8)]
    free=K0+8
    net=[(0,1),(2,3),(4,5),(6,7),(0,2),(1,3),(4,6),(5,7),(1,2),(5,6),(0,4),(3,7),(1,5),(2,6),(1,4),(3,6),(2,4),(3,5),(3,4)]
    for (i,j) in net:
        a(f"v_max_u32 v{free}, v{K[i]}, v{K[j]}"); a(f"v_min_u32 v{K[j]}, v{K[i]}, v{K[j]}")
        K[i],free = free,K[i]
    T=K0+9
    pend=[]
    def fill(n=2):
        for _ in range(n):
            if pend: a(pend.pop(0))
    for rnd in range(8):
        zero=' bound_ctrl:0'
        fill()
        a(f"v_max_u32_dpp v{T}, v{K[0]}, v{K[0]} row_shr:1 row_mask:0xf bank_mask:0xf{zero}")
        for sh in (2,4,8):
            fill(); a(f"v_max_u32_dpp v{T}, v{T}, v{T} row_shr:{sh} row_mask:0xf bank_mask:0xf{zero}")
        fill(); a(f"v_max_u32_dpp v{T}, v{T}, v{T} row_bcast:15 row_mask:0xa bank_mask:0xf")
        fill(); a(f"v_max_u32_dpp v{T}, v{T}, v{T} row_bcast:31 row_mask:0xc bank_mask:0xf")
        assert not pend
        a(f"v_readlane_b32 s{TK+rnd}, v{T}, 63")
        if rnd<7:
            a(f"v_cmp_eq_u32_e64 s[20:21], s{TK+rnd}, v{K[0]}")
            a(f"v_cndmask_b32_e64 v{K[0]}, v{K[0]}, v{K[1]}, s[20:21]")
            for i in range(1,7-rnd): pend.append(f"v_cndmask_b32_e64 v{K[i]}, v{K[i]}, v{K[i+1]}, s[20:21]")
    Q=K0+12
    for i in range(8): a(f"v_mov_b32 v{Q+i}, s{TK+i}")
    a(f"v_lshlrev_b32 v{T}, 5, v2")
    a("v_cmp_eq_u32 vcc, 0, v1"); a("s_and_saveexec_b64 s[20:21], vcc")
    a(f"ds_write_b128 v{T}, v[{Q}:{Q+3}] offset:{lds_off}"); a(f"ds_write_b128 v{T}, v[{Q+4}:{Q+7}] offset:{lds_off+16}")
    a("s_mov_b64 exec, s[20:21]")
    a(f"v_and_b32 v{T}, 31, v1"); a(f"v_lshlrev_b32 v{T}, 2, v{T}")
    a(f"v_mov_b32 v{T+2}, 0")
    a("s_waitcnt lgkmcnt(0)"); a("s_barrier")
    a(f"ds_read_b32 v{T+1}, v{T} offset:{lds_off}")
    A0=K0+20
    for j in range(8): a(f"ds_read_b128 v[{A0+4*j}:{A0+4*j+3}], v{T+2} offset:{lds_off+16*j}")
    a("s_waitcnt lgkmcnt(0)")
    R=[K0,K0+1,K0+2,K0+3]
    for r in R: a(f"v_mov_b32 v{r}, 0")
    for j0 in range(0,32,4):
        for q in range(4): a(f"v_cmp_gt_u32_e64 s[{22+2*q}:{23+2*q}], v{A0+j0+q}, v{T+1}")
        for q in range(4): a(f"v_addc_co_u32_e64 v{R[q]}, s[{22+2*q}:{23+2*q}], 0, v{R[q]}, s[{22+2*q}:{23+2*q}]")
    a(f"v_add_u32 v{R[0]}, v{R[0]}, v{R[1]}"); a(f"v_add_u32 v{R[2]}, v{R[2]}, v{R[3]}"); a(f"v_add_u32 v{R[0]}, v{R[0]}, v{R[2]}")
    for r0 in range(0,8,4):
        for q in range(4): a(f"v_cmp_eq_u32_e64 s[{22+2*q}:{23+2*q}], {r0+q}, v{R[0]}")
        for q in range(4): a(f"s_ff1_i32_b32 s{22+2*q}, s{22+2*q}")
        for q in range(4): a(f"v_readlane_b32 s{TK+r0+q}, v{T+1}, s{22+2*q}")

L4_W=0; L4_WD=14336; L4_RED=L4_WD+7168; L4_TK=L4_RED+4096; L4_ACT=L4_TK+256; L4_LDS=L4_ACT+4*128
def k4(a):
    a.label('k4_kernel'); a.flush(); stamp(a,0)
    a("s_cmp_ge_u32 s2, 224"); a("s_cbranch_scc1 L4_end")
    srd_load(a,4,'ws'); srd_load(a,8,'w_gate'); srd_load(a,12,'w_up'); srd_load(a,48,'w_down')
    a(f"s_mov_b32 s30, {hx(L_HI)}"); a(f"s_mov_b32 s31, {hx(L_LO)}"); a(f"s_mov_b32 s32, {hx(LN2)}")
    a("v_and_b32 v1, 63, v0"); a("v_lshrrev_b32 v2, 6, v0")
    a("s_and_b32 s16, s2, 7"); a("s_mul_i32 s16, s16, 28"); a("s_lshr_b32 s17, s2, 3"); a("s_add_u32 s16, s16, s17")
    a("s_lshl_b32 s17, s16, 4")
    a("v_lshrrev_b32 v3, 1, v1"); a("v_lshl_add_u32 v3, v2, 5, v3"); a("v_mul_u32_u24 v3, 3584, v3"); a("v_add_u32 v3, s17, v3")
    a("v_readfirstlane_b32 s18, v2")
    a("v_lshlrev_b32 v4, 5, v0"); a("v_lshlrev_b32 v10, 4, v0")
    a(f"s_mov_b32 s19, {WS_R}")
    a("s_mul_i32 s33, s16, 7168")
    a("s_waitcnt lgkmcnt(0)"); stamp(a,1)
    a("s_cmp_ge_u32 s18, 4"); a("s_cbranch_scc0 L4_cmp")
    a("s_sub_u32 s18, s18, 4")
    a("v_subrev_u32 v3, 458752, v3")
    a("v_subrev_u32 v10, 4096, v10")
    a("s_lshl_b32 s22, s18, 10")
    a("s_mov_b32 s24, 0x55555555"); a("s_mov_b32 s25, 0x55555555"); a("s_mov_b32 s26, 0xaaaaaaaa"); a("s_mov_b32 s27, 0xaaaaaaaa")
    for it in range(3):
        a(f"s_add_u32 s23, s22, {L4_W+4096*it}"); a("s_mov_b32 m0, s23"); a(f"s_mov_b32 s28, {128*3584*it}")
        a("s_mov_b64 exec, s[24:25]"); a("buffer_load_dwordx4 v3, s[8:11], s28 offen lds")
        a("s_mov_b64 exec, s[26:27]"); a("buffer_load_dwordx4 v3, s[12:15], s28 offen lds")
    a("s_mov_b64 exec, -1")
    a("s_cmp_ge_u32 s18, 2"); a("s_cbranch_scc1 L4_alt")
    a(f"s_add_u32 s23, s22, {L4_W+4096*3}"); a("s_mov_b32 m0, s23"); a(f"s_mov_b32 s28, {128*3584*3}")
    a("s_mov_b64 exec, s[24:25]"); a("buffer_load_dwordx4 v3, s[8:11], s28 offen lds")
    a("s_mov_b64 exec, s[26:27]"); a("buffer_load_dwordx4 v3, s[12:15], s28 offen lds")
    a("s_mov_b64 exec, -1")
    a(f"s_add_u32 s23, s22, {L4_WD}"); a("s_mov_b32 m0, s23")
    a("buffer_load_dwordx4 v10, s[48:51], s33 offen lds")
    a("s_branch L4_dmadone")
    a.label('L4_alt'); a.flush()
    a(f"s_add_u32 s23, s22, {L4_WD}"); a("s_mov_b32 m0, s23")
    a("buffer_load_dwordx4 v10, s[48:51], s33 offen lds")
    a("buffer_load_dwordx4 v10, s[48:51], s33 offen offset:2048 lds")
    a("s_cmp_eq_u32 s18, 2"); a("s_cselect_b32 s28, 2048, 0"); a("s_add_u32 s23, s23, s28"); a("s_mov_b32 m0, s23"); a("s_add_u32 s28, s28, s33")
    a("buffer_load_dwordx4 v10, s[48:51], s28 offen offset:2048 lds")
    a.label('L4_dmadone'); a.flush()
    a("s_barrier")
    a("s_waitcnt vmcnt(0)")
    a("s_barrier")
    a("s_endpgm")
    a.label('L4_cmp'); a.flush()
    a("buffer_load_dwordx4 v[16:19], v4, s[4:7], s19 offen"); a("buffer_load_dwordx4 v[20:23], v4, s[4:7], s19 offen offset:16")
    a("s_waitcnt vmcnt(0)"); stamp(a,2)
    TK=40
    topk(a, 16, L4_TK, TK)
    stamp(a,3)
    a("v_and_b32 v5, 7, v1"); a("v_mov_b32 v6, 0")
    for i in range(8):
        a(f"s_and_b32 s20, s{TK+i}, 0xffff"); a("s_sub_u32 s20, 2047, s20"); a("s_mul_i32 s20, s20, 896")
        a(f"v_cmp_eq_u32_e64 s[34:35], {i}, v5"); a("v_mov_b32 v7, s20"); a("v_cndmask_b32_e64 v6, v6, v7, s[34:35]")
    a("v_lshrrev_b32 v7, 4, v1"); a("v_lshl_add_u32 v6, v7, 4, v6"); a("v_lshl_add_u32 v6, v2, 6, v6")
    a(f"s_mov_b32 s19, {WS_H2}")
    for it in range(4): a(f"buffer_load_dwordx4 v[{16+4*it}:{19+4*it}], v6, s[4:7], s19 offen offset:{256*it}")
    a("s_cmp_lg_u32 s2, 0"); a("s_cbranch_scc1 L4_nokeys")
    for i in range(8): a(f"v_mov_b32 v{64+i}, s{TK+i}")
    a("v_mov_b32 v72, 0"); a(f"s_mov_b32 s19, {WS_IDX}")
    a("v_cmp_eq_u32 vcc, 0, v0"); a("s_and_saveexec_b64 s[20:21], vcc")
    a("buffer_store_dwordx4 v[64:67], v72, s[4:7], s19 offen"); a("buffer_store_dwordx4 v[68:71], v72, s[4:7], s19 offen offset:16")
    a("s_mov_b64 exec, s[20:21]")
    a.label('L4_nokeys'); a.flush(); a.nop(2)
    a("v_and_b32 v8, 3, v1"); a("v_bfe_u32 v9, v1, 2, 2"); a("v_lshl_add_u32 v9, v7, 3, v9")
    a("v_lshlrev_b32 v9, 5, v9"); a("v_lshl_add_u32 v9, v8, 3, v9"); a("v_lshl_add_u32 v9, v2, 10, v9")
    for i in range(4): a(f"v_mov_b32 v{60+i}, 0")
    a("v_and_b32 v11, 1, v7"); a("v_bfe_u32 v12, v1, 2, 2"); a("v_lshl_add_u32 v11, v11, 2, v12"); a("v_mul_u32_u24 v11, 896, v11")
    a("v_lshl_add_u32 v11, v8, 3, v11"); a("v_mul_u32_u24 v12, 224, v2"); a("v_add_u32 v11, v11, v12")
    a("s_barrier")
    for it in range(4):
        a(f"ds_read_b64_tr_b16 v[{32+4*it}:{33+4*it}], v9 offset:{L4_W+4096*it}")
        a(f"ds_read_b64_tr_b16 v[{34+4*it}:{35+4*it}], v9 offset:{L4_W+4096*it+128}")
    a("s_waitcnt vmcnt(0)"); stamp(a,4)
    for it in range(4):
        if it==3:
            a("s_cmp_ge_u32 s18, 2"); a("s_cbranch_scc1 L4_mmdone")
        a(f"s_waitcnt lgkmcnt({6-2*it})" if not (PROF or DIAG) else "s_waitcnt lgkmcnt(0)")
        a(f"v_mfma_f32_16x16x32_bf16 v[60:63], v[{16+4*it}:{19+4*it}], v[{32+4*it}:{35+4*it}], v[60:63]")
    a.label('L4_mmdone'); a.flush(); a.nop(8)
    a(f"ds_write_b128 v10, v[60:63] offset:{L4_RED}")
    a("v_lshlrev_b32 v13, 4, v1")
    a("s_waitcnt lgkmcnt(0)"); a("s_barrier"); stamp(a,5)
    for w in range(4): a(f"ds_read_b128 v[{16+4*w}:{19+4*w}], v13 offset:{L4_RED+1024*w}")
    for dt in range(7): a(f"ds_read_b64_tr_b16 v[{40+2*dt}:{41+2*dt}], v11 offset:{L4_WD+32*dt}")
    a("s_waitcnt lgkmcnt(7)")
    for r in range(4):
        a(f"v_add_f32 v{16+r}, v{16+r}, v{20+r}"); a(f"v_add_f32 v{24+r}, v{24+r}, v{28+r}"); a(f"v_add_f32 v{16+r}, v{16+r}, v{24+r}")
    rnd2(a,16,17,32); rnd2(a,18,19,32)
    for r in range(4): a(f"v_mul_f32 v{64+r}, s30, v{16+r}")
    for r in range(4): a(f"v_fma_f32 v{68+r}, v{16+r}, s30, -v{64+r}")
    for r in range(4): a(f"v_fma_f32 v{68+r}, v{16+r}, s31, v{68+r}")
    for r in range(4): a(f"v_exp_f32_e64 v{64+r}, -v{64+r}")
    for r in range(4): a(f"v_mul_f32 v{68+r}, s32, v{68+r}")
    for r in range(4): a(f"v_fma_f32 v{64+r}, v{64+r}, -v{68+r}, v{64+r}")
    for r in range(4): a(f"v_add_f32 v{64+r}, 1.0, v{64+r}")
    for r in range(4): a(f"v_rcp_f32 v{68+r}, v{64+r}")
    for r in range(4): a(f"v_mov_b32_dpp v{24+r}, v{16+r} row_ror:8 row_mask:0xf bank_mask:0xf")
    for r in range(4): div_acc(a, 20+r, 16+r, 64+r, 68+r, 72+r)
    rnd2(a,20,21,32); rnd2(a,22,23,32)
    for r in range(4): a(f"v_mul_f32 v{20+r}, v{20+r}, v{24+r}")
    a("v_cvt_pk_bf16_f32 v28, v20, v21"); a("v_cvt_pk_bf16_f32 v29, v22, v23")
    a("v_and_b32 v5, 15, v1")
    a("v_lshlrev_b32 v14, 6, v7"); a("v_lshl_add_u32 v14, v5, 1, v14"); a("v_lshl_add_u32 v14, v2, 7, v14")
    a("s_mov_b32 exec_lo, 0x00ff00ff"); a("s_mov_b32 exec_hi, 0")
    a(f"ds_write_b16 v14, v28 offset:{L4_ACT}"); a(f"ds_write_b16_d16_hi v14, v28 offset:{L4_ACT+16}")
    a(f"ds_write_b16 v14, v29 offset:{L4_ACT+32}"); a(f"ds_write_b16_d16_hi v14, v29 offset:{L4_ACT+48}")
    if DEBUG_ACT:
        a("v_mul_u32_u24 v6, 14336, v7"); a("v_lshl_add_u32 v6, v5, 1, v6"); a("v_add_u32 v6, s17, v6")
        a(f"s_mov_b32 s19, {WS_ACT}")
        a("buffer_store_short v28, v6, s[4:7], s19 offen"); a("buffer_store_short_d16_hi v28, v6, s[4:7], s19 offen offset:3584")
        a(f"s_add_u32 s19, s19, 7168")
        a("buffer_store_short v29, v6, s[4:7], s19 offen"); a("buffer_store_short_d16_hi v29, v6, s[4:7], s19 offen offset:3584")
    a("s_mov_b64 exec, -1")
    a("v_mov_b32 v30, 0"); a("v_mov_b32 v31, 0")
    a("v_lshlrev_b32 v14, 4, v5"); a("v_lshl_add_u32 v14, v7, 3, v14"); a("v_lshl_add_u32 v14, v2, 7, v14")
    a("s_mov_b32 exec_lo, 0x00ff00ff"); a("s_mov_b32 exec_hi, 0")
    a(f"ds_read_b64 v[30:31], v14 offset:{L4_ACT}")
    a("s_mov_b64 exec, -1")
    a("v_mul_u32_u24 v15, 28, v5"); a("v_mul_u32_u24 v12, 7, v2"); a("v_add_u32 v15, v15, v12"); a("v_mul_u32_u24 v15, 14336, v15")
    a("v_lshl_add_u32 v15, v7, 4, v15")
    a("s_lshl_b32 s19, s16, 6"); a(f"s_add_u32 s19, s19, {WS_P}")
    a("s_waitcnt lgkmcnt(0)")
    for dt in range(7):
        a(f"v_mfma_f32_16x16x16_bf16 v[{64+4*dt}:{67+4*dt}], v[{40+2*dt}:{41+2*dt}], v[30:31], 0")
    a("s_mov_b32 exec_lo, 0x00ff00ff"); a("s_mov_b32 exec_hi, 0x00ff00ff")
    for dt in range(7):
        a(f"buffer_store_dwordx4 v[{64+4*dt}:{67+4*dt}], v15, s[4:7], s19 offen"+STF[2])
        if dt<6: a(f"s_add_u32 s19, s19, 14336")
    prof_end(a,2,6,4)
    a.label('L4_end'); a("s_endpgm")

def k5(a):
    a.label('k5_kernel'); a.flush(); stamp(a,0)
    a("s_cmp_ge_u32 s2, 224"); a("s_cbranch_scc1 L5_end")
    srd_load(a,4,'ws'); srd_load(a,12,'out')
    a(f"s_mov_b32 s30, {hx(L_HI)}"); a(f"s_mov_b32 s31, {hx(L_LO)}"); a(f"s_mov_b32 s32, {hx(LN2)}")
    a("s_mul_hi_u32 s16, s2, 153391690"); a("s_mul_i32 s17, s16, 28"); a("s_sub_u32 s17, s2, s17")
    a("v_lshlrev_b32 v4, 4, v0")
    a("s_mul_i32 s19, s2, 14336"); a(f"s_add_u32 s19, s19, {WS_P}")
    a("s_lshl_b32 s20, s16, 2"); a(f"s_add_u32 s20, s20, {WS_IDX}")
    a("v_mov_b32 v5, 0"); a("v_mov_b32 v12, 0")
    for i in range(4): a(f"v_mov_b32 v{28+i}, 0")
    a("s_waitcnt lgkmcnt(0)"); stamp(a,1)
    a("buffer_load_dword v40, v5, s[4:7], s20 offen")
    for it in range(3):
        a(f"buffer_load_dwordx4 v[{16+4*it}:{19+4*it}], v4, s[4:7], s19 offen"); a("s_add_u32 s19, s19, 4096")
    a("v_cmp_gt_u32 vcc, 128, v0"); a("s_and_saveexec_b64 s[22:23], vcc")
    a("s_cbranch_execz L5_skip")
    a("buffer_load_dwordx4 v[28:31], v4, s[4:7], s19 offen")
    a.label('L5_skip'); a("s_mov_b64 exec, s[22:23]")
    a("v_and_b32 v6, 15, v0"); a("v_lshlrev_b32 v7, 2, v6")
    a("s_lshl_b32 s21, s17, 6"); a(f"s_add_u32 s21, s21, {WS_MOD+5*1792}")
    a("buffer_load_dword v41, v7, s[4:7], s21 offen")
    a("v_readfirstlane_b32 s24, v0")
    a("s_cmp_lg_u32 s24, 0"); a("s_cbranch_scc1 L5_nogather")
    a("s_waitcnt vmcnt(5)"); stamp(a,2)
    a("v_and_b32 v8, 0xffff, v40"); a("v_sub_u32 v8, 2047, v8")
    a("s_lshl_b32 s25, s17, 4"); a("v_add_u32 v9, s25, v6")
    a(f"s_mov_b32 s26, {WS_X1}"); a(f"s_mov_b32 s27, {WS_H2}")
    a("v_mul_u32_u24 v12, 896, v8"); a("v_lshl_add_u32 v12, v9, 1, v12")
    a("buffer_load_ushort v42, v12, s[4:7], s26 offen")
    a("buffer_load_ushort v43, v12, s[4:7], s27 offen")
    a("v_lshrrev_b32 v33, 16, v40"); a("v_bfe_i32 v34, v33, 15, 1")
    a("v_not_b32 v34, v34"); a("v_or_b32 v34, 0x8000, v34"); a("v_xor_b32 v33, v33, v34"); a("v_lshlrev_b32 v33, 16, v33")
    exp_acc(a, 34, 33, 35, 36, 30, 31, 32, neg=True)
    a("v_add_f32 v34, 1.0, v34"); a("v_rcp_f32 v35, v34"); a("v_mov_b32 v37, 1.0")
    div_acc(a, 44, 37, 34, 35, 36)
    rnd1(a,44,35)
    a("s_waitcnt vmcnt(3)")
    a("s_branch L5_sum")
    a.label('L5_nogather'); a.flush()
    a("s_waitcnt vmcnt(1)")
    a.label('L5_sum'); a.flush(); stamp(a,3)
    for i in range(4):
        a(f"v_add_f32 v{16+i}, v{16+i}, v{20+i}"); a(f"v_add_f32 v{24+i}, v{24+i}, v{28+i}"); a(f"v_add_f32 v{16+i}, v{16+i}, v{24+i}")
    for sh in (4,8):
        for i in range(4): a(f"v_add_f32_dpp v{16+i}, v{16+i}, v{16+i} row_ror:{sh} row_mask:0xf bank_mask:0xf")
    a("v_lshrrev_b32 v13, 4, v0"); a("v_lshlrev_b32 v13, 6, v13"); a("v_and_b32 v14, 3, v0"); a("v_lshl_add_u32 v13, v14, 4, v13")
    a("v_and_b32 v14, 12, v0"); a("v_cmp_eq_u32 vcc, 0, v14"); a("s_and_saveexec_b64 s[22:23], vcc")
    a("ds_write_b128 v13, v[16:19]")
    a("s_mov_b64 exec, s[22:23]")
    a("s_waitcnt lgkmcnt(0)"); a("s_barrier"); stamp(a,4)
    a("s_cmp_lg_u32 s24, 0"); a("s_cbranch_scc1 L5_end")
    for p in range(16): a(f"ds_read_b32 v{48+p}, v7 offset:{64*p}")
    a("s_waitcnt lgkmcnt(0) vmcnt(0)")
    for st in (8,4,2,1):
        for p in range(st): a(f"v_add_f32 v{48+p}, v{48+p}, v{48+p+st}")
    rnd1(a,48,35)
    a("v_mul_f32 v48, v48, v44"); rnd1(a,48,35)
    a("v_lshlrev_b32 v42, 16, v42"); a("v_lshlrev_b32 v43, 16, v43")
    a("v_add_f32 v48, v48, v43"); rnd1(a,48,35)
    a("v_mul_f32 v48, v48, v41"); rnd1(a,48,35)
    a("v_add_f32 v48, v48, v42"); a("v_cvt_pk_bf16_f32 v48, v48, v48")
    a("s_mov_b32 exec_lo, 0xffff"); a("s_mov_b32 exec_hi, 0")
    a("buffer_store_short v48, v12, s[12:15], 0 offen")
    prof_end(a,3,5,4)
    if DIAG:
        a("s_cmp_lg_u32 s2, 223"); a("s_cbranch_scc1 L5_end")
        a("s_load_dwordx2 s[88:89], s[0:1], 136"); a("s_waitcnt lgkmcnt(0)")
        a("s_sub_u32 s84, s88, 1536"); a("s_subb_u32 s85, s89, 0"); a("s_mov_b32 s86, 2048"); a("s_mov_b32 s87, 0x20000")
        a("s_sleep 100")
        a("v_lshrrev_b32 v1, 2, v0"); a("v_lshlrev_b32 v1, 9, v1"); a("v_and_b32 v2, 3, v0"); a("v_lshl_add_u32 v1, v2, 2, v1")
        a("buffer_load_dword v3, v1, s[84:87], 0 offen offset:192 sc1")
        a("s_waitcnt vmcnt(0)")
        a("v_lshlrev_b32 v1, 2, v0")
        a("s_mov_b64 exec, 0xffff")
        a("buffer_store_dword v3, v1, s[84:87], 0 offen offset:1536")
    a.label('L5_end'); a("s_endpgm")

def desc(name, vgpr, sgpr=102):
    return f""".amdhsa_kernel {name}
  .amdhsa_next_free_vgpr {vgpr}
  .amdhsa_next_free_sgpr {sgpr}
  .amdhsa_accum_offset {(vgpr+3)//4*4}
  .amdhsa_group_segment_fixed_size 0
  .amdhsa_kernarg_size 152
  .amdhsa_user_sgpr_count 2
  .amdhsa_user_sgpr_kernarg_segment_ptr 1
  .amdhsa_system_sgpr_workgroup_id_x 1
  .amdhsa_float_denorm_mode_32 3
.end_amdhsa_kernel
"""
DEBUG_ACT=False
PREPPRIO=int(__import__('os').environ.get('PREPPRIO','1'))
STF=[(' '+x if x else '') for x in __import__('os').environ.get('STF',',sc1,sc1').split(',')]
CODEPF=int(__import__('os').environ.get('CODEPF','1'))
PREFETCH=int(__import__('os').environ.get('PREFETCH','1'))
PRIO=int(__import__('os').environ.get('PRIO','2'))
def main(path):
    hdr = open('adaLN_cond__ssm_conv_s4__moe_arch_mod__prompt.s.ref').read().split('; Override')[0]
    pv = 120 if (PROF or DIAG) else 0
    kernels=[('f1_kernel',f1,F1_GRID,256,F1_LDS,160),
             ('k3_kernel',k3,256,512,14336,128),
             ('k4_kernel',k4,224,512,L4_LDS,max(96,pv)),
             ('k5_kernel',k5,224,256,1024,max(64,pv))]
    out=hdr
    for n,f,g,b,l,v in kernels: out+=f"; @launch kernel={n} grid=({g},1,1) block=({b},1,1) lds={l}\n"
    out+='.amdgcn_target "amdgcn-amd-amdhsa--gfx950"\n.text\n'
    for n,f,g,b,l,v in kernels:
        a=Asm()
        a.raw(f".globl {n}\n.p2align 8\n.type {n},@function")
        f(a)
        out+=a.text()
    out+='CODE_END:\n'
    out+='.section .rodata,"a"\n'
    for n,f,g,b,l,v in kernels: out+='.p2align 6\n'+desc(n,v)
    open(path,'w').write(out)

if __name__=='__main__':
    if 'prof' in sys.argv[2:]: PROF=True
    if 'diag' in sys.argv[2:]: DIAG=True
    if 'dbg' in sys.argv[2:]: DEBUG_ACT=True
    main(sys.argv[1] if len(sys.argv)>1 else 'adaLN_cond__ssm_conv_s4__moe_arch_mod__prompt.s')
```

```python
import sys, struct, math
sys.path.insert(0,'work')
from asmlib import Asm
from layout import *
import numpy as np

def f2u(x): return struct.unpack('<I', struct.pack('<f', x))[0]
def hx(x): return '0x%08x' % f2u(x)
LOG2E = 1.4426950408889634; L_HI = float(np.float32(LOG2E)); L_LO = float(np.float32(LOG2E-L_HI))
LN2 = 0.6931471805599453
I2P = 0.15915494309189535; I2P_HI = float(np.float32(I2P)); I2P_LO = float(np.float32(I2P-I2P_HI))
WS_SIZE = 268435456
KA = dict(A_u=0,A_re=8,A_im=16,B_re=24,B_im=32,C_re=40,C_im=48,log_dt=56,Dskip=64,B_x=72,w_r=80,w_gate=88,w_up=96,w_down=104,c=112,w_mod=120,out=128,dbg=136,ws=144)
SZ = dict(A_u=2048*896,A_re=448*512,A_im=448*512,B_re=448*512,B_im=448*512,C_re=448*512,C_im=448*512,log_dt=896,Dskip=896,w_r=896,w_gate=448*3584,w_up=448*3584,w_down=1792*896,c=896,w_mod=448*5376,out=2048*896,dbg=256,ws=WS_SIZE)

def srd_load(a, s, name):
    a(f"s_load_dwordx2 s[{s}:{s+1}], s[0:1], {KA[name]}")
    a(f"s_mov_b32 s{s+2}, {SZ[name]}")
    a(f"s_mov_b32 s{s+3}, 0x20000")

def rnd2(a, x0, x1, tmp):
    a(f"v_cvt_pk_bf16_f32 v{tmp}, v{x0}, v{x1}")
    a(f"v_lshlrev_b32 v{x0}, 16, v{tmp}")
    a(f"v_and_b32 v{x1}, 0xffff0000, v{tmp}")
def rnd1(a, x0, tmp):
    a(f"v_cvt_pk_bf16_f32 v{tmp}, v{x0}, v{x0}")
    a(f"v_lshlrev_b32 v{x0}, 16, v{tmp}")

def wave_red(a, regs, op='v_add_f32'):
    zero = ' bound_ctrl:0'
    for sh in (1,2,4,8):
        for r in regs: a(f"{op}_dpp v{r}, v{r}, v{r} row_shr:{sh} row_mask:0xf bank_mask:0xf{zero}")
    for r in regs: a(f"{op}_dpp v{r}, v{r}, v{r} row_bcast:15 row_mask:0xa bank_mask:0xf")
    for r in regs: a(f"{op}_dpp v{r}, v{r}, v{r} row_bcast:31 row_mask:0xc bank_mask:0xf")

def exp_acc(a, dst, x, t, e, sLhi, sLlo, sLn2, neg=False):
    n = '-' if neg else ''
    a(f"v_mul_f32 v{t}, s{sLhi}, v{x}")
    a(f"v_fma_f32 v{e}, v{x}, s{sLhi}, -v{t}")
    a(f"v_fma_f32 v{e}, v{x}, s{sLlo}, v{e}")
    a(f"v_exp_f32 v{dst}, v{t}" if not neg else f"v_exp_f32_e64 v{dst}, -v{t}")
    a(f"v_mul_f32 v{e}, s{sLn2}, v{e}")
    a(f"v_fma_f32 v{dst}, v{dst}, {n}v{e}, v{dst}")

def div_acc(a, q, num, den, r, e):
    a(f"v_mul_f32 v{q}, v{num}, v{r}")
    a(f"v_fma_f32 v{e}, -v{q}, v{den}, v{num}")
    a(f"v_fma_f32 v{q}, v{e}, v{r}, v{q}")

def cmul(a, d, x, y, t):
    a(f"v_pk_mul_f32 v[{t}:{t+1}], v[{x}:{x+1}], v[{y}:{y+1}] op_sel:[0,0] op_sel_hi:[1,0]")
    a(f"v_pk_fma_f32 v[{d}:{d+1}], v[{x}:{x+1}], v[{y}:{y+1}], v[{t}:{t+1}] op_sel:[1,1,0] op_sel_hi:[0,1,1] neg_lo:[1,0,0]")

def pk(a, op, d, x, y, z=None, bcast1=False, neg1=False):
    m=''
    n = 3 if z is not None else 2
    if bcast1: m += ' op_sel:['+','.join(['0']*n)+'] op_sel_hi:['+','.join(['1','0','1'][:n])+']'
    if neg1: m += ' neg_lo:['+','.join(['0','1','0'][:n])+'] neg_hi:['+','.join(['0','1','0'][:n])+']'
    zz = f", v[{z}:{z+1}]" if z is not None else ''
    a(f"v_pk_{op}_f32 v[{d}:{d+1}], v[{x}:{x+1}], v[{y}:{y+1}]{zz}{m}")

def ln_stats(a, X, nrows, sums, tmp, S0):
    P=tmp+6*nrows
    for i in range(nrows):
        x=X[i][0]
        pk(a,'add',P,x,x+2); pk(a,'add',P+2,x+4,x+6); pk(a,'add',P,P,P+2)
        a(f"v_add_f32 v{sums[i]}, v{P}, v{P+1}")
    wave_red(a, sums)
    for i in range(nrows): a(f"v_readlane_b32 s{S0+i}, v{sums[i]}, 63")
    mean=[tmp+6*i for i in range(nrows)]; sd=[tmp+6*i+2 for i in range(nrows)]; ri=[tmp+6*i+4 for i in range(nrows)]
    a(f"v_mov_b32 v{P+4}, {hx(1.0/448)}")
    for i in range(nrows): a(f"v_mul_f32 v{mean[i]}, s{S0+i}, v{P+4}")
    for i in range(nrows): a(f"v_mov_b32 v{sums[i]}, 0")
    a(f"s_mov_b32 exec_hi, 0x00ffffff")
    for i in range(nrows):
        x=X[i][0]; acc=sd[i]
        pk(a,'add',P,x,mean[i],bcast1=True,neg1=True); pk(a,'add',P+2,x+2,mean[i],bcast1=True,neg1=True)
        pk(a,'mul',acc,P,P); pk(a,'fma',acc,P+2,P+2,acc)
        pk(a,'add',P,x+4,mean[i],bcast1=True,neg1=True); pk(a,'add',P+2,x+6,mean[i],bcast1=True,neg1=True)
        pk(a,'fma',acc,P,P,acc); pk(a,'fma',acc,P+2,P+2,acc)
        a(f"v_add_f32 v{sums[i]}, v{acc}, v{acc+1}")
    a(f"s_mov_b32 exec_hi, -1")
    a.nop(1)
    wave_red(a, sums)
    for i in range(nrows): a(f"v_readlane_b32 s{S0+i}, v{sums[i]}, 63")
    for i in range(nrows): a(f"v_mul_f32 v{sd[i]}, s{S0+i}, v{P+4}")
    for i in range(nrows): rnd2(a, mean[i], sd[i], P+(i&3))
    for i in range(nrows): a(f"v_add_f32 v{sd[i]}, {hx(1e-5)}, v{sd[i]}")
    for i in range(nrows): rnd1(a, sd[i], P+(i&3))
    for i in range(nrows): a(f"v_sqrt_f32 v{sd[i]}, v{sd[i]}")
    for i in range(nrows): rnd1(a, sd[i], P+(i&3))
    for i in range(nrows): a(f"v_rcp_f32 v{ri[i]}, v{sd[i]}")
    return mean, sd, ri

def ln_norm(a, x, out, m, s, ri, t0, final_round=True):
    for e in range(0,8,2):
        pk(a,'add',out[e],x[e],m,bcast1=True,neg1=True)
        rnd2(a, out[e], out[e+1], t0)
        pk(a,'mul',out[e],out[e],ri,bcast1=True)
        if final_round: rnd2(a, out[e], out[e+1], t0)

def unpack8(a, src, dst):
    for i in range(4):
        a(f"v_lshlrev_b32 v{dst[2*i]}, 16, v{src+i}")
        a(f"v_and_b32 v{dst[2*i+1]}, 0xffff0000, v{src+i}")

def idx_of_l(a, dst, lf, lu, t, c128, sc):
    a(f"v_cvt_pk_bf16_f32 v{t}, v{lf}, v{lf}")
    a(f"v_and_b32 v{t}, 0xffff, v{t}")
    a(f"v_subrev_u32 v{t}, {(134<<7)-128}, v{t}")
    a(f"v_cmp_lt_u32_e64 s[{sc}:{sc+1}], v{lu}, v{c128}")
    a(f"v_cndmask_b32_e64 v{dst}, v{t}, v{lu}, s[{sc}:{sc+1}]")

PROF = False
DIAG=False
def diag_end(a, kidx, slots):
    if not DIAG: return
    a("s_memrealtime s[94:95]")
    a("s_load_dwordx2 s[88:89], s[0:1], 136"); a("s_mov_b32 s90, 256"); a("s_mov_b32 s91, 0x20000")
    a("s_mov_b64 exec, 1")
    a("s_waitcnt lgkmcnt(0)")
    a("v_mov_b32 v98, 0")
    a("s_not_b32 s92, s70"); a("v_mov_b32 v99, s92"); a("buffer_atomic_umax v99, v98, s[88:91], 0 offen offset:192 sc1")
    a("v_mov_b32 v99, s94"); a("buffer_atomic_umax v99, v98, s[88:91], 0 offen offset:196 sc1")
    for j,sl in enumerate(slots):
        a(f"v_mov_b32 v99, s{70+2*sl}"); a(f"buffer_atomic_umax v99, v98, s[88:91], 0 offen offset:{200+4*j} sc1")
    a("s_mov_b64 exec, -1")
def stamp(a, i):
    if DIAG: a(f"s_memrealtime s[{70+2*i}:{71+2*i}]")
    if PROF:
        a(f"s_memrealtime s[{70+2*i}:{71+2*i}]")
        if i==0: a("s_memtime s[96:97]")
        if i==8: a("s_memtime s[100:101]")
        if i==9: a("s_memtime s[64:65]")
def prof_end(a, kidx, n, srd):
    if DIAG:
        diag_end(a, kidx, {(0,11):[2,4,7],(0,4):[]}.get((kidx,n),[]))
    if not PROF: return
    stamp(a, n); n+=1
    a("s_memtime s[98:99]")
    a("s_mov_b64 exec, -1")
    a("s_waitcnt lgkmcnt(0)")
    a("s_sub_u32 s98, s98, s96")
    for i in range(n): a(f"v_mov_b32 v{100+i}, s{70+2*i}")
    for i in range(n,12): a(f"v_mov_b32 v{100+i}, 0")
    a("v_lshrrev_b32 v99, 6, v0"); a("v_lshlrev_b32 v99, 6, v99")
    a(f"s_lshl_b32 s69, s2, 9"); a(f"s_add_u32 s69, s69, {WS_PROF+kidx*0x80000}")
    a("v_and_b32 v98, 63, v0"); a("v_cmp_eq_u32 vcc, 0, v98"); a("s_and_saveexec_b64 s[66:67], vcc")
    a("s_getreg_b32 s68, hwreg(HW_REG_HW_ID)"); a("v_mov_b32 v112, s68"); a("s_getreg_b32 s68, hwreg(HW_REG_XCC_ID)"); a("v_mov_b32 v113, s68"); a("v_mov_b32 v114, s98"); a("s_sub_u32 s64, s64, s100"); a("v_mov_b32 v115, s64")
    for j in range(4): a(f"buffer_store_dwordx4 v[{100+4*j}:{103+4*j}], v99, s[{srd}:{srd+3}], s69 offen offset:{16*j}")
    a("s_mov_b64 exec, -1")

N_GEMV=84; N_STAT=128; N_CONV=448; N_PROD=N_GEMV+N_STAT
REC=0; TAB=16384; TABN=664
C_P=0
C_KH=32768; C_KL=C_KH+4608; C_H0=C_KH+9216; C_H1=C_H0+4160+12
F1_LDS=C_H1+4160+4
assert C_H1%16==12 and F1_LDS%16==0

N_SIG=128+28; F1_GRID=668
def sig(a, lbl):
    a("v_mov_b32 v1, 0"); a("v_mov_b32 v2, 1"); a("v_mov_b32 v3, 1")
    a("v_cmp_eq_u32 vcc, 0, v0"); a("s_and_saveexec_b64 s[34:35], vcc")
    a(f"s_cbranch_execz {lbl}")
    a("buffer_atomic_add v2, v1, s[36:39], 0 offen sc0 sc1")
    a("s_waitcnt vmcnt(0)")
    a("v_readfirstlane_b32 s33, v2")
    a(f"s_cmp_lg_u32 s33, {N_SIG-1}"); a(f"s_cbranch_scc1 {lbl}")
    a("buffer_store_dword v3, v1, s[36:39], 0 offen offset:128 sc1")

def f1(a):
    a.label('f1_kernel'); stamp(a,0)
    a(f"s_cmp_ge_u32 s2, {F1_GRID}"); a("s_cbranch_scc1 F1_end")
    a("s_cmp_ge_u32 s2, 660"); a("s_cbranch_scc1 F1_cpf")
    a("s_sub_u32 s50, s2, 576")
    a("s_cmp_ge_u32 s2, 604"); a("s_cbranch_scc1 F1_lowg")
    a("s_cmp_ge_u32 s2, 156"); a("s_cbranch_scc1 F1_conv")
    a("s_setprio 3")
    a("s_sub_u32 s50, s2, 128")
    a.label('F1_lowg')
    srd_load(a,4,'A_u'); srd_load(a,12,'ws'); srd_load(a,36,'dbg'); srd_load(a,52,'w_mod'); srd_load(a,56,'c')
    a(f"s_mov_b32 s30, {hx(L_HI)}"); a(f"s_mov_b32 s31, {hx(L_LO)}"); a(f"s_mov_b32 s32, {hx(LN2)}")
    a("s_mov_b32 s3, s2")
    a("s_cmp_ge_u32 s2, 128"); a("s_cbranch_scc1 F1_gemv")
    a("v_and_b32 v1, 63, v0"); a("v_lshrrev_b32 v2, 6, v0")
    a("s_mul_i32 s16, s3, 14336")
    a("v_mul_u32_u24 v3, 3584, v2"); a("v_lshl_add_u32 v3, v1, 4, v3")
    for i in range(16): a(f"v_mov_b32 v{96+i}, 0")
    a("s_waitcnt lgkmcnt(0)"); stamp(a,1)
    a("s_mov_b32 exec_hi, 0x00ffffff")
    for i in range(4): a(f"buffer_load_dwordx4 v[{96+4*i}:{99+4*i}], v3, s[4:7], s16 offen offset:{896*i}")
    a("s_mov_b32 exec_hi, -1")
    a("v_and_b32 v4, 15, v1"); a("v_lshlrev_b32 v4, 4, v4"); a("v_lshlrev_b32 v5, 3, v2"); a("v_xor_b32 v4, v4, v5")
    a("v_lshl_add_u32 v4, v1, 8, v4")
    a("v_lshlrev_b32 v7, 5, v2")
    a("s_lshl_b32 s18, s3, 7"); a(f"s_add_u32 s18, s18, {WS_ST}")
    a("v_lshlrev_b32 v5, 4, v0"); a("v_bfe_u32 v6, v0, 4, 4"); a("v_lshlrev_b32 v6, 4, v6"); a("v_xor_b32 v6, v6, v5")
    a(f"s_add_u32 s16, s16, {WS_NB}"); a("s_add_u32 s17, s16, 4096"); a("s_add_u32 s19, s16, 8192"); a("s_add_u32 s20, s16, 12288")
    a("s_waitcnt vmcnt(0)"); stamp(a,2)
    X=[[24+8*i+e for e in range(8)] for i in range(4)]
    for i in range(4): unpack8(a, 96+4*i, X[i])
    mean,sd,ri = ln_stats(a, X, 4, [56,57,58,59], 60, 64)
    for i in range(4): ln_norm(a, X[i], X[i], mean[i], sd[i], ri[i], 92+(i&1), final_round=False)
    a("s_mov_b32 exec_hi, 0x00ffffff")
    for e in range(8):
        q=16+2*(e&3)
        a(f"v_cvt_pk_bf16_f32 v{q}, v{X[0][e]}, v{X[1][e]}"); a(f"v_cvt_pk_bf16_f32 v{q+1}, v{X[2][e]}, v{X[3][e]}")
        a(f"v_xor_b32 v{92+(e&3)}, {32*e}, v4")
        a(f"ds_write_b64 v{92+(e&3)}, v[{q}:{q+1}]")
    a("s_mov_b32 exec_hi, -1")
    for i in range(4):
        a(f"v_mov_b32 v{8+2*i}, v{mean[i]}"); a(f"v_mov_b32 v{9+2*i}, v{ri[i]}")
    a("v_cmp_gt_u32 vcc, 128, v0")
    a("s_waitcnt lgkmcnt(0)"); a("s_barrier"); stamp(a,3)
    for it in range(4): a(f"ds_read_b128 v[{24+4*it}:{27+4*it}], v6 offset:{4096*it}")
    for it,sr in enumerate((16,17,19)):
        a(f"s_waitcnt lgkmcnt({3-it})")
        a(f"buffer_store_dwordx4 v[{24+4*it}:{27+4*it}], v5, s[12:15], s{sr} offen sc1")
    a("s_waitcnt lgkmcnt(0)")
    a("s_and_saveexec_b64 s[34:35], vcc")
    a("s_cbranch_execz F1_st3")
    a("buffer_store_dwordx4 v[36:39], v5, s[12:15], s20 offen sc1")
    a.label('F1_st3'); a("s_mov_b64 exec, s[34:35]")
    a("s_waitcnt vmcnt(0)"); a("s_barrier")
    a("s_mov_b32 exec_lo, 1"); a("s_mov_b32 exec_hi, 0")
    a("buffer_store_dwordx4 v[8:11], v7, s[12:15], s18 offen")
    a("buffer_store_dwordx4 v[12:15], v7, s[12:15], s18 offen offset:16")
    a("s_mov_b64 exec, -1")
    prof_end(a,0,4,12)
    sig(a,'F1_end')
    a("s_endpgm")
    a.label('F1_gemv'); a.flush()
    for i in range(7): a(f"s_mov_b32 s{20+i}, {344064*i}")
    a("v_lshrrev_b32 v1, 2, v0"); a("v_and_b32 v2, 3, v0")
    a("v_mul_u32_u24 v3, 5376, v1"); a("v_lshl_add_u32 v3, v2, 4, v3")
    a("s_lshl_b32 s33, s50, 6"); a("v_add_u32 v3, s33, v3")
    a("v_lshlrev_b32 v4, 1, v1")
    a("s_waitcnt lgkmcnt(0)")
    for i in range(7): a(f"buffer_load_ushort v{8+i}, v4, s[56:59], 0 offen offset:{128*i}")
    for i in range(7): a(f"buffer_load_dwordx4 v[{16+4*i}:{19+4*i}], v3, s[52:55], s{20+i} offen")
    a("s_waitcnt vmcnt(7)")
    R7=range(7)
    for i in R7: a(f"v_lshlrev_b32 v{8+i}, 16, v{8+i}")
    for i in R7: a(f"v_mul_f32 v{68+i}, s30, v{8+i}")
    for i in R7: a(f"v_fma_f32 v{76+i}, v{8+i}, s30, -v{68+i}")
    for i in R7: a(f"v_fma_f32 v{76+i}, v{8+i}, s31, v{76+i}")
    for i in R7: a(f"v_exp_f32_e64 v{68+i}, -v{68+i}")
    for i in R7: a(f"v_mul_f32 v{76+i}, s32, v{76+i}")
    for i in R7: a(f"v_fma_f32 v{68+i}, v{68+i}, -v{76+i}, v{68+i}")
    for i in R7: a(f"v_add_f32 v{68+i}, 1.0, v{68+i}")
    for i in R7: a(f"v_rcp_f32 v{76+i}, v{68+i}")
    for i in R7: a(f"v_mul_f32 v{84+i}, v{8+i}, v{76+i}")
    for i in R7: a(f"v_fma_f32 v{68+i}, -v{84+i}, v{68+i}, v{8+i}")
    for i in R7: a(f"v_fma_f32 v{84+i}, v{68+i}, v{76+i}, v{84+i}")
    for i in R7: a(f"v_cvt_pk_bf16_f32 v{84+i}, v{84+i}, v{84+i}")
    for i in R7: a(f"v_lshlrev_b32 v{68+2*i}, 16, v{84+i}")
    for e in range(8): a(f"v_mov_b32 v{48+e}, 0")
    for i in R7:
        a(f"s_waitcnt vmcnt({6-i})")
        for j in range(4):
            t=56+2*(j&1)
            a(f"v_lshlrev_b32 v{t}, 16, v{16+4*i+j}"); a(f"v_and_b32 v{t+1}, 0xffff0000, v{16+4*i+j}")
            pk(a,'fma',48+2*j,t,68+2*i,48+2*j,bcast1=True)
    for sh in (4,8):
        for e in range(8): a(f"v_add_f32_dpp v{48+e}, v{48+e}, v{48+e} row_ror:{sh} row_mask:0xf bank_mask:0xf")
    a("v_lshrrev_b32 v5, 4, v0"); a("v_lshlrev_b32 v5, 7, v5"); a("v_lshl_add_u32 v5, v2, 5, v5")
    a("v_and_b32 v6, 12, v0"); a("v_cmp_eq_u32 vcc, 0, v6")
    a("s_and_saveexec_b64 s[34:35], vcc")
    a("ds_write_b128 v5, v[48:51] offset:16384"); a("ds_write_b128 v5, v[52:55] offset:16400")
    a("s_mov_b64 exec, s[34:35]")
    a("s_waitcnt lgkmcnt(0)"); a("s_barrier")
    a("v_lshlrev_b32 v5, 2, v0")
    a("v_cmp_gt_u32 vcc, 32, v0"); a("s_and_saveexec_b64 s[34:35], vcc")
    a("s_cbranch_execz F1_end")
    for p in range(16): a(f"ds_read_b32 v{16+p}, v5 offset:{16384+128*p}")
    a("s_waitcnt lgkmcnt(0)")
    for st in (8,4,2,1):
        for p in range(st): a(f"v_add_f32 v{16+p}, v{16+p}, v{16+p+st}")
    rnd1(a, 16, 17)
    a("s_lshl_b32 s33, s50, 7"); a("v_add_u32 v5, s33, v5")
    a(f"buffer_store_dword v16, v5, s[12:15], 0 offen offset:{WS_MOD} sc1")
    a("s_sub_u32 s33, s50, 14"); a("s_cmp_lt_u32 s33, 14"); a("s_cselect_b32 s28, 1.0, 0")
    a("s_sub_u32 s33, s50, 56"); a("s_cmp_lt_u32 s33, 14"); a("s_cselect_b32 s28, 1.0, s28")
    a("v_add_f32 v18, s28, v16"); a("v_cvt_pk_bf16_f32 v18, v18, v18")
    a("v_lshrrev_b32 v6, 1, v5"); a(f"s_mov_b32 s33, {WS_MODB}")
    a("s_waitcnt vmcnt(0)")
    a("buffer_store_short v18, v6, s[12:15], s33 offen")
    a("s_cmp_ge_u32 s50, 28"); a("s_cbranch_scc1 F1_end")
    sig(a,'F1_end')
    a("s_endpgm")
    a.label('F1_cpf'); a.flush()
    a("s_getpc_b64 s[24:25]")
    a.label('F1_pcref')
    a("v_lshlrev_b32 v4, 6, v0"); a("v_add_u32 v6, 16384, v4")
    a("v_min_u32 v4, CODE_END-F1_pcref-4, v4"); a("v_min_u32 v6, CODE_END-F1_pcref-4, v6")
    a("v_mov_b32 v15, s25"); a("v_add_co_u32 v14, vcc, s24, v4"); a("v_addc_co_u32 v15, vcc, 0, v15, vcc")
    a("v_mov_b32 v17, s25"); a("v_add_co_u32 v16, vcc, s24, v6"); a("v_addc_co_u32 v17, vcc, 0, v17, vcc")
    a("global_load_dword v3, v[14:15], off"); a("global_load_dword v5, v[16:17], off")
    a("s_endpgm")
    a.label('F1_conv'); a.flush()
    conv_role(a)
    a.label('F1_end'); a("s_endpgm")

def conv_mfma(a,AA,BA,ACC2,BTS,NOLDS=False,NOMF=False,hook=None):
    bases=[BA,BA+1,BA+2,BA+3]
    ops=[]
    def issue(tag,text):
        if (not NOLDS) or (NOLDS is not True and NOLDS!=1 and tag[0] in NOLDS): a(text)
        ops.append(tag)
    pendq=[]
    real_issue=issue
    def defer(tag,text): pendq.append((tag,text))
    def drain(n=1):
        for _ in range(n):
            if pendq: real_issue(*pendq.pop(0))
    def wait(tags):
        idx=max(i for i,t in enumerate(ops) if t in tags)
        a(f"s_waitcnt lgkmcnt({min(len(ops)-1-idx,15)})")
    def bload(rr,m):
        k=7-m; bs=bases[k>>1]; off=(k&1)*128+16*rr; BT=BTS[rr]
        issue(('B',rr,m), f"ds_read2_b32 v[{BT+4*m}:{BT+4*m+1}], v{bs} offset0:{off} offset1:{off+1}")
        issue(('B',rr,m), f"ds_read2_b32 v[{BT+4*m+2}:{BT+4*m+3}], v{bs} offset0:{off+2} offset1:{off+3}")
    groups=[(rr,k) for rr in range(2) for k in range(4)]
    ATG=[28,44]
    def aload(gi):
        rr,k=groups[gi]; b=ATG[gi&1]
        for j,s_ in enumerate((k,7-k)):
            off=64*(8*s_+rr)
            issue(('A',gi,2*j), f"ds_read_b128 v[{b+8*j}:{b+8*j+3}], v{AA} offset:{C_KH+off}")
            issue(('A',gi,2*j+1), f"ds_read_b128 v[{b+8*j+4}:{b+8*j+7}], v{AA} offset:{C_KL+off}")
    issue(('A',0,0), f"ds_read_b128 v[{ATG[0]}:{ATG[0]+3}], v{AA} offset:{C_KH}")
    for m in range(8): bload(0,m)
    issue(('A',0,1), f"ds_read_b128 v[{ATG[0]+4}:{ATG[0]+7}], v{AA} offset:{C_KL}")
    issue(('A',0,2), f"ds_read_b128 v[{ATG[0]+8}:{ATG[0]+11}], v{AA} offset:{C_KH+64*56}")
    issue(('A',0,3), f"ds_read_b128 v[{ATG[0]+12}:{ATG[0]+15}], v{AA} offset:{C_KL+64*56}")
    last=[-99]*8; inited=[False]*8; slot=0; waited=set()
    remaining={c: sum(1 for (rr,k) in groups for s_ in (k,7-k) if c>=s_)*2 for c in range(8)}
    done_at={}; written=set()
    for gi,(rr,k) in enumerate(groups):
        drain(99)
        if gi==4 and hook: hook()
        issue=defer
        if gi+1<len(groups): aload(gi+1)
        if rr==0:
            for m in range(2*k,2*k+2): bload(1,m)
        for c in list(done_at):
            if c not in written and slot-done_at[c]>=0:
                issue(('W',c), f"ds_write_b128 v16, v[{ACC2+4*c}:{ACC2+4*c+3}] offset:{C_P+1024*c}"); written.add(c)
        b=ATG[gi&1]; BT=BTS[rr]
        todo=[(c,j,hl) for j,s_ in enumerate((k,7-k)) for hl in range(2) for c in range(s_,8)]
        while todo:
            if gi==0 and slot<8: pick=(slot,0,0)
            else:
                cnt={}
                for (c,j,hl) in todo: cnt[c]=cnt.get(c,0)+1
                pick=max(todo, key=lambda t:(min(slot-last[t[0]],3), cnt[t[0]], slot-last[t[0]], -t[1], -t[2]))
            todo.remove(pick); c,j,hl=pick
            s_=(k,7-k)[j]
            need={('A',gi,2*j+hl),('B',rr,c-s_)}-waited
            if need: wait(need);
            if need:
                idx=max(i for i,t in enumerate(ops) if t in need)
                waited|=set(ops[:idx+1])
            bt=BT+4*(c-s_); acc=ACC2+4*c; ar=b+8*j+4*hl
            cin = f"v[{acc}:{acc+3}]" if inited[c] else "0"
            if not NOMF: a(f"v_mfma_f32_16x16x32_bf16 v[{acc}:{acc+3}], v[{bt}:{bt+3}], v[{ar}:{ar+3}], {cin}")
            inited[c]=True; last[c]=slot; slot+=1
            if slot%2==0: drain(1)
            remaining[c]-=1
            if remaining[c]==0: done_at[c]=slot
    drain(99)
    return written,done_at

def conv_role(a):
    import kloop
    names=['A_re','A_im','B_re','B_im','C_re','C_im']
    for i,nm in enumerate(names): srd_load(a, 4+4*i, nm)
    srd_load(a,28,'log_dt'); srd_load(a,32,'ws'); srd_load(a,60,'dbg')
    a("s_sub_u32 s38, s2, 156")
    a("s_setprio 1")
    a("s_cmp_lt_u32 s38, 256"); a("s_cbranch_scc1 F1_p1"); a("s_setprio 2")
    a.label('F1_p1')
    if CODEPF>=2:
        a("s_cmp_ge_u32 s38, 16"); a("s_cbranch_scc1 F1_cpf2")
        a("s_getpc_b64 s[46:47]")
        a.label('F1_pcref2')
        a("v_lshlrev_b32 v4, 6, v0"); a("v_mov_b32 v5, s47"); a("v_add_co_u32 v4, vcc, s46, v4"); a("v_addc_co_u32 v5, vcc, 0, v5, vcc")
        a(f"v_cmp_gt_u32 vcc, (k3_kernel-F1_pcref2)/64, v0"); a("s_and_saveexec_b64 s[48:49], vcc")
        a("s_cbranch_execz F1_cpf1")
        a("global_load_dword v153, v[4:5], off")
        a.label('F1_cpf1'); a("s_mov_b64 exec, -1")
        a.label('F1_cpf2'); a.flush()
    a("s_and_b32 s3, s38, 7"); a("s_mul_i32 s3, s3, 56"); a("s_lshr_b32 s39, s38, 3"); a("s_add_u32 s3, s3, s39")
    a(f"s_mov_b32 s40, {hx(L_HI)}"); a(f"s_mov_b32 s41, {hx(L_LO)}"); a(f"s_mov_b32 s42, {hx(LN2)}")
    a(f"s_mov_b32 s43, {hx(I2P_HI)}"); a(f"s_mov_b32 s44, {hx(I2P_LO)}")
    a("s_lshl_b32 s36, s3, 9"); a("s_lshl_b32 s37, s3, 1")
    a("v_lshlrev_b32 v1, 1, v0"); a("v_mov_b32 v2, s37")
    a("s_waitcnt lgkmcnt(0)"); stamp(a,1)
    a("buffer_load_ushort v3, v2, s[28:31], 0 offen")
    for i in range(6): a(f"buffer_load_ushort v{4+i}, v1, s[{4+4*i}:{7+4*i}], s36 offen")
    a("v_and_b32 v10, 63, v0"); a("v_and_b32 v11, 15, v0"); a("v_bfe_u32 v12, v0, 4, 2"); a("v_lshrrev_b32 v13, 6, v0")
    a("v_mov_b32 v14, v11")
    a("v_lshlrev_b32 v15, 1, v11"); a("v_add_u32 v15, 240, v15")
    a("v_cmp_le_u32_e64 s[46:47], 8, v11"); a("v_cmp_le_u32_e64 s[48:49], 12, v11"); a("v_cmp_le_u32_e64 s[50:51], 14, v11")
    a("v_lshlrev_b32 v20, 2, v11"); a("v_add_u32 v21, 464, v20"); a("v_add_u32 v20, 712, v20")
    a("v_cndmask_b32_e64 v14, v14, v15, s[46:47]"); a("v_cndmask_b32_e64 v14, v14, v21, s[48:49]"); a("v_cndmask_b32_e64 v14, v14, v20, s[50:51]")
    a("v_cvt_f32_u32 v16, v14"); a("v_sub_f32 v17, 0, v16")
    a("v_lshlrev_b32 v15, 3, v11"); a("v_cvt_f32_u32 v18, v15"); a("v_mov_b32 v19, v18")
    ACC=112; SA=154
    a(f"v_mul_u32_u24 v2, {TABN*4}, v13")
    a("v_cmp_le_u32_e64 s[46:47], 2, v12"); a("v_cmp_eq_u32_e64 s[48:49], 3, v12")
    a("v_add_u32 v20, -1, v12"); a("v_max_i32 v20, 0, v20"); a("v_sub_u32 v21, 3, v20")
    a("v_lshlrev_b32 v22, v21, v11")
    a("v_lshlrev_b32 v23, 2, v12"); a("v_lshlrev_b32 v24, 7, v12"); a("v_cndmask_b32_e64 v23, v23, v24, s[46:47]")
    a("v_add_u32 v22, v22, v23"); a(f"v_lshl_add_u32 v{SA}, v22, 2, v2")
    a(f"v_add_u32 v24, 248, v{SA}"); a(f"v_cndmask_b32_e64 v{SA+1}, v{SA}, v24, s[48:49]")
    a("v_mov_b32 v25, 64"); a("v_lshlrev_b32 v24, v21, v25")
    a(f"v_add_u32 v{SA+2}, v{SA}, v24"); a(f"v_add_u32 v{SA+3}, v{SA+1}, v24")
    a("v_lshl_add_u32 v22, v12, 5, v11"); a(f"v_lshl_add_u32 v{SA+4}, v22, 2, v2")
    scat=[]
    for C in range(2):
        for r in range(4): scat.append((SA+2*C+(r>>1), 4*r, ACC+4*C+r))
        scat.append((SA+4, 2048+64*C, ACC+8+4*C))
    a("v_and_b32 v24, 3, v11")
    for e in range(4): a(f"v_cmp_eq_u32_e64 s[{46+2*e}:{47+2*e}], {e}, v24")
    for e in range(4): a(f"v_cndmask_b32_e64 v{20+e}, 0, -1, s[{46+2*e}:{47+2*e}]")
    a("v_lshlrev_b32 v159, 6, v13"); a("v_lshl_add_u32 v159, v12, 2, v159")
    a("v_add_u32 v15, v159, v24"); a("v_lshlrev_b32 v15, 5, v15"); a("v_lshrrev_b32 v24, 2, v11"); a("v_lshl_add_u32 v15, v24, 3, v15")
    a(f"v_add_u32 v15, {kloop.T2}, v15")
    a("v_lshlrev_b32 v159, 5, v159")
    for i in range(16): a(f"v_mov_b32 v{ACC+i}, 0")
    a("s_waitcnt vmcnt(6)")
    a("v_lshlrev_b32 v3, 16, v3")
    exp_acc(a, 40, 3, 41, 42, 40, 41, 42)
    rnd1(a, 40, 41)
    a("s_waitcnt vmcnt(0)"); stamp(a,2)
    for i in range(6): a(f"v_lshlrev_b32 v{4+i}, 16, v{4+i}")
    a("v_mul_f32 v4, v40, v4"); a("v_mul_f32 v5, v40, v5"); a("v_mul_f32 v6, v40, v6"); a("v_mul_f32 v7, v40, v7")
    a("v_mul_f32 v24, s40, v4")
    a("v_mul_f32 v25, s43, v5"); a("v_and_b32 v25, 0xffffff00, v25")
    a("v_fma_f32 v26, v5, s43, -v25"); a("v_fma_f32 v26, v5, s44, v26")
    cmul(a, 28, 8, 6, 36)
    a("v_sub_f32 v29, 0, v29")
    ds=[(30,128,+1,48),(32,1024,-1,56),(34,256,-1,64)]
    for (dst,l,sg,T) in ds: a(f"v_mov_b32 v{T}, {hx(float(l))}"); a(f"v_mov_b32 v{T+1}, {hx(float(sg*l))}")
    for (dst,l,sg,T) in ds: a(f"v_pk_mul_f32 v[{T+4}:{T+5}], v[24:25], v[{T}:{T+1}]")
    for (dst,l,sg,T) in ds: a(f"v_exp_f32 v{T+2}, v{T+4}")
    for (dst,l,sg,T) in ds: a(f"v_fract_f32 v{T+5}, v{T+5}")
    for (dst,l,sg,T) in ds: a(f"v_fma_f32 v{T+5}, v26, v{T+1}, v{T+5}")
    for (dst,l,sg,T) in ds: a(f"v_cos_f32 v{T+4}, v{T+5}"); a(f"v_sin_f32 v{T+5}, v{T+5}")
    for (dst,l,sg,T) in ds: a(f"v_pk_mul_f32 v[{dst}:{dst+1}], v[{T+4}:{T+5}], v[{T+2}:{T+3}] op_sel:[0,0] op_sel_hi:[1,0]")
    a("v_lshlrev_b32 v1, 5, v0")
    a(f"ds_write_b128 v1, v[24:27] offset:{REC}"); a(f"ds_write_b128 v1, v[28:31] offset:{REC+16}")
    cmul(a, 72, 32, 28, 36); cmul(a, 74, 72, 34, 36); cmul(a, 76, 74, 34, 36); cmul(a, 78, 76, 34, 36)
    a("v_mul_f32 v44, v78, v34"); a("v_fma_f32 v44, -v79, v35, v44")
    for sidx in range(4):
        x=72+2*sidx; h=80+2*sidx; T=48+2*sidx
        a(f"v_cvt_pk_bf16_f32 v{h}, v{x}, v{x+1}")
        a(f"v_lshlrev_b32 v{T}, 16, v{h}"); a(f"v_and_b32 v{T+1}, 0xffff0000, v{h}")
        a(f"v_pk_add_f32 v[{T}:{T+1}], v[{x}:{x+1}], v[{T}:{T+1}] neg_lo:[0,1] neg_hi:[0,1]")
        a(f"v_cvt_pk_bf16_f32 v{h+1}, v{T}, v{T+1}")
    a(f"ds_write_b128 v1, v[80:83] offset:{kloop.T2}"); a(f"ds_write_b128 v1, v[84:87] offset:{kloop.T2+16}")
    wave_red(a, [44])
    a("v_cmp_eq_u32 vcc, 63, v10"); a("s_and_saveexec_b64 s[46:47], vcc")
    a(f"ds_write_b32 v2, v44 offset:{TAB+640*4}")
    a("s_mov_b64 exec, s[46:47]")
    a("v_mov_b32 v1, v159")
    a("v_mov_b32 v3, 128")
    stamp(a,3)
    a("s_waitcnt lgkmcnt(0)")
    kloop.PLACE=1
    kloop.v2(a, 4, standalone=False, hook=lambda: a("buffer_load_dword v4, v3, s[60:63], 0 offen sc1"))
    stamp(a,4)
    a(f"s_setprio {PREPPRIO}")
    srd_load(a,4,'w_gate'); srd_load(a,8,'w_up'); srd_load(a,16,'w_down')
    a("v_lshrrev_b32 v5, 1, v0"); a("v_mul_u32_u24 v5, 14336, v5"); a("v_and_b32 v6, 1, v0"); a("v_lshl_add_u32 v5, v6, 4, v5")
    a("s_lshl_b32 s12, s3, 5"); a(f"s_add_u32 s12, s12, {WS_NB}")
    a("s_lshl_b32 s14, s3, 2"); a("v_mov_b32 v7, s14")
    a("v_lshlrev_b32 v6, 4, v0")
    a("v_readfirstlane_b32 s48, v13")
    def nloads():
        a("buffer_load_dwordx4 v[80:83], v5, s[32:35], s12 offen sc1")
        a(f"buffer_load_dword v9, v7, s[32:35], 0 offen offset:{WS_MOD} sc1")
        a(f"buffer_load_dword v14, v7, s[32:35], 0 offen offset:{WS_MOD+1792} sc1")
    a("s_waitcnt vmcnt(0)")
    a("v_readfirstlane_b32 s13, v4")
    a("s_cmp_eq_u32 s13, 0"); a("s_cbranch_scc1 F1_notyet")
    nloads()
    a.label('F1_notyet'); a.flush(); stamp(a,5)
    for i in range(4): a(f"v_mov_b32 v{140+i}, 0")
    for C in range(2):
        b=ACC+8+4*C
        a(f"v_add_f32 v{b}, v{b}, v{b+1}"); a(f"v_add_f32 v{b+2}, v{b+2}, v{b+3}"); a(f"v_add_f32 v{b}, v{b}, v{b+2}")
    for (sa,off,src) in scat: a(f"ds_write_b32 v{sa}, v{src} offset:{TAB+off}")
    a("v_cmp_gt_u32 vcc, 30, v0"); a("s_and_saveexec_b64 s[46:47], vcc")
    a(f"ds_write_b128 v6, v[140:143] offset:{C_KH}"); a(f"ds_write_b128 v6, v[140:143] offset:{C_KL}")
    a("v_cmp_gt_u32 vcc, 2, v0"); a("s_and_b64 exec, exec, vcc")
    a(f"ds_write_b128 v6, v[140:143] offset:{C_H0+4096}"); a(f"ds_write_b128 v6, v[140:143] offset:{C_H1+4100}")
    a("s_mov_b64 exec, s[46:47]")
    AA=20; BA=21
    a(f"v_lshlrev_b32 v{AA}, 5, v11"); a(f"v_lshl_add_u32 v{AA}, v12, 4, v{AA}"); a(f"v_lshl_add_u32 v{AA}, v13, 7, v{AA}")
    a(f"v_and_b32 v{BA}, 14, v11"); a(f"v_lshlrev_b32 v{BA}, 1, v{BA}")
    a("v_lshlrev_b32 v16, 4, v12"); a(f"v_sub_u32 v{BA}, v16, v{BA}")
    a("v_and_b32 v16, 1, v11"); a(f"v_mul_u32_u24 v16, {C_H1-C_H0}, v16")
    a(f"v_add_u32 v{BA}, v{BA}, v16"); a(f"v_add_u32 v{BA}, {C_H0+3616-512*7}, v{BA}"); a(f"v_lshl_add_u32 v{BA}, v13, 7, v{BA}")
    for q in range(1,4): a(f"v_add_u32 v{BA+q}, {1024*q}, v{BA}")
    a("v_sub_u32 v8, 4080, v6")
    a("s_waitcnt lgkmcnt(0)"); a("s_barrier"); stamp(a,6)
    W4=TABN; EB=28
    def rd2(dst, j, w): a(f"ds_read2_b32 v[{dst}:{dst+1}], v{EB+w} offset0:{j} offset1:{j+1}")
    a("s_cmp_eq_u32 s48, 0"); a("s_cbranch_scc1 F1_expA")
    a("s_cmp_eq_u32 s48, 1"); a("s_cbranch_scc1 F1_expB")
    a(f"v_lshlrev_b32 v{EB}, 2, v0"); a(f"v_add_u32 v{EB}, {TAB+384*4}, v{EB}")
    for w in range(1,4): a(f"v_add_u32 v{EB+w}, {W4*4*w}, v{EB}")
    for w in range(4): rd2(32+2*w, 0, w)
    a("v_and_b32 v16, 1, v0"); a("v_cmp_eq_u32 vcc, 1, v16")
    a("s_waitcnt lgkmcnt(0)")
    for j in range(2):
        a(f"v_add_f32 v{32+j}, v{32+j}, v{34+j}"); a(f"v_add_f32 v{36+j}, v{36+j}, v{38+j}")
    a("v_add_f32 v64, v32, v36"); a("v_add_f32 v69, v33, v37")
    a("v_cndmask_b32_e64 v68, v64, v69, vcc")
    a("v_mov_b32 v65, v64"); a("v_mov_b32 v66, v64"); a("v_mov_b32 v67, v64"); a("v_mov_b32 v70, v69"); a("v_mov_b32 v71, v69")
    a("s_branch F1_expD")
    a.label('F1_expB'); a.flush()
    a(f"v_lshlrev_b32 v{EB}, 3, v0"); a(f"v_add_u32 v{EB}, {TAB+256*4}, v{EB}")
    for w in range(1,4): a(f"v_add_u32 v{EB+w}, {W4*4*w}, v{EB}")
    for w in range(4): rd2(32+4*w, 0, w); rd2(34+4*w, 2, w)
    a("s_waitcnt lgkmcnt(0)")
    for j in range(3):
        a(f"v_add_f32 v{32+j}, v{32+j}, v{36+j}"); a(f"v_add_f32 v{40+j}, v{40+j}, v{44+j}")
    a("v_add_f32 v64, v32, v40"); a("v_add_f32 v67, v33, v41"); a("v_add_f32 v70, v34, v42")
    a("v_mov_b32 v65, v64"); a("v_mov_b32 v66, v64"); a("v_mov_b32 v68, v67"); a("v_mov_b32 v69, v67"); a("v_mov_b32 v71, v70")
    a("s_branch F1_expD")
    a.label('F1_expA'); a.flush()
    a(f"v_lshlrev_b32 v{EB}, 5, v0"); a("v_lshlrev_b32 v16, 4, v0"); a("v_add_u32 v16, 512, v16")
    a("v_cmp_gt_u32 vcc, 32, v0"); a(f"v_cndmask_b32_e64 v{EB}, v16, v{EB}, vcc"); a(f"v_add_u32 v{EB}, {TAB}, v{EB}")
    for w in range(1,4): a(f"v_add_u32 v{EB+w}, {W4*4*w}, v{EB}")
    for w in range(4):
        for j in range(0,8,2): rd2(32+8*w+j, j, w)
    a("s_waitcnt lgkmcnt(0)")
    for j in range(8):
        a(f"v_add_f32 v{32+j}, v{32+j}, v{40+j}"); a(f"v_add_f32 v{48+j}, v{48+j}, v{56+j}"); a(f"v_add_f32 v{32+j}, v{32+j}, v{48+j}")
    t1=[0,0,1,2,2,2,3,4]
    for e in range(8): a(f"v_cndmask_b32_e64 v{64+e}, v{32+t1[e]}, v{32+e}, vcc")
    a.label('F1_expD'); a.flush()
    for j in range(4):
        x=64+2*j
        a(f"v_cvt_pk_bf16_f32 v{72+j}, v{x}, v{x+1}")
        a(f"v_lshlrev_b32 v{32+2*j}, 16, v{72+j}"); a(f"v_and_b32 v{33+2*j}, 0xffff0000, v{72+j}")
        a(f"v_pk_add_f32 v[{32+2*j}:{33+2*j}], v[{x}:{x+1}], v[{32+2*j}:{33+2*j}] neg_lo:[0,1] neg_hi:[0,1]")
        a(f"v_cvt_pk_bf16_f32 v{76+j}, v{32+2*j}, v{33+2*j}")
    a(f"ds_write_b128 v6, v[72:75] offset:{C_KH+480}"); a(f"ds_write_b128 v6, v[76:79] offset:{C_KL+480}")
    a("s_cmp_lg_u32 s13, 0"); a("s_cbranch_scc1 F1_ready")
    a("s_setprio 0")
    a("s_mov_b32 s45, 0")
    a.label('F1_poll')
    a("buffer_load_dword v4, v3, s[60:63], 0 offen sc1")
    a("s_waitcnt vmcnt(0)")
    a("v_readfirstlane_b32 s13, v4")
    a("s_cmp_lg_u32 s13, 0"); a("s_cbranch_scc1 F1_got")
    a("s_add_u32 s45, s45, 1"); a("s_cmp_ge_u32 s45, 0x40000"); a("s_cbranch_scc1 F1_got")
    a("s_sleep 2")
    a("s_branch F1_poll")
    a.label('F1_got'); a.flush()
    a("s_setprio 2")
    nloads()
    a.label('F1_ready'); a.flush()
    a("s_waitcnt vmcnt(0)"); stamp(a,7)
    a("v_add_f32 v14, 1.0, v14"); rnd1(a, 14, 15)
    unpack8(a, 80, [48+e for e in range(8)])
    for e in range(0,8,2):
        h0,h1=48+e,49+e
        a(f"v_mul_f32 v{h0}, v{h0}, v14"); a(f"v_mul_f32 v{h1}, v{h1}, v14"); rnd2(a,h0,h1,15)
        a(f"v_add_f32 v{h0}, v{h0}, v9"); a(f"v_add_f32 v{h1}, v{h1}, v9")
    for j in range(4): a(f"v_cvt_pk_bf16_f32 v{60+j}, v{48+7-2*j}, v{48+6-2*j}")
    for j in range(1,4): a(f"v_cvt_pk_bf16_f32 v{64+j}, v{48+8-2*j}, v{48+7-2*j}")
    a(f"ds_write_b128 v8, v[60:63] offset:{C_H1+4}")
    a(f"ds_write_b16 v8, v60 offset:{C_H0+2}")
    a(f"ds_write_b32 v8, v65 offset:{C_H0+4}")
    a(f"ds_write_b64 v8, v[66:67] offset:{C_H0+8}")
    a(f"ds_write_b16_d16_hi v8, v63 offset:{C_H0+16}")
    a("v_bfe_u32 v16, v11, 1, 2"); a("v_xor_b32 v16, v16, v12"); a("v_lshlrev_b32 v16, 4, v16")
    a("v_lshl_add_u32 v16, v11, 6, v16"); a("v_lshl_add_u32 v16, v13, 13, v16")
    a("v_and_b32 v4, 1, v0"); a("v_lshlrev_b32 v4, 1, v4"); a("v_bfe_u32 v17, v0, 2, 2")
    a("v_xor_b32 v18, v4, v17"); a("v_xor_b32 v19, 1, v18")
    a("v_lshrrev_b32 v17, 1, v0"); a("v_lshlrev_b32 v17, 6, v17")
    a("v_lshl_add_u32 v18, v18, 4, v17"); a("v_lshl_add_u32 v19, v19, 4, v17")
    a("v_mul_u32_u24 v5, 7168, v0")
    a("s_lshl_b32 s12, s3, 4"); a(f"s_add_u32 s12, s12, {WS_YB}")
    ACC2=64; BTS=[96,128]; AT=[28,36,44]
    a("s_and_b32 s22, s2, 7"); a("s_lshr_b32 s23, s38, 3")
    a("v_lshrrev_b32 v4, 3, v10"); a("v_and_b32 v7, 7, v10"); a("v_lshlrev_b32 v7, 6, v7"); a("v_min_u32 v7, 444, v7")
    a("v_mul_u32_u24 v4, 3584, v4"); a("v_add_u32 v4, v4, v7")
    a("s_mul_i32 s24, s23, 28672"); a("s_mul_i32 s25, s22, 448"); a("s_add_u32 s24, s24, s25")
    a("s_mul_i32 s26, s22, 224"); a("s_lshl_b32 s25, s23, 2"); a("s_add_u32 s26, s26, s25"); a("s_mul_i32 s26, s26, 896")
    a("v_lshlrev_b32 v7, 6, v10"); a("v_min_u32 v7, 3520, v7")
    def pfhook():
        a("s_cmp_eq_u32 s48, 0"); a("s_cbranch_scc0 F1_pf1")
        a("buffer_load_dword v3, v4, s[4:7], s24 offen")
        a.label('F1_pf1')
        a("s_cmp_eq_u32 s48, 1"); a("s_cbranch_scc0 F1_pf2")
        a("buffer_load_dword v3, v4, s[8:11], s24 offen")
        a.label('F1_pf2')
        a("s_cmp_eq_u32 s48, 2"); a("s_cbranch_scc0 F1_pf3")
        a("buffer_load_dword v3, v7, s[16:19], s26 offen")
        a.label('F1_pf3')
    a("s_waitcnt lgkmcnt(0)"); a("s_barrier"); stamp(a,8)
    a("s_setprio 0")
    if PROF or DIAG: a("s_waitcnt lgkmcnt(0)")
    written,done_at=conv_mfma(a,AA,BA,ACC2,BTS,hook=pfhook)
    stamp(a,9)
    a("s_setprio 2")
    for c in sorted(set(range(8))-written, key=lambda c: done_at[c]):
        a(f"ds_write_b128 v16, v[{ACC2+4*c}:{ACC2+4*c+3}] offset:{C_P+1024*c}")
    a("s_waitcnt lgkmcnt(0)"); a("s_barrier"); stamp(a,10)
    for w in range(4):
        a(f"ds_read_b128 v[{64+8*w}:{67+8*w}], v18 offset:{C_P+8192*w}")
        a(f"ds_read_b128 v[{68+8*w}:{71+8*w}], v19 offset:{C_P+8192*w}")
    a("s_waitcnt lgkmcnt(0)")
    for e in range(8):
        a(f"v_add_f32 v{64+e}, v{64+e}, v{72+e}"); a(f"v_add_f32 v{80+e}, v{80+e}, v{88+e}"); a(f"v_add_f32 v{64+e}, v{64+e}, v{80+e}")
    for e in range(0,8,2): a(f"v_cvt_pk_bf16_f32 v{20+e//2}, v{64+e}, v{65+e}")
    a("buffer_store_dwordx4 v[20:23], v5, s[32:35], s12 offen"+STF[0])
    prof_end(a,0,11,32)

L3_C=7168
def k3(a):
    a.label('k3_kernel'); a.flush(); stamp(a,0)
    a("s_cmp_ge_u32 s2, 256"); a("s_cbranch_scc1 L3_end")
    srd_load(a,4,'ws'); srd_load(a,8,'w_r'); srd_load(a,12,'out'); srd_load(a,36,'A_u'); srd_load(a,40,'Dskip')
    srd_load(a,44,'w_gate'); srd_load(a,48,'w_up'); srd_load(a,52,'w_down')
    a("v_and_b32 v1, 63, v0"); a("v_lshrrev_b32 v2, 6, v0")
    a("v_lshlrev_b32 v3, 5, v0")
    a("s_mul_i32 s16, s2, 7168"); a(f"s_add_u32 s17, s16, {WS_YB}")
    a("v_lshlrev_b32 v5, 4, v1")
    for i in range(36): a(f"v_mov_b32 v{88+i}, 0")
    a("v_readfirstlane_b32 s18, v2")
    a("v_mul_u32_u24 v6, 896, v2"); a("v_add_u32 v6, v6, v5")
    a("v_lshlrev_b32 v7, 3, v2"); a("s_lshl_b32 s19, s2, 6"); a(f"s_add_u32 s19, s19, {WS_ST}")
    a("s_mov_b32 s30, 0x05040100"); a("s_mov_b32 s31, 0x07060302")
    a("v_cmp_gt_u32 vcc, 224, v0")
    a("s_waitcnt lgkmcnt(0)"); stamp(a,1)
    a("s_cmp_ge_u32 s18, 4"); a("s_cbranch_scc1 L3_cw")
    a("s_and_saveexec_b64 s[20:21], vcc")
    a("buffer_load_dwordx4 v[8:11], v3, s[4:7], s17 offen")
    a("buffer_load_dwordx4 v[12:15], v3, s[4:7], s17 offen offset:16")
    a("s_mov_b64 exec, s[20:21]")
    a("buffer_load_dwordx2 v[124:125], v7, s[4:7], s19 offen")
    a("s_mov_b32 exec_hi, 0x00ffffff")
    a("buffer_load_dwordx4 v[120:123], v6, s[36:39], s16 offen")
    a("s_mov_b32 exec_hi, -1")
    a("v_lshlrev_b32 v3, 2, v0")
    a("s_waitcnt vmcnt(2)"); stamp(a,2)
    a("s_and_saveexec_b64 s[20:21], vcc")
    for j in range(4):
        a(f"v_perm_b32 v{16+2*j}, v{12+j}, v{8+j}, s30"); a(f"v_perm_b32 v{17+2*j}, v{12+j}, v{8+j}, s31")
    for j in range(8): a(f"ds_write_b32 v3, v{16+j} offset:{896*j}")
    a("s_mov_b64 exec, s[20:21]")
    a("s_branch L3_join")
    a.label('L3_cw'); a.flush()
    a("s_sub_u32 s22, s18, 4"); a("s_mul_i32 s22, s22, 1792"); a(f"s_add_u32 s23, s22, {L3_C}"); a("s_mov_b32 m0, s23")
    a(f"s_add_u32 s22, s22, {WS_MODB}")
    a("s_mov_b32 exec_hi, 0x00ffffff")
    a("s_cmp_eq_u32 s18, 7"); a("s_cbranch_scc1 L3_cw7")
    a("buffer_load_dwordx4 v5, s[4:7], s22 offen lds")
    a("buffer_load_dwordx4 v5, s[4:7], s22 offen offset:896 lds")
    a("s_branch L3_cw8")
    a.label('L3_cw7'); a.flush()
    a("buffer_load_dwordx4 v5, s[40:43], 0 offen lds")
    a("s_add_u32 s23, s23, 896"); a("s_mov_b32 m0, s23")
    a("buffer_load_dwordx4 v5, s[8:11], 0 offen lds")
    a.label('L3_cw8'); a.flush()
    a("buffer_load_dwordx4 v[120:123], v6, s[36:39], s16 offen")
    a("s_mov_b32 exec_hi, -1")
    a("buffer_load_dwordx2 v[124:125], v7, s[4:7], s19 offen")
    if PREFETCH==2:
        a("s_and_b32 s33, s2, 7"); a("s_lshr_b32 s34, s2, 3")
        a("v_subrev_u32 v16, 256, v0")
        a("v_subrev_u32 v17, 112, v16"); a("v_cmp_gt_u32 vcc, 112, v16"); a("s_mov_b64 s[56:57], vcc"); a("v_cndmask_b32_e64 v17, v17, v16, vcc")
        a("v_lshrrev_b32 v18, 3, v17"); a("v_and_b32 v19, 7, v17"); a("v_lshlrev_b32 v19, 6, v19"); a("v_min_u32 v19, 444, v19")
        a("v_mul_u32_u24 v18, 3584, v18"); a("v_add_u32 v18, v18, v19")
        a("s_mul_i32 s35, s34, 50176"); a("s_mul_i32 s58, s33, 448"); a("s_add_u32 s35, s35, s58")
        a("s_mul_i32 s58, s33, 224"); a("s_mul_i32 s59, s34, 7"); a("s_add_u32 s58, s58, s59"); a("s_mul_i32 s58, s58, 896")
        a("v_lshlrev_b32 v19, 6, v16")
        a("v_cmp_gt_u32 vcc, 224, v16"); a("s_mov_b64 s[60:61], vcc"); a("v_cmp_gt_u32 vcc, 98, v16"); a("s_mov_b64 s[62:63], vcc")
        a("s_waitcnt vmcnt(0)")
        a("s_andn2_b64 s[60:61], s[60:61], s[56:57]")
        a("s_mov_b64 exec, s[56:57]"); a("buffer_load_dword v127, v18, s[44:47], s35 offen")
        a("s_mov_b64 exec, s[60:61]"); a("buffer_load_dword v127, v18, s[48:51], s35 offen")
        a("s_mov_b64 exec, s[62:63]"); a("buffer_load_dword v127, v19, s[52:55], s58 offen")
        a("s_mov_b64 exec, -1")
        a("s_branch L3_join2")
    a.label('L3_join'); a.flush()
    a("s_waitcnt vmcnt(0)")
    a.label('L3_join2'); a.flush()
    X0=[24+e for e in range(8)]; H1=[32+e for e in range(8)]
    for i in range(4): a(f"v_mov_b32 v{8+i}, 0")
    unpack8(a, 120, X0)
    a("v_mov_b32 v126, v125")
    ln_norm(a, X0, H1, 124, None, 126, 48)
    a("s_waitcnt lgkmcnt(0)"); a("s_barrier"); stamp(a,3)
    a("s_mov_b32 exec_hi, 0x00ffffff")
    for k in (1,0,6): a(f"ds_read_b128 v[{88+4*k}:{91+4*k}], v5 offset:{L3_C+896*k}")
    a("ds_read_b128 v[8:11], v6")
    for k in (2,4,3,7,5): a(f"ds_read_b128 v[{88+4*k}:{91+4*k}], v5 offset:{L3_C+896*k}")
    a("s_mov_b32 exec_hi, -1")
    T=[64+e for e in range(8)]; T2_=[72+e for e in range(8)]; T3=[80+e for e in range(8)]
    a("s_waitcnt lgkmcnt(6)")
    unpack8(a, 92, T); unpack8(a, 88, T2_); unpack8(a, 112, T3)
    for e in range(0,8,2):
        h0,h1=H1[e],H1[e+1]
        pk(a,'mul',h0,h0,T[e]); rnd2(a,h0,h1,48)
        pk(a,'add',h0,h0,T2_[e]); rnd2(a,h0,h1,48)
        pk(a,'mul',h0,h0,T3[e]); rnd2(a,h0,h1,48)
    a("s_waitcnt lgkmcnt(4)")
    X=[[16+e for e in range(8)]]
    unpack8(a, 8, X[0]); unpack8(a, 96, T)
    for e in range(0,8,2):
        y0,y1=X[0][e],X[0][e+1]
        pk(a,'add',y0,y0,H1[e]); rnd2(a,y0,y1,48)
        pk(a,'mul',y0,y0,T[e]); rnd2(a,y0,y1,48)
        pk(a,'add',y0,y0,X0[e])
        a(f"v_cvt_pk_bf16_f32 v{8+e//2}, v{y0}, v{y1}")
        a(f"v_lshlrev_b32 v{y0}, 16, v{8+e//2}"); a(f"v_and_b32 v{y1}, 0xffff0000, v{8+e//2}")
    a("v_add_u32 v6, s16, v6")
    a(f"s_mov_b32 s17, {WS_X1}")
    a("s_mov_b32 exec_hi, 0x00ffffff")
    a("buffer_store_dwordx4 v[8:11], v6, s[4:7], s17 offen"+STF[1])
    a("s_mov_b32 exec_hi, -1")
    mean,sd,ri = ln_stats(a, X, 1, [32], 34, 28)
    H=[[48+e for e in range(8)]]
    ln_norm(a, X[0], H[0], mean[0], sd[0], ri[0], 46)
    stamp(a,4)
    a("s_waitcnt lgkmcnt(0)")
    unpack8(a, 104, T); unpack8(a, 100, T2_); unpack8(a, 116, T3)
    for e in range(0,8,2):
        h0,h1=H[0][e],H[0][e+1]
        pk(a,'mul',h0,h0,T[e]); rnd2(a,h0,h1,46)
        pk(a,'add',h0,h0,T2_[e])
        a(f"v_cvt_pk_bf16_f32 v{24+e//2}, v{h0}, v{h1}")
        a(f"v_lshlrev_b32 v{h0}, 16, v{24+e//2}"); a(f"v_and_b32 v{h1}, 0xffff0000, v{24+e//2}")
        if e==0: pk(a,'mul',32,h0,T3[e])
        else: pk(a,'fma',32,h0,T3[e],32)
    a("v_add_f32 v32, v32, v33")
    a(f"s_mov_b32 s17, {WS_H2}")
    a("s_mov_b32 exec_hi, 0x00ffffff")
    a("buffer_store_dwordx4 v[24:27], v6, s[4:7], s17 offen"+STF[1])
    a("s_mov_b32 exec_hi, -1")
    unpack8(a, 108, T)
    wave_red(a,[32])
    for e in range(0,8,2):
        h0,h1=H[0][e],H[0][e+1]
        pk(a,'mul',h0,h0,T[e]); rnd2(a,h0,h1,46)
        pk(a,'add',h0,h0,X[0][e])
        a(f"v_cvt_pk_bf16_f32 v{28+e//2}, v{h0}, v{h1}")
    a("v_cvt_pk_bf16_f32 v34, v32, v32")
    a("s_lshl_b32 s16, s2, 3"); a("v_add_u32 v35, s16, v2")
    a("v_and_b32 v36, 0xffff, v34")
    a("v_bfe_i32 v37, v36, 15, 1"); a("v_or_b32 v37, 0x8000, v37"); a("v_xor_b32 v36, v36, v37")
    a("v_sub_u32 v38, 2047, v35"); a("v_lshl_or_b32 v40, v36, 16, v38")
    a("v_lshlrev_b32 v35, 2, v35")
    a("s_mov_b32 exec_hi, 0x00ffffff")
    a("buffer_store_dwordx4 v[28:31], v6, s[12:15], 0 offen"+STF[1])
    a("s_mov_b32 exec_lo, 0"); a("s_mov_b32 exec_hi, 0x80000000")
    a(f"s_mov_b32 s17, {WS_R}")
    a("buffer_store_dword v40, v35, s[4:7], s17 offen")
    prof_end(a,1,5,4)
    a.label('L3_end'); a("s_endpgm")

def topk(a, K0, lds_off, TK):
    K=[K0+i for i in range(8)]
    free=K0+8
    net=[(0,1),(2,3),(4,5),(6,7),(0,2),(1,3),(4,6),(5,7),(1,2),(5,6),(0,4),(3,7),(1,5),(2,6),(1,4),(3,6),(2,4),(3,5),(3,4)]
    for (i,j) in net:
        a(f"v_max_u32 v{free}, v{K[i]}, v{K[j]}"); a(f"v_min_u32 v{K[j]}, v{K[i]}, v{K[j]}")
        K[i],free = free,K[i]
    T=K0+9
    pend=[]
    def fill(n=2):
        for _ in range(n):
            if pend: a(pend.pop(0))
    for rnd in range(8):
        zero=' bound_ctrl:0'
        fill()
        a(f"v_max_u32_dpp v{T}, v{K[0]}, v{K[0]} row_shr:1 row_mask:0xf bank_mask:0xf{zero}")
        for sh in (2,4,8):
            fill(); a(f"v_max_u32_dpp v{T}, v{T}, v{T} row_shr:{sh} row_mask:0xf bank_mask:0xf{zero}")
        fill(); a(f"v_max_u32_dpp v{T}, v{T}, v{T} row_bcast:15 row_mask:0xa bank_mask:0xf")
        fill(); a(f"v_max_u32_dpp v{T}, v{T}, v{T} row_bcast:31 row_mask:0xc bank_mask:0xf")
        assert not pend
        a(f"v_readlane_b32 s{TK+rnd}, v{T}, 63")
        if rnd<7:
            a(f"v_cmp_eq_u32_e64 s[20:21], s{TK+rnd}, v{K[0]}")
            a(f"v_cndmask_b32_e64 v{K[0]}, v{K[0]}, v{K[1]}, s[20:21]")
            for i in range(1,7-rnd): pend.append(f"v_cndmask_b32_e64 v{K[i]}, v{K[i]}, v{K[i+1]}, s[20:21]")
    Q=K0+12
    for i in range(8): a(f"v_mov_b32 v{Q+i}, s{TK+i}")
    a(f"v_lshlrev_b32 v{T}, 5, v2")
    a("v_cmp_eq_u32 vcc, 0, v1"); a("s_and_saveexec_b64 s[20:21], vcc")
    a(f"ds_write_b128 v{T}, v[{Q}:{Q+3}] offset:{lds_off}"); a(f"ds_write_b128 v{T}, v[{Q+4}:{Q+7}] offset:{lds_off+16}")
    a("s_mov_b64 exec, s[20:21]")
    a(f"v_and_b32 v{T}, 31, v1"); a(f"v_lshlrev_b32 v{T}, 2, v{T}")
    a(f"v_mov_b32 v{T+2}, 0")
    a("s_waitcnt lgkmcnt(0)"); a("s_barrier")
    a(f"ds_read_b32 v{T+1}, v{T} offset:{lds_off}")
    A0=K0+20
    for j in range(8): a(f"ds_read_b128 v[{A0+4*j}:{A0+4*j+3}], v{T+2} offset:{lds_off+16*j}")
    a("s_waitcnt lgkmcnt(0)")
    R=[K0,K0+1,K0+2,K0+3]
    for r in R: a(f"v_mov_b32 v{r}, 0")
    for j0 in range(0,32,4):
        for q in range(4): a(f"v_cmp_gt_u32_e64 s[{22+2*q}:{23+2*q}], v{A0+j0+q}, v{T+1}")
        for q in range(4): a(f"v_addc_co_u32_e64 v{R[q]}, s[{22+2*q}:{23+2*q}], 0, v{R[q]}, s[{22+2*q}:{23+2*q}]")
    a(f"v_add_u32 v{R[0]}, v{R[0]}, v{R[1]}"); a(f"v_add_u32 v{R[2]}, v{R[2]}, v{R[3]}"); a(f"v_add_u32 v{R[0]}, v{R[0]}, v{R[2]}")
    for r0 in range(0,8,4):
        for q in range(4): a(f"v_cmp_eq_u32_e64 s[{22+2*q}:{23+2*q}], {r0+q}, v{R[0]}")
        for q in range(4): a(f"s_ff1_i32_b32 s{22+2*q}, s{22+2*q}")
        for q in range(4): a(f"v_readlane_b32 s{TK+r0+q}, v{T+1}, s{22+2*q}")

L4_W=0; L4_WD=14336; L4_RED=L4_WD+7168; L4_TK=L4_RED+4096; L4_ACT=L4_TK+256; L4_LDS=L4_ACT+4*128
def k4(a):
    a.label('k4_kernel'); a.flush(); stamp(a,0)
    a("s_cmp_ge_u32 s2, 224"); a("s_cbranch_scc1 L4_end")
    srd_load(a,4,'ws'); srd_load(a,8,'w_gate'); srd_load(a,12,'w_up'); srd_load(a,48,'w_down')
    a(f"s_mov_b32 s30, {hx(L_HI)}"); a(f"s_mov_b32 s31, {hx(L_LO)}"); a(f"s_mov_b32 s32, {hx(LN2)}")
    a("v_and_b32 v1, 63, v0"); a("v_lshrrev_b32 v2, 6, v0")
    a("s_and_b32 s16, s2, 7"); a("s_mul_i32 s16, s16, 28"); a("s_lshr_b32 s17, s2, 3"); a("s_add_u32 s16, s16, s17")
    a("s_lshl_b32 s17, s16, 4")
    a("v_lshrrev_b32 v3, 1, v1"); a("v_lshl_add_u32 v3, v2, 5, v3"); a("v_mul_u32_u24 v3, 3584, v3"); a("v_add_u32 v3, s17, v3")
    a("v_readfirstlane_b32 s18, v2")
    a("v_lshlrev_b32 v4, 5, v0"); a("v_lshlrev_b32 v10, 4, v0")
    a(f"s_mov_b32 s19, {WS_R}")
    a("s_mul_i32 s33, s16, 7168")
    a("s_waitcnt lgkmcnt(0)"); stamp(a,1)
    a("s_cmp_ge_u32 s18, 4"); a("s_cbranch_scc0 L4_cmp")
    a("s_sub_u32 s18, s18, 4")
    a("v_subrev_u32 v3, 458752, v3")
    a("v_subrev_u32 v10, 4096, v10")
    a("s_lshl_b32 s22, s18, 10")
    a("s_mov_b32 s24, 0x55555555"); a("s_mov_b32 s25, 0x55555555"); a("s_mov_b32 s26, 0xaaaaaaaa"); a("s_mov_b32 s27, 0xaaaaaaaa")
    for it in range(3):
        a(f"s_add_u32 s23, s22, {L4_W+4096*it}"); a("s_mov_b32 m0, s23"); a(f"s_mov_b32 s28, {128*3584*it}")
        a("s_mov_b64 exec, s[24:25]"); a("buffer_load_dwordx4 v3, s[8:11], s28 offen lds")
        a("s_mov_b64 exec, s[26:27]"); a("buffer_load_dwordx4 v3, s[12:15], s28 offen lds")
    a("s_mov_b64 exec, -1")
    a("s_cmp_ge_u32 s18, 2"); a("s_cbranch_scc1 L4_alt")
    a(f"s_add_u32 s23, s22, {L4_W+4096*3}"); a("s_mov_b32 m0, s23"); a(f"s_mov_b32 s28, {128*3584*3}")
    a("s_mov_b64 exec, s[24:25]"); a("buffer_load_dwordx4 v3, s[8:11], s28 offen lds")
    a("s_mov_b64 exec, s[26:27]"); a("buffer_load_dwordx4 v3, s[12:15], s28 offen lds")
    a("s_mov_b64 exec, -1")
    a(f"s_add_u32 s23, s22, {L4_WD}"); a("s_mov_b32 m0, s23")
    a("buffer_load_dwordx4 v10, s[48:51], s33 offen lds")
    a("s_branch L4_dmadone")
    a.label('L4_alt'); a.flush()
    a(f"s_add_u32 s23, s22, {L4_WD}"); a("s_mov_b32 m0, s23")
    a("buffer_load_dwordx4 v10, s[48:51], s33 offen lds")
    a("buffer_load_dwordx4 v10, s[48:51], s33 offen offset:2048 lds")
    a("s_cmp_eq_u32 s18, 2"); a("s_cselect_b32 s28, 2048, 0"); a("s_add_u32 s23, s23, s28"); a("s_mov_b32 m0, s23"); a("s_add_u32 s28, s28, s33")
    a("buffer_load_dwordx4 v10, s[48:51], s28 offen offset:2048 lds")
    a.label('L4_dmadone'); a.flush()
    a("s_barrier")
    a("s_waitcnt vmcnt(0)")
    a("s_barrier")
    a("s_endpgm")
    a.label('L4_cmp'); a.flush()
    a("buffer_load_dwordx4 v[16:19], v4, s[4:7], s19 offen"); a("buffer_load_dwordx4 v[20:23], v4, s[4:7], s19 offen offset:16")
    a("s_waitcnt vmcnt(0)"); stamp(a,2)
    TK=40
    topk(a, 16, L4_TK, TK)
    stamp(a,3)
    a("v_and_b32 v5, 7, v1"); a("v_mov_b32 v6, 0")
    for i in range(8):
        a(f"s_and_b32 s20, s{TK+i}, 0xffff"); a("s_sub_u32 s20, 2047, s20"); a("s_mul_i32 s20, s20, 896")
        a(f"v_cmp_eq_u32_e64 s[34:35], {i}, v5"); a("v_mov_b32 v7, s20"); a("v_cndmask_b32_e64 v6, v6, v7, s[34:35]")
    a("v_lshrrev_b32 v7, 4, v1"); a("v_lshl_add_u32 v6, v7, 4, v6"); a("v_lshl_add_u32 v6, v2, 6, v6")
    a(f"s_mov_b32 s19, {WS_H2}")
    for it in range(4): a(f"buffer_load_dwordx4 v[{16+4*it}:{19+4*it}], v6, s[4:7], s19 offen offset:{256*it}")
    a("s_cmp_lg_u32 s2, 0"); a("s_cbranch_scc1 L4_nokeys")
    for i in range(8): a(f"v_mov_b32 v{64+i}, s{TK+i}")
    a("v_mov_b32 v72, 0"); a(f"s_mov_b32 s19, {WS_IDX}")
    a("v_cmp_eq_u32 vcc, 0, v0"); a("s_and_saveexec_b64 s[20:21], vcc")
    a("buffer_store_dwordx4 v[64:67], v72, s[4:7], s19 offen"); a("buffer_store_dwordx4 v[68:71], v72, s[4:7], s19 offen offset:16")
    a("s_mov_b64 exec, s[20:21]")
    a.label('L4_nokeys'); a.flush(); a.nop(2)
    a("v_and_b32 v8, 3, v1"); a("v_bfe_u32 v9, v1, 2, 2"); a("v_lshl_add_u32 v9, v7, 3, v9")
    a("v_lshlrev_b32 v9, 5, v9"); a("v_lshl_add_u32 v9, v8, 3, v9"); a("v_lshl_add_u32 v9, v2, 10, v9")
    for i in range(4): a(f"v_mov_b32 v{60+i}, 0")
    a("v_and_b32 v11, 1, v7"); a("v_bfe_u32 v12, v1, 2, 2"); a("v_lshl_add_u32 v11, v11, 2, v12"); a("v_mul_u32_u24 v11, 896, v11")
    a("v_lshl_add_u32 v11, v8, 3, v11"); a("v_mul_u32_u24 v12, 224, v2"); a("v_add_u32 v11, v11, v12")
    a("s_barrier")
    for it in range(4):
        a(f"ds_read_b64_tr_b16 v[{32+4*it}:{33+4*it}], v9 offset:{L4_W+4096*it}")
        a(f"ds_read_b64_tr_b16 v[{34+4*it}:{35+4*it}], v9 offset:{L4_W+4096*it+128}")
    a("s_waitcnt vmcnt(0)"); stamp(a,4)
    for it in range(4):
        if it==3:
            a("s_cmp_ge_u32 s18, 2"); a("s_cbranch_scc1 L4_mmdone")
        a(f"s_waitcnt lgkmcnt({6-2*it})" if not (PROF or DIAG) else "s_waitcnt lgkmcnt(0)")
        a(f"v_mfma_f32_16x16x32_bf16 v[60:63], v[{16+4*it}:{19+4*it}], v[{32+4*it}:{35+4*it}], v[60:63]")
    a.label('L4_mmdone'); a.flush(); a.nop(8)
    a(f"ds_write_b128 v10, v[60:63] offset:{L4_RED}")
    a("v_lshlrev_b32 v13, 4, v1")
    a("s_waitcnt lgkmcnt(0)"); a("s_barrier"); stamp(a,5)
    for w in range(4): a(f"ds_read_b128 v[{16+4*w}:{19+4*w}], v13 offset:{L4_RED+1024*w}")
    for dt in range(7): a(f"ds_read_b64_tr_b16 v[{40+2*dt}:{41+2*dt}], v11 offset:{L4_WD+32*dt}")
    a("s_waitcnt lgkmcnt(7)")
    for r in range(4):
        a(f"v_add_f32 v{16+r}, v{16+r}, v{20+r}"); a(f"v_add_f32 v{24+r}, v{24+r}, v{28+r}"); a(f"v_add_f32 v{16+r}, v{16+r}, v{24+r}")
    rnd2(a,16,17,32); rnd2(a,18,19,32)
    for r in range(4): a(f"v_mul_f32 v{64+r}, s30, v{16+r}")
    for r in range(4): a(f"v_fma_f32 v{68+r}, v{16+r}, s30, -v{64+r}")
    for r in range(4): a(f"v_fma_f32 v{68+r}, v{16+r}, s31, v{68+r}")
    for r in range(4): a(f"v_exp_f32_e64 v{64+r}, -v{64+r}")
    for r in range(4): a(f"v_mul_f32 v{68+r}, s32, v{68+r}")
    for r in range(4): a(f"v_fma_f32 v{64+r}, v{64+r}, -v{68+r}, v{64+r}")
    for r in range(4): a(f"v_add_f32 v{64+r}, 1.0, v{64+r}")
    for r in range(4): a(f"v_rcp_f32 v{68+r}, v{64+r}")
    for r in range(4): a(f"v_mov_b32_dpp v{24+r}, v{16+r} row_ror:8 row_mask:0xf bank_mask:0xf")
    for r in range(4): div_acc(a, 20+r, 16+r, 64+r, 68+r, 72+r)
    rnd2(a,20,21,32); rnd2(a,22,23,32)
    for r in range(4): a(f"v_mul_f32 v{20+r}, v{20+r}, v{24+r}")
    a("v_cvt_pk_bf16_f32 v28, v20, v21"); a("v_cvt_pk_bf16_f32 v29, v22, v23")
    a("v_and_b32 v5, 15, v1")
    a("v_lshlrev_b32 v14, 6, v7"); a("v_lshl_add_u32 v14, v5, 1, v14"); a("v_lshl_add_u32 v14, v2, 7, v14")
    a("s_mov_b32 exec_lo, 0x00ff00ff"); a("s_mov_b32 exec_hi, 0")
    a(f"ds_write_b16 v14, v28 offset:{L4_ACT}"); a(f"ds_write_b16_d16_hi v14, v28 offset:{L4_ACT+16}")
    a(f"ds_write_b16 v14, v29 offset:{L4_ACT+32}"); a(f"ds_write_b16_d16_hi v14, v29 offset:{L4_ACT+48}")
    if DEBUG_ACT:
        a("v_mul_u32_u24 v6, 14336, v7"); a("v_lshl_add_u32 v6, v5, 1, v6"); a("v_add_u32 v6, s17, v6")
        a(f"s_mov_b32 s19, {WS_ACT}")
        a("buffer_store_short v28, v6, s[4:7], s19 offen"); a("buffer_store_short_d16_hi v28, v6, s[4:7], s19 offen offset:3584")
        a(f"s_add_u32 s19, s19, 7168")
        a("buffer_store_short v29, v6, s[4:7], s19 offen"); a("buffer_store_short_d16_hi v29, v6, s[4:7], s19 offen offset:3584")
    a("s_mov_b64 exec, -1")
    a("v_mov_b32 v30, 0"); a("v_mov_b32 v31, 0")
    a("v_lshlrev_b32 v14, 4, v5"); a("v_lshl_add_u32 v14, v7, 3, v14"); a("v_lshl_add_u32 v14, v2, 7, v14")
    a("s_mov_b32 exec_lo, 0x00ff00ff"); a("s_mov_b32 exec_hi, 0")
    a(f"ds_read_b64 v[30:31], v14 offset:{L4_ACT}")
    a("s_mov_b64 exec, -1")
    a("v_mul_u32_u24 v15, 28, v5"); a("v_mul_u32_u24 v12, 7, v2"); a("v_add_u32 v15, v15, v12"); a("v_mul_u32_u24 v15, 14336, v15")
    a("v_lshl_add_u32 v15, v7, 4, v15")
    a("s_lshl_b32 s19, s16, 6"); a(f"s_add_u32 s19, s19, {WS_P}")
    a("s_waitcnt lgkmcnt(0)")
    for dt in range(7):
        a(f"v_mfma_f32_16x16x16_bf16 v[{64+4*dt}:{67+4*dt}], v[{40+2*dt}:{41+2*dt}], v[30:31], 0")
    a("s_mov_b32 exec_lo, 0x00ff00ff"); a("s_mov_b32 exec_hi, 0x00ff00ff")
    for dt in range(7):
        a(f"buffer_store_dwordx4 v[{64+4*dt}:{67+4*dt}], v15, s[4:7], s19 offen"+STF[2])
        if dt<6: a(f"s_add_u32 s19, s19, 14336")
    prof_end(a,2,6,4)
    a.label('L4_end'); a("s_endpgm")

def k5(a):
    a.label('k5_kernel'); a.flush(); stamp(a,0)
    a("s_cmp_ge_u32 s2, 224"); a("s_cbranch_scc1 L5_end")
    srd_load(a,4,'ws'); srd_load(a,12,'out')
    a(f"s_mov_b32 s30, {hx(L_HI)}"); a(f"s_mov_b32 s31, {hx(L_LO)}"); a(f"s_mov_b32 s32, {hx(LN2)}")
    a("s_mul_hi_u32 s16, s2, 153391690"); a("s_mul_i32 s17, s16, 28"); a("s_sub_u32 s17, s2, s17")
    a("v_lshlrev_b32 v4, 4, v0")
    a("s_mul_i32 s19, s2, 14336"); a(f"s_add_u32 s19, s19, {WS_P}")
    a("s_lshl_b32 s20, s16, 2"); a(f"s_add_u32 s20, s20, {WS_IDX}")
    a("v_mov_b32 v5, 0"); a("v_mov_b32 v12, 0")
    for i in range(4): a(f"v_mov_b32 v{28+i}, 0")
    a("s_waitcnt lgkmcnt(0)"); stamp(a,1)
    a("buffer_load_dword v40, v5, s[4:7], s20 offen")
    for it in range(3):
        a(f"buffer_load_dwordx4 v[{16+4*it}:{19+4*it}], v4, s[4:7], s19 offen"); a("s_add_u32 s19, s19, 4096")
    a("v_cmp_gt_u32 vcc, 128, v0"); a("s_and_saveexec_b64 s[22:23], vcc")
    a("s_cbranch_execz L5_skip")
    a("buffer_load_dwordx4 v[28:31], v4, s[4:7], s19 offen")
    a.label('L5_skip'); a("s_mov_b64 exec, s[22:23]")
    a("v_and_b32 v6, 15, v0"); a("v_lshlrev_b32 v7, 2, v6")
    a("s_lshl_b32 s21, s17, 6"); a(f"s_add_u32 s21, s21, {WS_MOD+5*1792}")
    a("buffer_load_dword v41, v7, s[4:7], s21 offen")
    a("v_readfirstlane_b32 s24, v0")
    a("s_cmp_lg_u32 s24, 0"); a("s_cbranch_scc1 L5_nogather")
    a("s_waitcnt vmcnt(5)"); stamp(a,2)
    a("v_and_b32 v8, 0xffff, v40"); a("v_sub_u32 v8, 2047, v8")
    a("s_lshl_b32 s25, s17, 4"); a("v_add_u32 v9, s25, v6")
    a(f"s_mov_b32 s26, {WS_X1}"); a(f"s_mov_b32 s27, {WS_H2}")
    a("v_mul_u32_u24 v12, 896, v8"); a("v_lshl_add_u32 v12, v9, 1, v12")
    a("buffer_load_ushort v42, v12, s[4:7], s26 offen")
    a("buffer_load_ushort v43, v12, s[4:7], s27 offen")
    a("v_lshrrev_b32 v33, 16, v40"); a("v_bfe_i32 v34, v33, 15, 1")
    a("v_not_b32 v34, v34"); a("v_or_b32 v34, 0x8000, v34"); a("v_xor_b32 v33, v33, v34"); a("v_lshlrev_b32 v33, 16, v33")
    exp_acc(a, 34, 33, 35, 36, 30, 31, 32, neg=True)
    a("v_add_f32 v34, 1.0, v34"); a("v_rcp_f32 v35, v34"); a("v_mov_b32 v37, 1.0")
    div_acc(a, 44, 37, 34, 35, 36)
    rnd1(a,44,35)
    a("s_waitcnt vmcnt(3)")
    a("s_branch L5_sum")
    a.label('L5_nogather'); a.flush()
    a("s_waitcnt vmcnt(1)")
    a.label('L5_sum'); a.flush(); stamp(a,3)
    for i in range(4):
        a(f"v_add_f32 v{16+i}, v{16+i}, v{20+i}"); a(f"v_add_f32 v{24+i}, v{24+i}, v{28+i}"); a(f"v_add_f32 v{16+i}, v{16+i}, v{24+i}")
    for sh in (4,8):
        for i in range(4): a(f"v_add_f32_dpp v{16+i}, v{16+i}, v{16+i} row_ror:{sh} row_mask:0xf bank_mask:0xf")
    a("v_lshrrev_b32 v13, 4, v0"); a("v_lshlrev_b32 v13, 6, v13"); a("v_and_b32 v14, 3, v0"); a("v_lshl_add_u32 v13, v14, 4, v13")
    a("v_and_b32 v14, 12, v0"); a("v_cmp_eq_u32 vcc, 0, v14"); a("s_and_saveexec_b64 s[22:23], vcc")
    a("ds_write_b128 v13, v[16:19]")
    a("s_mov_b64 exec, s[22:23]")
    a("s_waitcnt lgkmcnt(0)"); a("s_barrier"); stamp(a,4)
    a("s_cmp_lg_u32 s24, 0"); a("s_cbranch_scc1 L5_end")
    for p in range(16): a(f"ds_read_b32 v{48+p}, v7 offset:{64*p}")
    a("s_waitcnt lgkmcnt(0) vmcnt(0)")
    for st in (8,4,2,1):
        for p in range(st): a(f"v_add_f32 v{48+p}, v{48+p}, v{48+p+st}")
    rnd1(a,48,35)
    a("v_mul_f32 v48, v48, v44"); rnd1(a,48,35)
    a("v_lshlrev_b32 v42, 16, v42"); a("v_lshlrev_b32 v43, 16, v43")
    a("v_add_f32 v48, v48, v43"); rnd1(a,48,35)
    a("v_mul_f32 v48, v48, v41"); rnd1(a,48,35)
    a("v_add_f32 v48, v48, v42"); a("v_cvt_pk_bf16_f32 v48, v48, v48")
    a("s_mov_b32 exec_lo, 0xffff"); a("s_mov_b32 exec_hi, 0")
    a("buffer_store_short v48, v12, s[12:15], 0 offen")
    prof_end(a,3,5,4)
    if DIAG:
        a("s_cmp_lg_u32 s2, 223"); a("s_cbranch_scc1 L5_end")
        a("s_load_dwordx2 s[88:89], s[0:1], 136"); a("s_waitcnt lgkmcnt(0)")
        a("s_sub_u32 s84, s88, 1536"); a("s_subb_u32 s85, s89, 0"); a("s_mov_b32 s86, 2048"); a("s_mov_b32 s87, 0x20000")
        a("s_sleep 100")
        a("v_lshrrev_b32 v1, 2, v0"); a("v_lshlrev_b32 v1, 9, v1"); a("v_and_b32 v2, 3, v0"); a("v_lshl_add_u32 v1, v2, 2, v1")
        a("buffer_load_dword v3, v1, s[84:87], 0 offen offset:192 sc1")
        a("s_waitcnt vmcnt(0)")
        a("v_lshlrev_b32 v1, 2, v0")
        a("s_mov_b64 exec, 0xffff")
        a("buffer_store_dword v3, v1, s[84:87], 0 offen offset:1536")
    a.label('L5_end'); a("s_endpgm")

def desc(name, vgpr, sgpr=102):
    return f""".amdhsa_kernel {name}
  .amdhsa_next_free_vgpr {vgpr}
  .amdhsa_next_free_sgpr {sgpr}
  .amdhsa_accum_offset {(vgpr+3)//4*4}
  .amdhsa_group_segment_fixed_size 0
  .amdhsa_kernarg_size 152
  .amdhsa_user_sgpr_count 2
  .amdhsa_user_sgpr_kernarg_segment_ptr 1
  .amdhsa_system_sgpr_workgroup_id_x 1
  .amdhsa_float_denorm_mode_32 3
.end_amdhsa_kernel
"""
DEBUG_ACT=False
PREPPRIO=int(__import__('os').environ.get('PREPPRIO','1'))
STF=[(' '+x if x else '') for x in __import__('os').environ.get('STF',',sc1,sc1').split(',')]
CODEPF=int(__import__('os').environ.get('CODEPF','1'))
PREFETCH=int(__import__('os').environ.get('PREFETCH','1'))
PRIO=int(__import__('os').environ.get('PRIO','2'))
def main(path):
    hdr = open('adaLN_cond__ssm_conv_s4__moe_arch_mod__prompt.s.ref').read().split('; Override')[0]
    pv = 120 if (PROF or DIAG) else 0
    kernels=[('f1_kernel',f1,F1_GRID,256,F1_LDS,160),
             ('k3_kernel',k3,256,512,14336,128),
             ('k4_kernel',k4,224,512,L4_LDS,max(96,pv)),
             ('k5_kernel',k5,224,256,1024,max(64,pv))]
    out=hdr
    for n,f,g,b,l,v in kernels: out+=f"; @launch kernel={n} grid=({g},1,1) block=({b},1,1) lds={l}\n"
    out+='.amdgcn_target "amdgcn-amd-amdhsa--gfx950"\n.text\n'
    for n,f,g,b,l,v in kernels:
        a=Asm()
        a.raw(f".globl {n}\n.p2align 8\n.type {n},@function")
        f(a)
        out+=a.text()
    out+='CODE_END:\n'
    out+='.section .rodata,"a"\n'
    for n,f,g,b,l,v in kernels: out+='.p2align 6\n'+desc(n,v)
    open(path,'w').write(out)

if __name__=='__main__':
    if 'prof' in sys.argv[2:]: PROF=True
    if 'diag' in sys.argv[2:]: DIAG=True
    if 'dbg' in sys.argv[2:]: DEBUG_ACT=True
    main(sys.argv[1] if len(sys.argv)>1 else 'adaLN_cond__ssm_conv_s4__moe_arch_mod__prompt.s')
```

```python
import sys, struct, math
sys.path.insert(0,'work')
from asmlib import Asm
from layout import *
import numpy as np

def f2u(x): return struct.unpack('<I', struct.pack('<f', x))[0]
def hx(x): return '0x%08x' % f2u(x)
LOG2E = 1.4426950408889634; L_HI = float(np.float32(LOG2E)); L_LO = float(np.float32(LOG2E-L_HI))
LN2 = 0.6931471805599453
I2P = 0.15915494309189535; I2P_HI = float(np.float32(I2P)); I2P_LO = float(np.float32(I2P-I2P_HI))
WS_SIZE = 268435456
KA = dict(A_u=0,A_re=8,A_im=16,B_re=24,B_im=32,C_re=40,C_im=48,log_dt=56,Dskip=64,B_x=72,w_r=80,w_gate=88,w_up=96,w_down=104,c=112,w_mod=120,out=128,dbg=136,ws=144)
SZ = dict(A_u=2048*896,A_re=448*512,A_im=448*512,B_re=448*512,B_im=448*512,C_re=448*512,C_im=448*512,log_dt=896,Dskip=896,w_r=896,w_gate=448*3584,w_up=448*3584,w_down=1792*896,c=896,w_mod=448*5376,out=2048*896,dbg=256,ws=WS_SIZE)

def srd_load(a, s, name):
    a(f"s_load_dwordx2 s[{s}:{s+1}], s[0:1], {KA[name]}")
    a(f"s_mov_b32 s{s+2}, {SZ[name]}")
    a(f"s_mov_b32 s{s+3}, 0x20000")

def rnd2(a, x0, x1, tmp):
    a(f"v_cvt_pk_bf16_f32 v{tmp}, v{x0}, v{x1}")
    a(f"v_lshlrev_b32 v{x0}, 16, v{tmp}")
    a(f"v_and_b32 v{x1}, 0xffff0000, v{tmp}")
def rnd1(a, x0, tmp):
    a(f"v_cvt_pk_bf16_f32 v{tmp}, v{x0}, v{x0}")
    a(f"v_lshlrev_b32 v{x0}, 16, v{tmp}")

def wave_red(a, regs, op='v_add_f32'):
    zero = ' bound_ctrl:0'
    for sh in (1,2,4,8):
        for r in regs: a(f"{op}_dpp v{r}, v{r}, v{r} row_shr:{sh} row_mask:0xf bank_mask:0xf{zero}")
    for r in regs: a(f"{op}_dpp v{r}, v{r}, v{r} row_bcast:15 row_mask:0xa bank_mask:0xf")
    for r in regs: a(f"{op}_dpp v{r}, v{r}, v{r} row_bcast:31 row_mask:0xc bank_mask:0xf")

def exp_acc(a, dst, x, t, e, sLhi, sLlo, sLn2, neg=False):
    n = '-' if neg else ''
    a(f"v_mul_f32 v{t}, s{sLhi}, v{x}")
    a(f"v_fma_f32 v{e}, v{x}, s{sLhi}, -v{t}")
    a(f"v_fma_f32 v{e}, v{x}, s{sLlo}, v{e}")
    a(f"v_exp_f32 v{dst}, v{t}" if not neg else f"v_exp_f32_e64 v{dst}, -v{t}")
    a(f"v_mul_f32 v{e}, s{sLn2}, v{e}")
    a(f"v_fma_f32 v{dst}, v{dst}, {n}v{e}, v{dst}")

def div_acc(a, q, num, den, r, e):
    a(f"v_mul_f32 v{q}, v{num}, v{r}")
    a(f"v_fma_f32 v{e}, -v{q}, v{den}, v{num}")
    a(f"v_fma_f32 v{q}, v{e}, v{r}, v{q}")

def cmul(a, d, x, y, t):
    a(f"v_pk_mul_f32 v[{t}:{t+1}], v[{x}:{x+1}], v[{y}:{y+1}] op_sel:[0,0] op_sel_hi:[1,0]")
    a(f"v_pk_fma_f32 v[{d}:{d+1}], v[{x}:{x+1}], v[{y}:{y+1}], v[{t}:{t+1}] op_sel:[1,1,0] op_sel_hi:[0,1,1] neg_lo:[1,0,0]")

def pk(a, op, d, x, y, z=None, bcast1=False, neg1=False):
    m=''
    n = 3 if z is not None else 2
    if bcast1: m += ' op_sel:['+','.join(['0']*n)+'] op_sel_hi:['+','.join(['1','0','1'][:n])+']'
    if neg1: m += ' neg_lo:['+','.join(['0','1','0'][:n])+'] neg_hi:['+','.join(['0','1','0'][:n])+']'
    zz = f", v[{z}:{z+1}]" if z is not None else ''
    a(f"v_pk_{op}_f32 v[{d}:{d+1}], v[{x}:{x+1}], v[{y}:{y+1}]{zz}{m}")

def ln_stats(a, X, nrows, sums, tmp, S0):
    P=tmp+6*nrows
    for i in range(nrows):
        x=X[i][0]
        pk(a,'add',P,x,x+2); pk(a,'add',P+2,x+4,x+6); pk(a,'add',P,P,P+2)
        a(f"v_add_f32 v{sums[i]}, v{P}, v{P+1}")
    wave_red(a, sums)
    for i in range(nrows): a(f"v_readlane_b32 s{S0+i}, v{sums[i]}, 63")
    mean=[tmp+6*i for i in range(nrows)]; sd=[tmp+6*i+2 for i in range(nrows)]; ri=[tmp+6*i+4 for i in range(nrows)]
    a(f"v_mov_b32 v{P+4}, {hx(1.0/448)}")
    for i in range(nrows): a(f"v_mul_f32 v{mean[i]}, s{S0+i}, v{P+4}")
    for i in range(nrows): a(f"v_mov_b32 v{sums[i]}, 0")
    a(f"s_mov_b32 exec_hi, 0x00ffffff")
    for i in range(nrows):
        x=X[i][0]; acc=sd[i]
        pk(a,'add',P,x,mean[i],bcast1=True,neg1=True); pk(a,'add',P+2,x+2,mean[i],bcast1=True,neg1=True)
        pk(a,'mul',acc,P,P); pk(a,'fma',acc,P+2,P+2,acc)
        pk(a,'add',P,x+4,mean[i],bcast1=True,neg1=True); pk(a,'add',P+2,x+6,mean[i],bcast1=True,neg1=True)
        pk(a,'fma',acc,P,P,acc); pk(a,'fma',acc,P+2,P+2,acc)
        a(f"v_add_f32 v{sums[i]}, v{acc}, v{acc+1}")
    a(f"s_mov_b32 exec_hi, -1")
    a.nop(1)
    wave_red(a, sums)
    for i in range(nrows): a(f"v_readlane_b32 s{S0+i}, v{sums[i]}, 63")
    for i in range(nrows): a(f"v_mul_f32 v{sd[i]}, s{S0+i}, v{P+4}")
    for i in range(nrows): rnd2(a, mean[i], sd[i], P+(i&3))
    for i in range(nrows): a(f"v_add_f32 v{sd[i]}, {hx(1e-5)}, v{sd[i]}")
    for i in range(nrows): rnd1(a, sd[i], P+(i&3))
    for i in range(nrows): a(f"v_sqrt_f32 v{sd[i]}, v{sd[i]}")
    for i in range(nrows): rnd1(a, sd[i], P+(i&3))
    for i in range(nrows): a(f"v_rcp_f32 v{ri[i]}, v{sd[i]}")
    return mean, sd, ri

def ln_norm(a, x, out, m, s, ri, t0, final_round=True):
    for e in range(0,8,2):
        pk(a,'add',out[e],x[e],m,bcast1=True,neg1=True)
        rnd2(a, out[e], out[e+1], t0)
        pk(a,'mul',out[e],out[e],ri,bcast1=True)
        if final_round: rnd2(a, out[e], out[e+1], t0)

def unpack8(a, src, dst):
    for i in range(4):
        a(f"v_lshlrev_b32 v{dst[2*i]}, 16, v{src+i}")
        a(f"v_and_b32 v{dst[2*i+1]}, 0xffff0000, v{src+i}")

def idx_of_l(a, dst, lf, lu, t, c128, sc):
    a(f"v_cvt_pk_bf16_f32 v{t}, v{lf}, v{lf}")
    a(f"v_and_b32 v{t}, 0xffff, v{t}")
    a(f"v_subrev_u32 v{t}, {(134<<7)-128}, v{t}")
    a(f"v_cmp_lt_u32_e64 s[{sc}:{sc+1}], v{lu}, v{c128}")
    a(f"v_cndmask_b32_e64 v{dst}, v{t}, v{lu}, s[{sc}:{sc+1}]")

PROF = False
DIAG=False
def diag_end(a, kidx, slots):
    if not DIAG: return
    a("s_memrealtime s[94:95]")
    a("s_load_dwordx2 s[88:89], s[0:1], 136"); a("s_mov_b32 s90, 256"); a("s_mov_b32 s91, 0x20000")
    a("s_mov_b64 exec, 1")
    a("s_waitcnt lgkmcnt(0)")
    a("v_mov_b32 v98, 0")
    a("s_not_b32 s92, s70"); a("v_mov_b32 v99, s92"); a("buffer_atomic_umax v99, v98, s[88:91], 0 offen offset:192 sc1")
    a("v_mov_b32 v99, s94"); a("buffer_atomic_umax v99, v98, s[88:91], 0 offen offset:196 sc1")
    for j,sl in enumerate(slots):
        a(f"v_mov_b32 v99, s{70+2*sl}"); a(f"buffer_atomic_umax v99, v98, s[88:91], 0 offen offset:{200+4*j} sc1")
    a("s_mov_b64 exec, -1")
def stamp(a, i):
    if DIAG: a(f"s_memrealtime s[{70+2*i}:{71+2*i}]")
    if PROF:
        a(f"s_memrealtime s[{70+2*i}:{71+2*i}]")
        if i==0: a("s_memtime s[96:97]")
        if i==8: a("s_memtime s[100:101]")
        if i==9: a("s_memtime s[64:65]")
def prof_end(a, kidx, n, srd):
    if DIAG:
        diag_end(a, kidx, {(0,11):[2,4,7],(0,4):[]}.get((kidx,n),[]))
    if not PROF: return
    stamp(a, n); n+=1
    a("s_memtime s[98:99]")
    a("s_mov_b64 exec, -1")
    a("s_waitcnt lgkmcnt(0)")
    a("s_sub_u32 s98, s98, s96")
    for i in range(n): a(f"v_mov_b32 v{100+i}, s{70+2*i}")
    for i in range(n,12): a(f"v_mov_b32 v{100+i}, 0")
    a("v_lshrrev_b32 v99, 6, v0"); a("v_lshlrev_b32 v99, 6, v99")
    a(f"s_lshl_b32 s69, s2, 9"); a(f"s_add_u32 s69, s69, {WS_PROF+kidx*0x80000}")
    a("v_and_b32 v98, 63, v0"); a("v_cmp_eq_u32 vcc, 0, v98"); a("s_and_saveexec_b64 s[66:67], vcc")
    a("s_getreg_b32 s68, hwreg(HW_REG_HW_ID)"); a("v_mov_b32 v112, s68"); a("s_getreg_b32 s68, hwreg(HW_REG_XCC_ID)"); a("v_mov_b32 v113, s68"); a("v_mov_b32 v114, s98"); a("s_sub_u32 s64, s64, s100"); a("v_mov_b32 v115, s64")
    for j in range(4): a(f"buffer_store_dwordx4 v[{100+4*j}:{103+4*j}], v99, s[{srd}:{srd+3}], s69 offen offset:{16*j}")
    a("s_mov_b64 exec, -1")

N_GEMV=84; N_STAT=128; N_CONV=448; N_PROD=N_GEMV+N_STAT
REC=0; TAB=16384; TABN=664
C_P=0
C_KH=32768; C_KL=C_KH+4608; C_H0=C_KH+9216; C_H1=C_H0+4160+12
F1_LDS=C_H1+4160+4
assert C_H1%16==12 and F1_LDS%16==0

N_SIG=128+28; F1_GRID=668
def sig(a, lbl):
    a("v_mov_b32 v1, 0"); a("v_mov_b32 v2, 1"); a("v_mov_b32 v3, 1")
    a("v_cmp_eq_u32 vcc, 0, v0"); a("s_and_saveexec_b64 s[40:41], vcc")
    a(f"s_cbranch_execz {lbl}")
    a("buffer_atomic_add v2, v1, s[60:63], 0 offen sc0 sc1")
    a("s_waitcnt vmcnt(0)")
    a("v_readfirstlane_b32 s39, v2")
    a(f"s_cmp_lg_u32 s39, {N_SIG-1}"); a(f"s_cbranch_scc1 {lbl}")
    a("buffer_store_dword v3, v1, s[60:63], 0 offen offset:128 sc1")

def f1(a):
    a.label('f1_kernel'); stamp(a,0)
    a("s_load_dwordx16 s[4:19], s[0:1], 0"); a("s_load_dwordx4 s[20:23], s[0:1], 112"); a("s_load_dwordx4 s[24:27], s[0:1], 136")
    a(f"s_cmp_ge_u32 s2, {F1_GRID}"); a("s_cbranch_scc1 F1_end")
    a("s_cmp_ge_u32 s2, 660"); a("s_cbranch_scc1 F1_cpf")
    a("s_sub_u32 s42, s2, 576")
    a("s_cmp_ge_u32 s2, 604"); a("s_cbranch_scc1 F1_lowg")
    a("s_cmp_ge_u32 s2, 156"); a("s_cbranch_scc1 F1_conv")
    a("s_setprio 3")
    a("s_sub_u32 s42, s2, 128")
    a.label('F1_lowg')
    for (d,nm) in ((48,'A_u'),(52,'w_mod'),(56,'c'),(32,'ws'),(60,'dbg')):
        a(f"s_mov_b32 s{d+2}, {SZ[nm]}"); a(f"s_mov_b32 s{d+3}, 0x20000")
    a("s_waitcnt lgkmcnt(0)")
    a("s_mov_b64 s[48:49], s[4:5]"); a("s_mov_b64 s[52:53], s[22:23]"); a("s_mov_b64 s[56:57], s[20:21]"); a("s_mov_b64 s[32:33], s[26:27]"); a("s_mov_b64 s[60:61], s[24:25]")
    a(f"s_mov_b32 s36, {hx(L_HI)}"); a(f"s_mov_b32 s37, {hx(L_LO)}"); a(f"s_mov_b32 s38, {hx(LN2)}")
    a("s_mov_b32 s3, s2")
    a("s_cmp_ge_u32 s2, 128"); a("s_cbranch_scc1 F1_gemv")
    a("v_and_b32 v1, 63, v0"); a("v_lshrrev_b32 v2, 6, v0")
    a("s_mul_i32 s16, s3, 14336")
    a("v_mul_u32_u24 v3, 3584, v2"); a("v_lshl_add_u32 v3, v1, 4, v3")
    for i in range(16): a(f"v_mov_b32 v{96+i}, 0")
    a("s_waitcnt lgkmcnt(0)"); stamp(a,1)
    a("s_mov_b32 exec_hi, 0x00ffffff")
    for i in range(4): a(f"buffer_load_dwordx4 v[{96+4*i}:{99+4*i}], v3, s[48:51], s16 offen offset:{896*i}")
    a("s_mov_b32 exec_hi, -1")
    a("v_and_b32 v4, 15, v1"); a("v_lshlrev_b32 v4, 4, v4"); a("v_lshlrev_b32 v5, 3, v2"); a("v_xor_b32 v4, v4, v5")
    a("v_lshl_add_u32 v4, v1, 8, v4")
    a("v_lshlrev_b32 v7, 5, v2")
    a("s_lshl_b32 s18, s3, 7"); a(f"s_add_u32 s18, s18, {WS_ST}")
    a("v_lshlrev_b32 v5, 4, v0"); a("v_bfe_u32 v6, v0, 4, 4"); a("v_lshlrev_b32 v6, 4, v6"); a("v_xor_b32 v6, v6, v5")
    a(f"s_add_u32 s16, s16, {WS_NB}"); a("s_add_u32 s17, s16, 4096"); a("s_add_u32 s19, s16, 8192"); a("s_add_u32 s20, s16, 12288")
    a("s_waitcnt vmcnt(0)"); stamp(a,2)
    X=[[24+8*i+e for e in range(8)] for i in range(4)]
    for i in range(4): unpack8(a, 96+4*i, X[i])
    mean,sd,ri = ln_stats(a, X, 4, [56,57,58,59], 60, 64)
    for i in range(4): ln_norm(a, X[i], X[i], mean[i], sd[i], ri[i], 92+(i&1), final_round=False)
    a("s_mov_b32 exec_hi, 0x00ffffff")
    for e in range(8):
        q=16+2*(e&3)
        a(f"v_cvt_pk_bf16_f32 v{q}, v{X[0][e]}, v{X[1][e]}"); a(f"v_cvt_pk_bf16_f32 v{q+1}, v{X[2][e]}, v{X[3][e]}")
        a(f"v_xor_b32 v{92+(e&3)}, {32*e}, v4")
        a(f"ds_write_b64 v{92+(e&3)}, v[{q}:{q+1}]")
    a("s_mov_b32 exec_hi, -1")
    for i in range(4):
        a(f"v_mov_b32 v{8+2*i}, v{mean[i]}"); a(f"v_mov_b32 v{9+2*i}, v{ri[i]}")
    a("v_cmp_gt_u32 vcc, 128, v0")
    a("s_waitcnt lgkmcnt(0)"); a("s_barrier"); stamp(a,3)
    for it in range(4): a(f"ds_read_b128 v[{24+4*it}:{27+4*it}], v6 offset:{4096*it}")
    for it,sr in enumerate((16,17,19)):
        a(f"s_waitcnt lgkmcnt({3-it})")
        a(f"buffer_store_dwordx4 v[{24+4*it}:{27+4*it}], v5, s[32:35], s{sr} offen sc1")
    a("s_waitcnt lgkmcnt(0)")
    a("s_and_saveexec_b64 s[40:41], vcc")
    a("s_cbranch_execz F1_st3")
    a("buffer_store_dwordx4 v[36:39], v5, s[32:35], s20 offen sc1")
    a.label('F1_st3'); a("s_mov_b64 exec, s[40:41]")
    a("s_waitcnt vmcnt(0)"); a("s_barrier")
    a("s_mov_b32 exec_lo, 1"); a("s_mov_b32 exec_hi, 0")
    a("buffer_store_dwordx4 v[8:11], v7, s[32:35], s18 offen")
    a("buffer_store_dwordx4 v[12:15], v7, s[32:35], s18 offen offset:16")
    a("s_mov_b64 exec, -1")
    prof_end(a,0,4,32)
    sig(a,'F1_end')
    a("s_endpgm")
    a.label('F1_gemv'); a.flush()
    for i in range(7): a(f"s_mov_b32 s{20+i}, {344064*i}")
    a("v_lshrrev_b32 v1, 2, v0"); a("v_and_b32 v2, 3, v0")
    a("v_mul_u32_u24 v3, 5376, v1"); a("v_lshl_add_u32 v3, v2, 4, v3")
    a("s_lshl_b32 s39, s42, 6"); a("v_add_u32 v3, s39, v3")
    a("v_lshlrev_b32 v4, 1, v1")
    a("s_waitcnt lgkmcnt(0)")
    for i in range(7): a(f"buffer_load_ushort v{8+i}, v4, s[56:59], 0 offen offset:{128*i}")
    for i in range(7): a(f"buffer_load_dwordx4 v[{16+4*i}:{19+4*i}], v3, s[52:55], s{20+i} offen")
    a("s_waitcnt vmcnt(7)")
    R7=range(7)
    for i in R7: a(f"v_lshlrev_b32 v{8+i}, 16, v{8+i}")
    for i in R7: a(f"v_mul_f32 v{68+i}, s36, v{8+i}")
    for i in R7: a(f"v_fma_f32 v{76+i}, v{8+i}, s36, -v{68+i}")
    for i in R7: a(f"v_fma_f32 v{76+i}, v{8+i}, s37, v{76+i}")
    for i in R7: a(f"v_exp_f32_e64 v{68+i}, -v{68+i}")
    for i in R7: a(f"v_mul_f32 v{76+i}, s38, v{76+i}")
    for i in R7: a(f"v_fma_f32 v{68+i}, v{68+i}, -v{76+i}, v{68+i}")
    for i in R7: a(f"v_add_f32 v{68+i}, 1.0, v{68+i}")
    for i in R7: a(f"v_rcp_f32 v{76+i}, v{68+i}")
    for i in R7: a(f"v_mul_f32 v{84+i}, v{8+i}, v{76+i}")
    for i in R7: a(f"v_fma_f32 v{68+i}, -v{84+i}, v{68+i}, v{8+i}")
    for i in R7: a(f"v_fma_f32 v{84+i}, v{68+i}, v{76+i}, v{84+i}")
    for i in R7: a(f"v_cvt_pk_bf16_f32 v{84+i}, v{84+i}, v{84+i}")
    for i in R7: a(f"v_lshlrev_b32 v{68+2*i}, 16, v{84+i}")
    for e in range(8): a(f"v_mov_b32 v{48+e}, 0")
    for i in R7:
        a(f"s_waitcnt vmcnt({6-i})")
        for j in range(4):
            t=56+2*(j&1)
            a(f"v_lshlrev_b32 v{t}, 16, v{16+4*i+j}"); a(f"v_and_b32 v{t+1}, 0xffff0000, v{16+4*i+j}")
            pk(a,'fma',48+2*j,t,68+2*i,48+2*j,bcast1=True)
    for sh in (4,8):
        for e in range(8): a(f"v_add_f32_dpp v{48+e}, v{48+e}, v{48+e} row_ror:{sh} row_mask:0xf bank_mask:0xf")
    a("v_lshrrev_b32 v5, 4, v0"); a("v_lshlrev_b32 v5, 7, v5"); a("v_lshl_add_u32 v5, v2, 5, v5")
    a("v_and_b32 v6, 12, v0"); a("v_cmp_eq_u32 vcc, 0, v6")
    a("s_and_saveexec_b64 s[40:41], vcc")
    a("ds_write_b128 v5, v[48:51] offset:16384"); a("ds_write_b128 v5, v[52:55] offset:16400")
    a("s_mov_b64 exec, s[40:41]")
    a("s_waitcnt lgkmcnt(0)"); a("s_barrier")
    a("v_lshlrev_b32 v5, 2, v0")
    a("v_cmp_gt_u32 vcc, 32, v0"); a("s_and_saveexec_b64 s[40:41], vcc")
    a("s_cbranch_execz F1_end")
    for p in range(16): a(f"ds_read_b32 v{16+p}, v5 offset:{16384+128*p}")
    a("s_waitcnt lgkmcnt(0)")
    for st in (8,4,2,1):
        for p in range(st): a(f"v_add_f32 v{16+p}, v{16+p}, v{16+p+st}")
    rnd1(a, 16, 17)
    a("s_lshl_b32 s39, s42, 7"); a("v_add_u32 v5, s39, v5")
    a(f"buffer_store_dword v16, v5, s[32:35], 0 offen offset:{WS_MOD} sc1")
    a("s_sub_u32 s39, s42, 14"); a("s_cmp_lt_u32 s39, 14"); a("s_cselect_b32 s28, 1.0, 0")
    a("s_sub_u32 s39, s42, 56"); a("s_cmp_lt_u32 s39, 14"); a("s_cselect_b32 s28, 1.0, s28")
    a("v_add_f32 v18, s28, v16"); a("v_cvt_pk_bf16_f32 v18, v18, v18")
    a("v_lshrrev_b32 v6, 1, v5"); a(f"s_mov_b32 s39, {WS_MODB}")
    a("s_waitcnt vmcnt(0)")
    a("buffer_store_short v18, v6, s[32:35], s39 offen")
    a("s_cmp_ge_u32 s42, 28"); a("s_cbranch_scc1 F1_end")
    sig(a,'F1_end')
    a("s_endpgm")
    a.label('F1_cpf'); a.flush()
    a("s_getpc_b64 s[44:45]")
    a.label('F1_pcref')
    a("v_lshlrev_b32 v4, 6, v0"); a("v_add_u32 v6, 16384, v4")
    a("v_min_u32 v4, CODE_END-F1_pcref-4, v4"); a("v_min_u32 v6, CODE_END-F1_pcref-4, v6")
    a("v_mov_b32 v15, s45"); a("v_add_co_u32 v14, vcc, s44, v4"); a("v_addc_co_u32 v15, vcc, 0, v15, vcc")
    a("v_mov_b32 v17, s45"); a("v_add_co_u32 v16, vcc, s44, v6"); a("v_addc_co_u32 v17, vcc, 0, v17, vcc")
    a("global_load_dword v3, v[14:15], off"); a("global_load_dword v5, v[16:17], off")
    a("s_endpgm")
    a.label('F1_conv'); a.flush()
    conv_role(a)
    a.label('F1_end'); a("s_endpgm")

def conv_mfma(a,AA,BA,ACC2,BTS,NOLDS=False,NOMF=False,hook=None):
    bases=[BA,BA+1,BA+2,BA+3]
    ops=[]
    def issue(tag,text):
        if (not NOLDS) or (NOLDS is not True and NOLDS!=1 and tag[0] in NOLDS): a(text)
        ops.append(tag)
    pendq=[]
    real_issue=issue
    def defer(tag,text): pendq.append((tag,text))
    def drain(n=1):
        for _ in range(n):
            if pendq: real_issue(*pendq.pop(0))
    def wait(tags):
        idx=max(i for i,t in enumerate(ops) if t in tags)
        a(f"s_waitcnt lgkmcnt({min(len(ops)-1-idx,15)})")
    def bload(rr,m):
        k=7-m; bs=bases[k>>1]; off=(k&1)*128+16*rr; BT=BTS[rr]
        issue(('B',rr,m), f"ds_read2_b32 v[{BT+4*m}:{BT+4*m+1}], v{bs} offset0:{off} offset1:{off+1}")
        issue(('B',rr,m), f"ds_read2_b32 v[{BT+4*m+2}:{BT+4*m+3}], v{bs} offset0:{off+2} offset1:{off+3}")
    groups=[(rr,k) for rr in range(2) for k in range(4)]
    ATG=[28,44]
    def aload(gi):
        rr,k=groups[gi]; b=ATG[gi&1]
        for j,s_ in enumerate((k,7-k)):
            off=64*(8*s_+rr)
            issue(('A',gi,2*j), f"ds_read_b128 v[{b+8*j}:{b+8*j+3}], v{AA} offset:{C_KH+off}")
            issue(('A',gi,2*j+1), f"ds_read_b128 v[{b+8*j+4}:{b+8*j+7}], v{AA} offset:{C_KL+off}")
    issue(('A',0,0), f"ds_read_b128 v[{ATG[0]}:{ATG[0]+3}], v{AA} offset:{C_KH}")
    for m in range(8): bload(0,m)
    issue(('A',0,1), f"ds_read_b128 v[{ATG[0]+4}:{ATG[0]+7}], v{AA} offset:{C_KL}")
    issue(('A',0,2), f"ds_read_b128 v[{ATG[0]+8}:{ATG[0]+11}], v{AA} offset:{C_KH+64*56}")
    issue(('A',0,3), f"ds_read_b128 v[{ATG[0]+12}:{ATG[0]+15}], v{AA} offset:{C_KL+64*56}")
    last=[-99]*8; inited=[False]*8; slot=0; waited=set()
    remaining={c: sum(1 for (rr,k) in groups for s_ in (k,7-k) if c>=s_)*2 for c in range(8)}
    done_at={}; written=set()
    for gi,(rr,k) in enumerate(groups):
        drain(99)
        if gi==4 and hook: hook()
        issue=defer
        if gi+1<len(groups): aload(gi+1)
        if rr==0:
            for m in range(2*k,2*k+2): bload(1,m)
        for c in list(done_at):
            if c not in written and slot-done_at[c]>=0:
                issue(('W',c), f"ds_write_b128 v16, v[{ACC2+4*c}:{ACC2+4*c+3}] offset:{C_P+1024*c}"); written.add(c)
        b=ATG[gi&1]; BT=BTS[rr]
        todo=[(c,j,hl) for j,s_ in enumerate((k,7-k)) for hl in range(2) for c in range(s_,8)]
        while todo:
            if gi==0 and slot<8: pick=(slot,0,0)
            else:
                cnt={}
                for (c,j,hl) in todo: cnt[c]=cnt.get(c,0)+1
                pick=max(todo, key=lambda t:(min(slot-last[t[0]],3), cnt[t[0]], slot-last[t[0]], -t[1], -t[2]))
            todo.remove(pick); c,j,hl=pick
            s_=(k,7-k)[j]
            need={('A',gi,2*j+hl),('B',rr,c-s_)}-waited
            if need: wait(need);
            if need:
                idx=max(i for i,t in enumerate(ops) if t in need)
                waited|=set(ops[:idx+1])
            bt=BT+4*(c-s_); acc=ACC2+4*c; ar=b+8*j+4*hl
            cin = f"v[{acc}:{acc+3}]" if inited[c] else "0"
            if not NOMF: a(f"v_mfma_f32_16x16x32_bf16 v[{acc}:{acc+3}], v[{bt}:{bt+3}], v[{ar}:{ar+3}], {cin}")
            inited[c]=True; last[c]=slot; slot+=1
            if slot%2==0: drain(1)
            remaining[c]-=1
            if remaining[c]==0: done_at[c]=slot
    drain(99)
    return written,done_at

def conv_role(a):
    import kloop
    a("s_sub_u32 s38, s2, 156")
    a("s_setprio 1")
    a("s_cmp_lt_u32 s38, 256"); a("s_cbranch_scc1 F1_p1"); a("s_setprio 2")
    a.label('F1_p1')
    if CODEPF>=2:
        a("s_cmp_ge_u32 s38, 16"); a("s_cbranch_scc1 F1_cpf2")
        a("s_getpc_b64 s[46:47]")
        a.label('F1_pcref2')
        a("v_lshlrev_b32 v4, 6, v0"); a("v_mov_b32 v5, s47"); a("v_add_co_u32 v4, vcc, s46, v4"); a("v_addc_co_u32 v5, vcc, 0, v5, vcc")
        a(f"v_cmp_gt_u32 vcc, (k3_kernel-F1_pcref2)/64, v0"); a("s_and_saveexec_b64 s[48:49], vcc")
        a("s_cbranch_execz F1_cpf1")
        a("global_load_dword v153, v[4:5], off")
        a.label('F1_cpf1'); a("s_mov_b64 exec, -1")
        a.label('F1_cpf2'); a.flush()
    a("s_and_b32 s3, s38, 7"); a("s_mul_i32 s3, s3, 56"); a("s_lshr_b32 s39, s38, 3"); a("s_add_u32 s3, s3, s39")
    a(f"s_mov_b32 s40, {hx(L_HI)}"); a(f"s_mov_b32 s41, {hx(L_LO)}"); a(f"s_mov_b32 s42, {hx(LN2)}")
    a(f"s_mov_b32 s43, {hx(I2P_HI)}"); a(f"s_mov_b32 s44, {hx(I2P_LO)}")
    a("s_lshl_b32 s36, s3, 9"); a("s_lshl_b32 s37, s3, 1")
    a("v_lshlrev_b32 v1, 1, v0"); a("v_mov_b32 v2, s37")
    for (d,nm) in ((28,'log_dt'),(32,'ws'),(60,'dbg'),(48,'A_re'),(52,'A_re'),(56,'A_re')):
        a(f"s_mov_b32 s{d+2}, {SZ[nm]}"); a(f"s_mov_b32 s{d+3}, 0x20000")
    a("s_waitcnt lgkmcnt(0)"); stamp(a,1)
    a("s_mov_b64 s[28:29], s[18:19]"); a("s_mov_b64 s[32:33], s[26:27]"); a("s_mov_b64 s[60:61], s[24:25]")
    a("buffer_load_ushort v3, v2, s[28:31], 0 offen")
    for i in range(6):
        d=48+4*(i%3)
        a(f"s_mov_b64 s[{d}:{d+1}], s[{6+2*i}:{7+2*i}]")
        a(f"buffer_load_ushort v{4+i}, v1, s[{d}:{d+3}], s36 offen")
    a("v_and_b32 v10, 63, v0"); a("v_and_b32 v11, 15, v0"); a("v_bfe_u32 v12, v0, 4, 2"); a("v_lshrrev_b32 v13, 6, v0")
    a("v_mov_b32 v14, v11")
    a("v_lshlrev_b32 v15, 1, v11"); a("v_add_u32 v15, 240, v15")
    a("v_cmp_le_u32_e64 s[46:47], 8, v11"); a("v_cmp_le_u32_e64 s[48:49], 12, v11"); a("v_cmp_le_u32_e64 s[50:51], 14, v11")
    a("v_lshlrev_b32 v20, 2, v11"); a("v_add_u32 v21, 464, v20"); a("v_add_u32 v20, 712, v20")
    a("v_cndmask_b32_e64 v14, v14, v15, s[46:47]"); a("v_cndmask_b32_e64 v14, v14, v21, s[48:49]"); a("v_cndmask_b32_e64 v14, v14, v20, s[50:51]")
    a("v_cvt_f32_u32 v16, v14"); a("v_sub_f32 v17, 0, v16")
    a("v_lshlrev_b32 v15, 3, v11"); a("v_cvt_f32_u32 v18, v15"); a("v_mov_b32 v19, v18")
    ACC=112; SA=154
    a(f"v_mul_u32_u24 v2, {TABN*4}, v13")
    a("v_cmp_le_u32_e64 s[46:47], 2, v12"); a("v_cmp_eq_u32_e64 s[48:49], 3, v12")
    a("v_add_u32 v20, -1, v12"); a("v_max_i32 v20, 0, v20"); a("v_sub_u32 v21, 3, v20")
    a("v_lshlrev_b32 v22, v21, v11")
    a("v_lshlrev_b32 v23, 2, v12"); a("v_lshlrev_b32 v24, 7, v12"); a("v_cndmask_b32_e64 v23, v23, v24, s[46:47]")
    a("v_add_u32 v22, v22, v23"); a(f"v_lshl_add_u32 v{SA}, v22, 2, v2")
    a(f"v_add_u32 v24, 248, v{SA}"); a(f"v_cndmask_b32_e64 v{SA+1}, v{SA}, v24, s[48:49]")
    a("v_mov_b32 v25, 64"); a("v_lshlrev_b32 v24, v21, v25")
    a(f"v_add_u32 v{SA+2}, v{SA}, v24"); a(f"v_add_u32 v{SA+3}, v{SA+1}, v24")
    a("v_lshl_add_u32 v22, v12, 5, v11"); a(f"v_lshl_add_u32 v{SA+4}, v22, 2, v2")
    scat=[]
    for C in range(2):
        for r in range(4): scat.append((SA+2*C+(r>>1), 4*r, ACC+4*C+r))
        scat.append((SA+4, 2048+64*C, ACC+8+4*C))
    a("v_and_b32 v24, 3, v11")
    for e in range(4): a(f"v_cmp_eq_u32_e64 s[{46+2*e}:{47+2*e}], {e}, v24")
    for e in range(4): a(f"v_cndmask_b32_e64 v{20+e}, 0, -1, s[{46+2*e}:{47+2*e}]")
    a("v_lshlrev_b32 v159, 6, v13"); a("v_lshl_add_u32 v159, v12, 2, v159")
    a("v_add_u32 v15, v159, v24"); a("v_lshlrev_b32 v15, 5, v15"); a("v_lshrrev_b32 v24, 2, v11"); a("v_lshl_add_u32 v15, v24, 3, v15")
    a(f"v_add_u32 v15, {kloop.T2}, v15")
    a("v_lshlrev_b32 v159, 5, v159")
    for i in range(16): a(f"v_mov_b32 v{ACC+i}, 0")
    a("s_waitcnt vmcnt(6)")
    a("v_lshlrev_b32 v3, 16, v3")
    exp_acc(a, 40, 3, 41, 42, 40, 41, 42)
    rnd1(a, 40, 41)
    a("s_waitcnt vmcnt(0)"); stamp(a,2)
    for i in range(6): a(f"v_lshlrev_b32 v{4+i}, 16, v{4+i}")
    a("v_mul_f32 v4, v40, v4"); a("v_mul_f32 v5, v40, v5"); a("v_mul_f32 v6, v40, v6"); a("v_mul_f32 v7, v40, v7")
    a("v_mul_f32 v24, s40, v4")
    a("v_mul_f32 v25, s43, v5"); a("v_and_b32 v25, 0xffffff00, v25")
    a("v_fma_f32 v26, v5, s43, -v25"); a("v_fma_f32 v26, v5, s44, v26")
    cmul(a, 28, 8, 6, 36)
    a("v_sub_f32 v29, 0, v29")
    ds=[(30,128,+1,48),(32,1024,-1,56),(34,256,-1,64)]
    for (dst,l,sg,T) in ds: a(f"v_mov_b32 v{T}, {hx(float(l))}"); a(f"v_mov_b32 v{T+1}, {hx(float(sg*l))}")
    for (dst,l,sg,T) in ds: a(f"v_pk_mul_f32 v[{T+4}:{T+5}], v[24:25], v[{T}:{T+1}]")
    for (dst,l,sg,T) in ds: a(f"v_exp_f32 v{T+2}, v{T+4}")
    for (dst,l,sg,T) in ds: a(f"v_fract_f32 v{T+5}, v{T+5}")
    for (dst,l,sg,T) in ds: a(f"v_fma_f32 v{T+5}, v26, v{T+1}, v{T+5}")
    for (dst,l,sg,T) in ds: a(f"v_cos_f32 v{T+4}, v{T+5}"); a(f"v_sin_f32 v{T+5}, v{T+5}")
    for (dst,l,sg,T) in ds: a(f"v_pk_mul_f32 v[{dst}:{dst+1}], v[{T+4}:{T+5}], v[{T+2}:{T+3}] op_sel:[0,0] op_sel_hi:[1,0]")
    a("v_lshlrev_b32 v1, 5, v0")
    a(f"ds_write_b128 v1, v[24:27] offset:{REC}"); a(f"ds_write_b128 v1, v[28:31] offset:{REC+16}")
    cmul(a, 72, 32, 28, 36); cmul(a, 74, 72, 34, 36); cmul(a, 76, 74, 34, 36); cmul(a, 78, 76, 34, 36)
    a("v_mul_f32 v44, v78, v34"); a("v_fma_f32 v44, -v79, v35, v44")
    for sidx in range(4):
        x=72+2*sidx; h=80+2*sidx; T=48+2*sidx
        a(f"v_cvt_pk_bf16_f32 v{h}, v{x}, v{x+1}")
        a(f"v_lshlrev_b32 v{T}, 16, v{h}"); a(f"v_and_b32 v{T+1}, 0xffff0000, v{h}")
        a(f"v_pk_add_f32 v[{T}:{T+1}], v[{x}:{x+1}], v[{T}:{T+1}] neg_lo:[0,1] neg_hi:[0,1]")
        a(f"v_cvt_pk_bf16_f32 v{h+1}, v{T}, v{T+1}")
    a(f"ds_write_b128 v1, v[80:83] offset:{kloop.T2}"); a(f"ds_write_b128 v1, v[84:87] offset:{kloop.T2+16}")
    wave_red(a, [44])
    a("v_cmp_eq_u32 vcc, 63, v10"); a("s_and_saveexec_b64 s[46:47], vcc")
    a(f"ds_write_b32 v2, v44 offset:{TAB+640*4}")
    a("s_mov_b64 exec, s[46:47]")
    a("v_mov_b32 v1, v159")
    a("v_mov_b32 v3, 128")
    stamp(a,3)
    a("s_waitcnt lgkmcnt(0)")
    kloop.PLACE=1
    kloop.v2(a, 4, standalone=False, hook=lambda: a("buffer_load_dword v4, v3, s[60:63], 0 offen sc1"))
    stamp(a,4)
    a(f"s_setprio {PREPPRIO}")
    srd_load(a,4,'w_gate'); srd_load(a,8,'w_up'); srd_load(a,16,'w_down')
    a("v_lshrrev_b32 v5, 1, v0"); a("v_mul_u32_u24 v5, 14336, v5"); a("v_and_b32 v6, 1, v0"); a("v_lshl_add_u32 v5, v6, 4, v5")
    a("s_lshl_b32 s12, s3, 5"); a(f"s_add_u32 s12, s12, {WS_NB}")
    a("s_lshl_b32 s14, s3, 2"); a("v_mov_b32 v7, s14")
    a("v_lshlrev_b32 v6, 4, v0")
    a("v_readfirstlane_b32 s48, v13")
    def nloads():
        a("buffer_load_dwordx4 v[80:83], v5, s[32:35], s12 offen sc1")
        a(f"buffer_load_dword v9, v7, s[32:35], 0 offen offset:{WS_MOD} sc1")
        a(f"buffer_load_dword v14, v7, s[32:35], 0 offen offset:{WS_MOD+1792} sc1")
    a("s_waitcnt vmcnt(0)")
    a("v_readfirstlane_b32 s13, v4")
    a("s_cmp_eq_u32 s13, 0"); a("s_cbranch_scc1 F1_notyet")
    nloads()
    a.label('F1_notyet'); a.flush(); stamp(a,5)
    for i in range(4): a(f"v_mov_b32 v{140+i}, 0")
    for C in range(2):
        b=ACC+8+4*C
        a(f"v_add_f32 v{b}, v{b}, v{b+1}"); a(f"v_add_f32 v{b+2}, v{b+2}, v{b+3}"); a(f"v_add_f32 v{b}, v{b}, v{b+2}")
    for (sa,off,src) in scat: a(f"ds_write_b32 v{sa}, v{src} offset:{TAB+off}")
    a("v_cmp_gt_u32 vcc, 30, v0"); a("s_and_saveexec_b64 s[46:47], vcc")
    a(f"ds_write_b128 v6, v[140:143] offset:{C_KH}"); a(f"ds_write_b128 v6, v[140:143] offset:{C_KL}")
    a("v_cmp_gt_u32 vcc, 2, v0"); a("s_and_b64 exec, exec, vcc")
    a(f"ds_write_b128 v6, v[140:143] offset:{C_H0+4096}"); a(f"ds_write_b128 v6, v[140:143] offset:{C_H1+4100}")
    a("s_mov_b64 exec, s[46:47]")
    AA=20; BA=21
    a(f"v_lshlrev_b32 v{AA}, 5, v11"); a(f"v_lshl_add_u32 v{AA}, v12, 4, v{AA}"); a(f"v_lshl_add_u32 v{AA}, v13, 7, v{AA}")
    a(f"v_and_b32 v{BA}, 14, v11"); a(f"v_lshlrev_b32 v{BA}, 1, v{BA}")
    a("v_lshlrev_b32 v16, 4, v12"); a(f"v_sub_u32 v{BA}, v16, v{BA}")
    a("v_and_b32 v16, 1, v11"); a(f"v_mul_u32_u24 v16, {C_H1-C_H0}, v16")
    a(f"v_add_u32 v{BA}, v{BA}, v16"); a(f"v_add_u32 v{BA}, {C_H0+3616-512*7}, v{BA}"); a(f"v_lshl_add_u32 v{BA}, v13, 7, v{BA}")
    for q in range(1,4): a(f"v_add_u32 v{BA+q}, {1024*q}, v{BA}")
    a("v_sub_u32 v8, 4080, v6")
    a("s_waitcnt lgkmcnt(0)"); a("s_barrier"); stamp(a,6)
    W4=TABN; EB=28
    def rd2(dst, j, w): a(f"ds_read2_b32 v[{dst}:{dst+1}], v{EB+w} offset0:{j} offset1:{j+1}")
    a("s_cmp_eq_u32 s48, 0"); a("s_cbranch_scc1 F1_expA")
    a("s_cmp_eq_u32 s48, 1"); a("s_cbranch_scc1 F1_expB")
    a(f"v_lshlrev_b32 v{EB}, 2, v0"); a(f"v_add_u32 v{EB}, {TAB+384*4}, v{EB}")
    for w in range(1,4): a(f"v_add_u32 v{EB+w}, {W4*4*w}, v{EB}")
    for w in range(4): rd2(32+2*w, 0, w)
    a("v_and_b32 v16, 1, v0"); a("v_cmp_eq_u32 vcc, 1, v16")
    a("s_waitcnt lgkmcnt(0)")
    for j in range(2):
        a(f"v_add_f32 v{32+j}, v{32+j}, v{34+j}"); a(f"v_add_f32 v{36+j}, v{36+j}, v{38+j}")
    a("v_add_f32 v64, v32, v36"); a("v_add_f32 v69, v33, v37")
    a("v_cndmask_b32_e64 v68, v64, v69, vcc")
    a("v_mov_b32 v65, v64"); a("v_mov_b32 v66, v64"); a("v_mov_b32 v67, v64"); a("v_mov_b32 v70, v69"); a("v_mov_b32 v71, v69")
    a("s_branch F1_expD")
    a.label('F1_expB'); a.flush()
    a(f"v_lshlrev_b32 v{EB}, 3, v0"); a(f"v_add_u32 v{EB}, {TAB+256*4}, v{EB}")
    for w in range(1,4): a(f"v_add_u32 v{EB+w}, {W4*4*w}, v{EB}")
    for w in range(4): rd2(32+4*w, 0, w); rd2(34+4*w, 2, w)
    a("s_waitcnt lgkmcnt(0)")
    for j in range(3):
        a(f"v_add_f32 v{32+j}, v{32+j}, v{36+j}"); a(f"v_add_f32 v{40+j}, v{40+j}, v{44+j}")
    a("v_add_f32 v64, v32, v40"); a("v_add_f32 v67, v33, v41"); a("v_add_f32 v70, v34, v42")
    a("v_mov_b32 v65, v64"); a("v_mov_b32 v66, v64"); a("v_mov_b32 v68, v67"); a("v_mov_b32 v69, v67"); a("v_mov_b32 v71, v70")
    a("s_branch F1_expD")
    a.label('F1_expA'); a.flush()
    a(f"v_lshlrev_b32 v{EB}, 5, v0"); a("v_lshlrev_b32 v16, 4, v0"); a("v_add_u32 v16, 512, v16")
    a("v_cmp_gt_u32 vcc, 32, v0"); a(f"v_cndmask_b32_e64 v{EB}, v16, v{EB}, vcc"); a(f"v_add_u32 v{EB}, {TAB}, v{EB}")
    for w in range(1,4): a(f"v_add_u32 v{EB+w}, {W4*4*w}, v{EB}")
    for w in range(4):
        for j in range(0,8,2): rd2(32+8*w+j, j, w)
    a("s_waitcnt lgkmcnt(0)")
    for j in range(8):
        a(f"v_add_f32 v{32+j}, v{32+j}, v{40+j}"); a(f"v_add_f32 v{48+j}, v{48+j}, v{56+j}"); a(f"v_add_f32 v{32+j}, v{32+j}, v{48+j}")
    t1=[0,0,1,2,2,2,3,4]
    for e in range(8): a(f"v_cndmask_b32_e64 v{64+e}, v{32+t1[e]}, v{32+e}, vcc")
    a.label('F1_expD'); a.flush()
    for j in range(4):
        x=64+2*j
        a(f"v_cvt_pk_bf16_f32 v{72+j}, v{x}, v{x+1}")
        a(f"v_lshlrev_b32 v{32+2*j}, 16, v{72+j}"); a(f"v_and_b32 v{33+2*j}, 0xffff0000, v{72+j}")
        a(f"v_pk_add_f32 v[{32+2*j}:{33+2*j}], v[{x}:{x+1}], v[{32+2*j}:{33+2*j}] neg_lo:[0,1] neg_hi:[0,1]")
        a(f"v_cvt_pk_bf16_f32 v{76+j}, v{32+2*j}, v{33+2*j}")
    a(f"ds_write_b128 v6, v[72:75] offset:{C_KH+480}"); a(f"ds_write_b128 v6, v[76:79] offset:{C_KL+480}")
    a("s_cmp_lg_u32 s13, 0"); a("s_cbranch_scc1 F1_ready")
    a("s_setprio 0")
    a("s_mov_b32 s45, 0")
    a.label('F1_poll')
    a("buffer_load_dword v4, v3, s[60:63], 0 offen sc1")
    a("s_waitcnt vmcnt(0)")
    a("v_readfirstlane_b32 s13, v4")
    a("s_cmp_lg_u32 s13, 0"); a("s_cbranch_scc1 F1_got")
    a("s_add_u32 s45, s45, 1"); a("s_cmp_ge_u32 s45, 0x40000"); a("s_cbranch_scc1 F1_got")
    a("s_sleep 2")
    a("s_branch F1_poll")
    a.label('F1_got'); a.flush()
    a("s_setprio 2")
    nloads()
    a.label('F1_ready'); a.flush()
    a("s_waitcnt vmcnt(0)"); stamp(a,7)
    a("v_add_f32 v14, 1.0, v14"); rnd1(a, 14, 15)
    unpack8(a, 80, [48+e for e in range(8)])
    for e in range(0,8,2):
        h0,h1=48+e,49+e
        a(f"v_mul_f32 v{h0}, v{h0}, v14"); a(f"v_mul_f32 v{h1}, v{h1}, v14"); rnd2(a,h0,h1,15)
        a(f"v_add_f32 v{h0}, v{h0}, v9"); a(f"v_add_f32 v{h1}, v{h1}, v9")
    for j in range(4): a(f"v_cvt_pk_bf16_f32 v{60+j}, v{48+7-2*j}, v{48+6-2*j}")
    for j in range(1,4): a(f"v_cvt_pk_bf16_f32 v{64+j}, v{48+8-2*j}, v{48+7-2*j}")
    a(f"ds_write_b128 v8, v[60:63] offset:{C_H1+4}")
    a(f"ds_write_b16 v8, v60 offset:{C_H0+2}")
    a(f"ds_write_b32 v8, v65 offset:{C_H0+4}")
    a(f"ds_write_b64 v8, v[66:67] offset:{C_H0+8}")
    a(f"ds_write_b16_d16_hi v8, v63 offset:{C_H0+16}")
    a("v_bfe_u32 v16, v11, 1, 2"); a("v_xor_b32 v16, v16, v12"); a("v_lshlrev_b32 v16, 4, v16")
    a("v_lshl_add_u32 v16, v11, 6, v16"); a("v_lshl_add_u32 v16, v13, 13, v16")
    a("v_and_b32 v4, 1, v0"); a("v_lshlrev_b32 v4, 1, v4"); a("v_bfe_u32 v17, v0, 2, 2")
    a("v_xor_b32 v18, v4, v17"); a("v_xor_b32 v19, 1, v18")
    a("v_lshrrev_b32 v17, 1, v0"); a("v_lshlrev_b32 v17, 6, v17")
    a("v_lshl_add_u32 v18, v18, 4, v17"); a("v_lshl_add_u32 v19, v19, 4, v17")
    a("v_mul_u32_u24 v5, 7168, v0")
    a("s_lshl_b32 s12, s3, 4"); a(f"s_add_u32 s12, s12, {WS_YB}")
    ACC2=64; BTS=[96,128]; AT=[28,36,44]
    a("s_and_b32 s22, s2, 7"); a("s_lshr_b32 s23, s38, 3")
    a("v_lshrrev_b32 v4, 3, v10"); a("v_and_b32 v7, 7, v10"); a("v_lshlrev_b32 v7, 6, v7"); a("v_min_u32 v7, 444, v7")
    a("v_mul_u32_u24 v4, 3584, v4"); a("v_add_u32 v4, v4, v7")
    a("s_mul_i32 s24, s23, 28672"); a("s_mul_i32 s25, s22, 448"); a("s_add_u32 s24, s24, s25")
    a("s_mul_i32 s26, s22, 224"); a("s_lshl_b32 s25, s23, 2"); a("s_add_u32 s26, s26, s25"); a("s_mul_i32 s26, s26, 896")
    a("v_lshlrev_b32 v7, 6, v10"); a("v_min_u32 v7, 3520, v7")
    def pfhook():
        a("s_cmp_eq_u32 s48, 0"); a("s_cbranch_scc0 F1_pf1")
        a("buffer_load_dword v3, v4, s[4:7], s24 offen")
        a.label('F1_pf1')
        a("s_cmp_eq_u32 s48, 1"); a("s_cbranch_scc0 F1_pf2")
        a("buffer_load_dword v3, v4, s[8:11], s24 offen")
        a.label('F1_pf2')
        a("s_cmp_eq_u32 s48, 2"); a("s_cbranch_scc0 F1_pf3")
        a("buffer_load_dword v3, v7, s[16:19], s26 offen")
        a.label('F1_pf3')
    a("s_waitcnt lgkmcnt(0)"); a("s_barrier"); stamp(a,8)
    a("s_setprio 0")
    if PROF or DIAG: a("s_waitcnt lgkmcnt(0)")
    written,done_at=conv_mfma(a,AA,BA,ACC2,BTS,hook=pfhook)
    stamp(a,9)
    a("s_setprio 2")
    for c in sorted(set(range(8))-written, key=lambda c: done_at[c]):
        a(f"ds_write_b128 v16, v[{ACC2+4*c}:{ACC2+4*c+3}] offset:{C_P+1024*c}")
    a("s_waitcnt lgkmcnt(0)"); a("s_barrier"); stamp(a,10)
    for w in range(4):
        a(f"ds_read_b128 v[{64+8*w}:{67+8*w}], v18 offset:{C_P+8192*w}")
        a(f"ds_read_b128 v[{68+8*w}:{71+8*w}], v19 offset:{C_P+8192*w}")
    a("s_waitcnt lgkmcnt(0)")
    for e in range(8):
        a(f"v_add_f32 v{64+e}, v{64+e}, v{72+e}"); a(f"v_add_f32 v{80+e}, v{80+e}, v{88+e}"); a(f"v_add_f32 v{64+e}, v{64+e}, v{80+e}")
    for e in range(0,8,2): a(f"v_cvt_pk_bf16_f32 v{20+e//2}, v{64+e}, v{65+e}")
    a("buffer_store_dwordx4 v[20:23], v5, s[32:35], s12 offen"+STF[0])
    prof_end(a,0,11,32)

L3_C=7168
def k3(a):
    a.label('k3_kernel'); a.flush(); stamp(a,0)
    a("s_cmp_ge_u32 s2, 256"); a("s_cbranch_scc1 L3_end")
    srd_load(a,4,'ws'); srd_load(a,8,'w_r'); srd_load(a,12,'out'); srd_load(a,36,'A_u'); srd_load(a,40,'Dskip')
    srd_load(a,44,'w_gate'); srd_load(a,48,'w_up'); srd_load(a,52,'w_down')
    a("v_and_b32 v1, 63, v0"); a("v_lshrrev_b32 v2, 6, v0")
    a("v_lshlrev_b32 v3, 5, v0")
    a("s_mul_i32 s16, s2, 7168"); a(f"s_add_u32 s17, s16, {WS_YB}")
    a("v_lshlrev_b32 v5, 4, v1")
    for i in range(36): a(f"v_mov_b32 v{88+i}, 0")
    a("v_readfirstlane_b32 s18, v2")
    a("v_mul_u32_u24 v6, 896, v2"); a("v_add_u32 v6, v6, v5")
    a("v_lshlrev_b32 v7, 3, v2"); a("s_lshl_b32 s19, s2, 6"); a(f"s_add_u32 s19, s19, {WS_ST}")
    a("s_mov_b32 s30, 0x05040100"); a("s_mov_b32 s31, 0x07060302")
    a("v_cmp_gt_u32 vcc, 224, v0")
    a("s_waitcnt lgkmcnt(0)"); stamp(a,1)
    a("s_cmp_ge_u32 s18, 4"); a("s_cbranch_scc1 L3_cw")
    a("s_and_saveexec_b64 s[20:21], vcc")
    a("buffer_load_dwordx4 v[8:11], v3, s[4:7], s17 offen")
    a("buffer_load_dwordx4 v[12:15], v3, s[4:7], s17 offen offset:16")
    a("s_mov_b64 exec, s[20:21]")
    a("buffer_load_dwordx2 v[124:125], v7, s[4:7], s19 offen")
    a("s_mov_b32 exec_hi, 0x00ffffff")
    a("buffer_load_dwordx4 v[120:123], v6, s[36:39], s16 offen")
    a("s_mov_b32 exec_hi, -1")
    a("v_lshlrev_b32 v3, 2, v0")
    a("s_waitcnt vmcnt(2)"); stamp(a,2)
    a("s_and_saveexec_b64 s[20:21], vcc")
    for j in range(4):
        a(f"v_perm_b32 v{16+2*j}, v{12+j}, v{8+j}, s30"); a(f"v_perm_b32 v{17+2*j}, v{12+j}, v{8+j}, s31")
    for j in range(8): a(f"ds_write_b32 v3, v{16+j} offset:{896*j}")
    a("s_mov_b64 exec, s[20:21]")
    a("s_branch L3_join")
    a.label('L3_cw'); a.flush()
    a("s_sub_u32 s22, s18, 4"); a("s_mul_i32 s22, s22, 1792"); a(f"s_add_u32 s23, s22, {L3_C}"); a("s_mov_b32 m0, s23")
    a(f"s_add_u32 s22, s22, {WS_MODB}")
    a("s_mov_b32 exec_hi, 0x00ffffff")
    a("s_cmp_eq_u32 s18, 7"); a("s_cbranch_scc1 L3_cw7")
    a("buffer_load_dwordx4 v5, s[4:7], s22 offen lds")
    a("buffer_load_dwordx4 v5, s[4:7], s22 offen offset:896 lds")
    a("s_branch L3_cw8")
    a.label('L3_cw7'); a.flush()
    a("buffer_load_dwordx4 v5, s[40:43], 0 offen lds")
    a("s_add_u32 s23, s23, 896"); a("s_mov_b32 m0, s23")
    a("buffer_load_dwordx4 v5, s[8:11], 0 offen lds")
    a.label('L3_cw8'); a.flush()
    a("buffer_load_dwordx4 v[120:123], v6, s[36:39], s16 offen")
    a("s_mov_b32 exec_hi, -1")
    a("buffer_load_dwordx2 v[124:125], v7, s[4:7], s19 offen")
    if PREFETCH==2:
        a("s_and_b32 s33, s2, 7"); a("s_lshr_b32 s34, s2, 3")
        a("v_subrev_u32 v16, 256, v0")
        a("v_subrev_u32 v17, 112, v16"); a("v_cmp_gt_u32 vcc, 112, v16"); a("s_mov_b64 s[56:57], vcc"); a("v_cndmask_b32_e64 v17, v17, v16, vcc")
        a("v_lshrrev_b32 v18, 3, v17"); a("v_and_b32 v19, 7, v17"); a("v_lshlrev_b32 v19, 6, v19"); a("v_min_u32 v19, 444, v19")
        a("v_mul_u32_u24 v18, 3584, v18"); a("v_add_u32 v18, v18, v19")
        a("s_mul_i32 s35, s34, 50176"); a("s_mul_i32 s58, s33, 448"); a("s_add_u32 s35, s35, s58")
        a("s_mul_i32 s58, s33, 224"); a("s_mul_i32 s59, s34, 7"); a("s_add_u32 s58, s58, s59"); a("s_mul_i32 s58, s58, 896")
        a("v_lshlrev_b32 v19, 6, v16")
        a("v_cmp_gt_u32 vcc, 224, v16"); a("s_mov_b64 s[60:61], vcc"); a("v_cmp_gt_u32 vcc, 98, v16"); a("s_mov_b64 s[62:63], vcc")
        a("s_waitcnt vmcnt(0)")
        a("s_andn2_b64 s[60:61], s[60:61], s[56:57]")
        a("s_mov_b64 exec, s[56:57]"); a("buffer_load_dword v127, v18, s[44:47], s35 offen")
        a("s_mov_b64 exec, s[60:61]"); a("buffer_load_dword v127, v18, s[48:51], s35 offen")
        a("s_mov_b64 exec, s[62:63]"); a("buffer_load_dword v127, v19, s[52:55], s58 offen")
        a("s_mov_b64 exec, -1")
        a("s_branch L3_join2")
    a.label('L3_join'); a.flush()
    a("s_waitcnt vmcnt(0)")
    a.label('L3_join2'); a.flush()
    X0=[24+e for e in range(8)]; H1=[32+e for e in range(8)]
    for i in range(4): a(f"v_mov_b32 v{8+i}, 0")
    unpack8(a, 120, X0)
    a("v_mov_b32 v126, v125")
    ln_norm(a, X0, H1, 124, None, 126, 48)
    a("s_waitcnt lgkmcnt(0)"); a("s_barrier"); stamp(a,3)
    a("s_mov_b32 exec_hi, 0x00ffffff")
    for k in (1,0,6): a(f"ds_read_b128 v[{88+4*k}:{91+4*k}], v5 offset:{L3_C+896*k}")
    a("ds_read_b128 v[8:11], v6")
    for k in (2,4,3,7,5): a(f"ds_read_b128 v[{88+4*k}:{91+4*k}], v5 offset:{L3_C+896*k}")
    a("s_mov_b32 exec_hi, -1")
    T=[64+e for e in range(8)]; T2_=[72+e for e in range(8)]; T3=[80+e for e in range(8)]
    a("s_waitcnt lgkmcnt(6)")
    unpack8(a, 92, T); unpack8(a, 88, T2_); unpack8(a, 112, T3)
    for e in range(0,8,2):
        h0,h1=H1[e],H1[e+1]
        pk(a,'mul',h0,h0,T[e]); rnd2(a,h0,h1,48)
        pk(a,'add',h0,h0,T2_[e]); rnd2(a,h0,h1,48)
        pk(a,'mul',h0,h0,T3[e]); rnd2(a,h0,h1,48)
    a("s_waitcnt lgkmcnt(4)")
    X=[[16+e for e in range(8)]]
    unpack8(a, 8, X[0]); unpack8(a, 96, T)
    for e in range(0,8,2):
        y0,y1=X[0][e],X[0][e+1]
        pk(a,'add',y0,y0,H1[e]); rnd2(a,y0,y1,48)
        pk(a,'mul',y0,y0,T[e]); rnd2(a,y0,y1,48)
        pk(a,'add',y0,y0,X0[e])
        a(f"v_cvt_pk_bf16_f32 v{8+e//2}, v{y0}, v{y1}")
        a(f"v_lshlrev_b32 v{y0}, 16, v{8+e//2}"); a(f"v_and_b32 v{y1}, 0xffff0000, v{8+e//2}")
    a("v_add_u32 v6, s16, v6")
    a(f"s_mov_b32 s17, {WS_X1}")
    a("s_mov_b32 exec_hi, 0x00ffffff")
    a("buffer_store_dwordx4 v[8:11], v6, s[4:7], s17 offen"+STF[1])
    a("s_mov_b32 exec_hi, -1")
    mean,sd,ri = ln_stats(a, X, 1, [32], 34, 28)
    H=[[48+e for e in range(8)]]
    ln_norm(a, X[0], H[0], mean[0], sd[0], ri[0], 46)
    stamp(a,4)
    a("s_waitcnt lgkmcnt(0)")
    unpack8(a, 104, T); unpack8(a, 100, T2_); unpack8(a, 116, T3)
    for e in range(0,8,2):
        h0,h1=H[0][e],H[0][e+1]
        pk(a,'mul',h0,h0,T[e]); rnd2(a,h0,h1,46)
        pk(a,'add',h0,h0,T2_[e])
        a(f"v_cvt_pk_bf16_f32 v{24+e//2}, v{h0}, v{h1}")
        a(f"v_lshlrev_b32 v{h0}, 16, v{24+e//2}"); a(f"v_and_b32 v{h1}, 0xffff0000, v{24+e//2}")
        if e==0: pk(a,'mul',32,h0,T3[e])
        else: pk(a,'fma',32,h0,T3[e],32)
    a("v_add_f32 v32, v32, v33")
    a(f"s_mov_b32 s17, {WS_H2}")
    a("s_mov_b32 exec_hi, 0x00ffffff")
    a("buffer_store_dwordx4 v[24:27], v6, s[4:7], s17 offen"+STF[1])
    a("s_mov_b32 exec_hi, -1")
    unpack8(a, 108, T)
    wave_red(a,[32])
    for e in range(0,8,2):
        h0,h1=H[0][e],H[0][e+1]
        pk(a,'mul',h0,h0,T[e]); rnd2(a,h0,h1,46)
        pk(a,'add',h0,h0,X[0][e])
        a(f"v_cvt_pk_bf16_f32 v{28+e//2}, v{h0}, v{h1}")
    a("v_cvt_pk_bf16_f32 v34, v32, v32")
    a("s_lshl_b32 s16, s2, 3"); a("v_add_u32 v35, s16, v2")
    a("v_and_b32 v36, 0xffff, v34")
    a("v_bfe_i32 v37, v36, 15, 1"); a("v_or_b32 v37, 0x8000, v37"); a("v_xor_b32 v36, v36, v37")
    a("v_sub_u32 v38, 2047, v35"); a("v_lshl_or_b32 v40, v36, 16, v38")
    a("v_lshlrev_b32 v35, 2, v35")
    a("s_mov_b32 exec_hi, 0x00ffffff")
    a("buffer_store_dwordx4 v[28:31], v6, s[12:15], 0 offen"+STF[1])
    a("s_mov_b32 exec_lo, 0"); a("s_mov_b32 exec_hi, 0x80000000")
    a(f"s_mov_b32 s17, {WS_R}")
    a("buffer_store_dword v40, v35, s[4:7], s17 offen")
    prof_end(a,1,5,4)
    a.label('L3_end'); a("s_endpgm")

def topk(a, K0, lds_off, TK):
    K=[K0+i for i in range(8)]
    free=K0+8
    net=[(0,1),(2,3),(4,5),(6,7),(0,2),(1,3),(4,6),(5,7),(1,2),(5,6),(0,4),(3,7),(1,5),(2,6),(1,4),(3,6),(2,4),(3,5),(3,4)]
    for (i,j) in net:
        a(f"v_max_u32 v{free}, v{K[i]}, v{K[j]}"); a(f"v_min_u32 v{K[j]}, v{K[i]}, v{K[j]}")
        K[i],free = free,K[i]
    T=K0+9
    pend=[]
    def fill(n=2):
        for _ in range(n):
            if pend: a(pend.pop(0))
    for rnd in range(8):
        zero=' bound_ctrl:0'
        fill()
        a(f"v_max_u32_dpp v{T}, v{K[0]}, v{K[0]} row_shr:1 row_mask:0xf bank_mask:0xf{zero}")
        for sh in (2,4,8):
            fill(); a(f"v_max_u32_dpp v{T}, v{T}, v{T} row_shr:{sh} row_mask:0xf bank_mask:0xf{zero}")
        fill(); a(f"v_max_u32_dpp v{T}, v{T}, v{T} row_bcast:15 row_mask:0xa bank_mask:0xf")
        fill(); a(f"v_max_u32_dpp v{T}, v{T}, v{T} row_bcast:31 row_mask:0xc bank_mask:0xf")
        assert not pend
        a(f"v_readlane_b32 s{TK+rnd}, v{T}, 63")
        if rnd<7:
            a(f"v_cmp_eq_u32_e64 s[20:21], s{TK+rnd}, v{K[0]}")
            a(f"v_cndmask_b32_e64 v{K[0]}, v{K[0]}, v{K[1]}, s[20:21]")
            for i in range(1,7-rnd): pend.append(f"v_cndmask_b32_e64 v{K[i]}, v{K[i]}, v{K[i+1]}, s[20:21]")
    Q=K0+12
    for i in range(8): a(f"v_mov_b32 v{Q+i}, s{TK+i}")
    a(f"v_lshlrev_b32 v{T}, 5, v2")
    a("v_cmp_eq_u32 vcc, 0, v1"); a("s_and_saveexec_b64 s[20:21], vcc")
    a(f"ds_write_b128 v{T}, v[{Q}:{Q+3}] offset:{lds_off}"); a(f"ds_write_b128 v{T}, v[{Q+4}:{Q+7}] offset:{lds_off+16}")
    a("s_mov_b64 exec, s[20:21]")
    a(f"v_and_b32 v{T}, 31, v1"); a(f"v_lshlrev_b32 v{T}, 2, v{T}")
    a(f"v_mov_b32 v{T+2}, 0")
    a("s_waitcnt lgkmcnt(0)"); a("s_barrier")
    a(f"ds_read_b32 v{T+1}, v{T} offset:{lds_off}")
    A0=K0+20
    for j in range(8): a(f"ds_read_b128 v[{A0+4*j}:{A0+4*j+3}], v{T+2} offset:{lds_off+16*j}")
    a("s_waitcnt lgkmcnt(0)")
    R=[K0,K0+1,K0+2,K0+3]
    for r in R: a(f"v_mov_b32 v{r}, 0")
    for j0 in range(0,32,4):
        for q in range(4): a(f"v_cmp_gt_u32_e64 s[{22+2*q}:{23+2*q}], v{A0+j0+q}, v{T+1}")
        for q in range(4): a(f"v_addc_co_u32_e64 v{R[q]}, s[{22+2*q}:{23+2*q}], 0, v{R[q]}, s[{22+2*q}:{23+2*q}]")
    a(f"v_add_u32 v{R[0]}, v{R[0]}, v{R[1]}"); a(f"v_add_u32 v{R[2]}, v{R[2]}, v{R[3]}"); a(f"v_add_u32 v{R[0]}, v{R[0]}, v{R[2]}")
    for r0 in range(0,8,4):
        for q in range(4): a(f"v_cmp_eq_u32_e64 s[{22+2*q}:{23+2*q}], {r0+q}, v{R[0]}")
        for q in range(4): a(f"s_ff1_i32_b32 s{22+2*q}, s{22+2*q}")
        for q in range(4): a(f"v_readlane_b32 s{TK+r0+q}, v{T+1}, s{22+2*q}")

L4_W=0; L4_WD=14336; L4_RED=L4_WD+7168; L4_TK=L4_RED+4096; L4_ACT=L4_TK+256; L4_LDS=L4_ACT+4*128
def k4(a):
    a.label('k4_kernel'); a.flush(); stamp(a,0)
    a("s_cmp_ge_u32 s2, 224"); a("s_cbranch_scc1 L4_end")
    srd_load(a,4,'ws'); srd_load(a,8,'w_gate'); srd_load(a,12,'w_up'); srd_load(a,48,'w_down')
    a(f"s_mov_b32 s30, {hx(L_HI)}"); a(f"s_mov_b32 s31, {hx(L_LO)}"); a(f"s_mov_b32 s32, {hx(LN2)}")
    a("v_and_b32 v1, 63, v0"); a("v_lshrrev_b32 v2, 6, v0")
    a("s_and_b32 s16, s2, 7"); a("s_mul_i32 s16, s16, 28"); a("s_lshr_b32 s17, s2, 3"); a("s_add_u32 s16, s16, s17")
    a("s_lshl_b32 s17, s16, 4")
    a("v_lshrrev_b32 v3, 1, v1"); a("v_lshl_add_u32 v3, v2, 5, v3"); a("v_mul_u32_u24 v3, 3584, v3"); a("v_add_u32 v3, s17, v3")
    a("v_readfirstlane_b32 s18, v2")
    a("v_lshlrev_b32 v4, 5, v0"); a("v_lshlrev_b32 v10, 4, v0")
    a(f"s_mov_b32 s19, {WS_R}")
    a("s_mul_i32 s33, s16, 7168")
    a("s_waitcnt lgkmcnt(0)"); stamp(a,1)
    a("s_cmp_ge_u32 s18, 4"); a("s_cbranch_scc0 L4_cmp")
    a("s_sub_u32 s18, s18, 4")
    a("v_subrev_u32 v3, 458752, v3")
    a("v_subrev_u32 v10, 4096, v10")
    a("s_lshl_b32 s22, s18, 10")
    a("s_mov_b32 s24, 0x55555555"); a("s_mov_b32 s25, 0x55555555"); a("s_mov_b32 s26, 0xaaaaaaaa"); a("s_mov_b32 s27, 0xaaaaaaaa")
    for it in range(3):
        a(f"s_add_u32 s23, s22, {L4_W+4096*it}"); a("s_mov_b32 m0, s23"); a(f"s_mov_b32 s28, {128*3584*it}")
        a("s_mov_b64 exec, s[24:25]"); a("buffer_load_dwordx4 v3, s[8:11], s28 offen lds")
        a("s_mov_b64 exec, s[26:27]"); a("buffer_load_dwordx4 v3, s[12:15], s28 offen lds")
    a("s_mov_b64 exec, -1")
    a("s_cmp_ge_u32 s18, 2"); a("s_cbranch_scc1 L4_alt")
    a(f"s_add_u32 s23, s22, {L4_W+4096*3}"); a("s_mov_b32 m0, s23"); a(f"s_mov_b32 s28, {128*3584*3}")
    a("s_mov_b64 exec, s[24:25]"); a("buffer_load_dwordx4 v3, s[8:11], s28 offen lds")
    a("s_mov_b64 exec, s[26:27]"); a("buffer_load_dwordx4 v3, s[12:15], s28 offen lds")
    a("s_mov_b64 exec, -1")
    a(f"s_add_u32 s23, s22, {L4_WD}"); a("s_mov_b32 m0, s23")
    a("buffer_load_dwordx4 v10, s[48:51], s33 offen lds")
    a("s_branch L4_dmadone")
    a.label('L4_alt'); a.flush()
    a(f"s_add_u32 s23, s22, {L4_WD}"); a("s_mov_b32 m0, s23")
    a("buffer_load_dwordx4 v10, s[48:51], s33 offen lds")
    a("buffer_load_dwordx4 v10, s[48:51], s33 offen offset:2048 lds")
    a("s_cmp_eq_u32 s18, 2"); a("s_cselect_b32 s28, 2048, 0"); a("s_add_u32 s23, s23, s28"); a("s_mov_b32 m0, s23"); a("s_add_u32 s28, s28, s33")
    a("buffer_load_dwordx4 v10, s[48:51], s28 offen offset:2048 lds")
    a.label('L4_dmadone'); a.flush()
    a("s_barrier")
    a("s_waitcnt vmcnt(0)")
    a("s_barrier")
    a("s_endpgm")
    a.label('L4_cmp'); a.flush()
    a("buffer_load_dwordx4 v[16:19], v4, s[4:7], s19 offen"); a("buffer_load_dwordx4 v[20:23], v4, s[4:7], s19 offen offset:16")
    a("s_waitcnt vmcnt(0)"); stamp(a,2)
    TK=40
    topk(a, 16, L4_TK, TK)
    stamp(a,3)
    a("v_and_b32 v5, 7, v1"); a("v_mov_b32 v6, 0")
    for i in range(8):
        a(f"s_and_b32 s20, s{TK+i}, 0xffff"); a("s_sub_u32 s20, 2047, s20"); a("s_mul_i32 s20, s20, 896")
        a(f"v_cmp_eq_u32_e64 s[34:35], {i}, v5"); a("v_mov_b32 v7, s20"); a("v_cndmask_b32_e64 v6, v6, v7, s[34:35]")
    a("v_lshrrev_b32 v7, 4, v1"); a("v_lshl_add_u32 v6, v7, 4, v6"); a("v_lshl_add_u32 v6, v2, 6, v6")
    a(f"s_mov_b32 s19, {WS_H2}")
    for it in range(4): a(f"buffer_load_dwordx4 v[{16+4*it}:{19+4*it}], v6, s[4:7], s19 offen offset:{256*it}")
    a("s_cmp_lg_u32 s2, 0"); a("s_cbranch_scc1 L4_nokeys")
    for i in range(8): a(f"v_mov_b32 v{64+i}, s{TK+i}")
    a("v_mov_b32 v72, 0"); a(f"s_mov_b32 s19, {WS_IDX}")
    a("v_cmp_eq_u32 vcc, 0, v0"); a("s_and_saveexec_b64 s[20:21], vcc")
    a("buffer_store_dwordx4 v[64:67], v72, s[4:7], s19 offen"); a("buffer_store_dwordx4 v[68:71], v72, s[4:7], s19 offen offset:16")
    a("s_mov_b64 exec, s[20:21]")
    a.label('L4_nokeys'); a.flush(); a.nop(2)
    a("v_and_b32 v8, 3, v1"); a("v_bfe_u32 v9, v1, 2, 2"); a("v_lshl_add_u32 v9, v7, 3, v9")
    a("v_lshlrev_b32 v9, 5, v9"); a("v_lshl_add_u32 v9, v8, 3, v9"); a("v_lshl_add_u32 v9, v2, 10, v9")
    for i in range(4): a(f"v_mov_b32 v{60+i}, 0")
    a("v_and_b32 v11, 1, v7"); a("v_bfe_u32 v12, v1, 2, 2"); a("v_lshl_add_u32 v11, v11, 2, v12"); a("v_mul_u32_u24 v11, 896, v11")
    a("v_lshl_add_u32 v11, v8, 3, v11"); a("v_mul_u32_u24 v12, 224, v2"); a("v_add_u32 v11, v11, v12")
    a("s_barrier")
    for it in range(4):
        a(f"ds_read_b64_tr_b16 v[{32+4*it}:{33+4*it}], v9 offset:{L4_W+4096*it}")
        a(f"ds_read_b64_tr_b16 v[{34+4*it}:{35+4*it}], v9 offset:{L4_W+4096*it+128}")
    a("s_waitcnt vmcnt(0)"); stamp(a,4)
    for it in range(4):
        if it==3:
            a("s_cmp_ge_u32 s18, 2"); a("s_cbranch_scc1 L4_mmdone")
        a(f"s_waitcnt lgkmcnt({6-2*it})" if not (PROF or DIAG) else "s_waitcnt lgkmcnt(0)")
        a(f"v_mfma_f32_16x16x32_bf16 v[60:63], v[{32+4*it}:{35+4*it}], v[{16+4*it}:{19+4*it}], v[60:63]")
    a.label('L4_mmdone'); a.flush()
    for dt in range(7): a(f"ds_read_b64_tr_b16 v[{76+2*dt}:{77+2*dt}], v11 offset:{L4_WD+32*dt}")
    a("v_lshlrev_b32 v13, 4, v1")
    a(f"ds_write_b128 v10, v[60:63] offset:{L4_RED}")
    a("v_and_b32 v5, 15, v1")
    a("v_mul_u32_u24 v15, 28, v5"); a("v_mul_u32_u24 v12, 7, v2"); a("v_add_u32 v15, v15, v12"); a("v_mul_u32_u24 v15, 14336, v15")
    a("v_lshl_add_u32 v15, v7, 4, v15")
    a("s_lshl_b32 s19, s16, 6"); a(f"s_add_u32 s19, s19, {WS_P}")
    a("v_mov_b32 v30, 0"); a("v_mov_b32 v31, 0")
    a("s_waitcnt lgkmcnt(0)"); a("s_barrier"); stamp(a,5)
    for w in range(4): a(f"ds_read_b128 v[{16+4*w if w<3 else 32}:{19+4*w if w<3 else 35}], v13 offset:{L4_RED+1024*w}")
    a("s_waitcnt lgkmcnt(0)")
    pk(a,'add',16,16,20); pk(a,'add',18,18,22); pk(a,'add',24,24,32); pk(a,'add',26,26,34); pk(a,'add',16,16,24); pk(a,'add',18,18,26)
    rnd2(a,16,17,36); rnd2(a,18,19,37)
    for r in range(4): a(f"v_mul_f32 v{64+r}, s30, v{16+r}")
    for r in range(4): a(f"v_mov_b32 v{40+r}, v{16+r}")
    for r in range(4): a(f"v_fma_f32 v{68+r}, v{16+r}, s30, -v{64+r}")
    for r in range(4): a(f"v_exp_f32_e64 v{64+r}, -v{64+r}")
    for r in range(4): a(f"v_fma_f32 v{68+r}, v{16+r}, s31, v{68+r}")
    for r in range(4): a(f"v_permlane32_swap_b32 v{40+r}, v{24+r}")
    for r in range(4): a(f"v_mul_f32 v{68+r}, s32, v{68+r}")
    for r in range(4): a(f"v_fma_f32 v{64+r}, v{64+r}, -v{68+r}, v{64+r}")
    for r in range(4): a(f"v_add_f32 v{64+r}, 1.0, v{64+r}")
    for r in range(4): a(f"v_rcp_f32 v{68+r}, v{64+r}")
    for r in range(4): a(f"v_mul_f32 v{20+r}, v{16+r}, v{68+r}")
    for r in range(4): a(f"v_fma_f32 v{72+r}, -v{20+r}, v{64+r}, v{16+r}")
    for r in range(4): a(f"v_fma_f32 v{20+r}, v{72+r}, v{68+r}, v{20+r}")
    rnd2(a,20,21,36); rnd2(a,22,23,37)
    pk(a,'mul',20,20,24); pk(a,'mul',22,22,26)
    a("s_mov_b32 exec_lo, 0x00ff00ff"); a("s_mov_b32 exec_hi, 0")
    a("v_cvt_pk_bf16_f32 v30, v20, v21"); a("v_cvt_pk_bf16_f32 v31, v22, v23")
    if DEBUG_ACT:
        a("v_mul_u32_u24 v6, 3584, v5"); a("v_lshl_add_u32 v6, v7, 3, v6"); a("v_add_u32 v6, s17, v6")
        a(f"s_mov_b32 s21, {WS_ACT}")
        a("buffer_store_dwordx2 v[30:31], v6, s[4:7], s21 offen")
    a("s_mov_b64 exec, -1")
    for dt in range(7):
        a(f"v_mfma_f32_16x16x16_bf16 v[{32+4*dt}:{35+4*dt}], v[{76+2*dt}:{77+2*dt}], v[30:31], 0")
    a("s_mov_b32 exec_lo, 0x00ff00ff"); a("s_mov_b32 exec_hi, 0x00ff00ff")
    for dt in range(7):
        a(f"buffer_store_dwordx4 v[{32+4*dt}:{35+4*dt}], v15, s[4:7], s19 offen"+STF[2])
        if dt<6: a(f"s_add_u32 s19, s19, 14336")
    prof_end(a,2,6,4)
    a.label('L4_end'); a("s_endpgm")

def k5(a):
    a.label('k5_kernel'); a.flush(); stamp(a,0)
    a("s_cmp_ge_u32 s2, 224"); a("s_cbranch_scc1 L5_end")
    srd_load(a,4,'ws'); srd_load(a,12,'out')
    a(f"s_mov_b32 s30, {hx(L_HI)}"); a(f"s_mov_b32 s31, {hx(L_LO)}"); a(f"s_mov_b32 s32, {hx(LN2)}")
    a("s_mul_hi_u32 s16, s2, 153391690"); a("s_mul_i32 s17, s16, 28"); a("s_sub_u32 s17, s2, s17")
    a("v_lshlrev_b32 v4, 4, v0")
    a("s_mul_i32 s19, s2, 14336"); a(f"s_add_u32 s19, s19, {WS_P}")
    a("s_lshl_b32 s20, s16, 2"); a(f"s_add_u32 s20, s20, {WS_IDX}")
    a("v_mov_b32 v5, 0"); a("v_mov_b32 v12, 0")
    for i in range(4): a(f"v_mov_b32 v{28+i}, 0")
    a("s_waitcnt lgkmcnt(0)"); stamp(a,1)
    a("buffer_load_dword v40, v5, s[4:7], s20 offen")
    for it in range(3):
        a(f"buffer_load_dwordx4 v[{16+4*it}:{19+4*it}], v4, s[4:7], s19 offen"); a("s_add_u32 s19, s19, 4096")
    a("v_cmp_gt_u32 vcc, 128, v0"); a("s_and_saveexec_b64 s[22:23], vcc")
    a("s_cbranch_execz L5_skip")
    a("buffer_load_dwordx4 v[28:31], v4, s[4:7], s19 offen")
    a.label('L5_skip'); a("s_mov_b64 exec, s[22:23]")
    a("v_and_b32 v6, 15, v0"); a("v_lshlrev_b32 v7, 2, v6")
    a("s_lshl_b32 s21, s17, 6"); a(f"s_add_u32 s21, s21, {WS_MOD+5*1792}")
    a("buffer_load_dword v41, v7, s[4:7], s21 offen")
    a("v_readfirstlane_b32 s24, v0")
    a("s_cmp_lg_u32 s24, 0"); a("s_cbranch_scc1 L5_nogather")
    a("s_waitcnt vmcnt(5)"); stamp(a,2)
    a("v_and_b32 v8, 0xffff, v40"); a("v_sub_u32 v8, 2047, v8")
    a("s_lshl_b32 s25, s17, 4"); a("v_add_u32 v9, s25, v6")
    a(f"s_mov_b32 s26, {WS_X1}"); a(f"s_mov_b32 s27, {WS_H2}")
    a("v_mul_u32_u24 v12, 896, v8"); a("v_lshl_add_u32 v12, v9, 1, v12")
    a("buffer_load_ushort v42, v12, s[4:7], s26 offen")
    a("buffer_load_ushort v43, v12, s[4:7], s27 offen")
    a("v_lshrrev_b32 v33, 16, v40"); a("v_bfe_i32 v34, v33, 15, 1")
    a("v_not_b32 v34, v34"); a("v_or_b32 v34, 0x8000, v34"); a("v_xor_b32 v33, v33, v34"); a("v_lshlrev_b32 v33, 16, v33")
    exp_acc(a, 34, 33, 35, 36, 30, 31, 32, neg=True)
    a("v_add_f32 v34, 1.0, v34"); a("v_rcp_f32 v35, v34"); a("v_mov_b32 v37, 1.0")
    div_acc(a, 44, 37, 34, 35, 36)
    rnd1(a,44,35)
    a("s_waitcnt vmcnt(3)")
    a("s_branch L5_sum")
    a.label('L5_nogather'); a.flush()
    a("s_waitcnt vmcnt(1)")
    a.label('L5_sum'); a.flush(); stamp(a,3)
    for i in range(4):
        a(f"v_add_f32 v{16+i}, v{16+i}, v{20+i}"); a(f"v_add_f32 v{24+i}, v{24+i}, v{28+i}"); a(f"v_add_f32 v{16+i}, v{16+i}, v{24+i}")
    for sh in (4,8):
        for i in range(4): a(f"v_add_f32_dpp v{16+i}, v{16+i}, v{16+i} row_ror:{sh} row_mask:0xf bank_mask:0xf")
    a("v_lshrrev_b32 v13, 4, v0"); a("v_lshlrev_b32 v13, 6, v13"); a("v_and_b32 v14, 3, v0"); a("v_lshl_add_u32 v13, v14, 4, v13")
    a("v_and_b32 v14, 12, v0"); a("v_cmp_eq_u32 vcc, 0, v14"); a("s_and_saveexec_b64 s[22:23], vcc")
    a("ds_write_b128 v13, v[16:19]")
    a("s_mov_b64 exec, s[22:23]")
    a("s_waitcnt lgkmcnt(0)"); a("s_barrier"); stamp(a,4)
    a("s_cmp_lg_u32 s24, 0"); a("s_cbranch_scc1 L5_end")
    for p in range(16): a(f"ds_read_b32 v{48+p}, v7 offset:{64*p}")
    a("s_waitcnt lgkmcnt(0) vmcnt(0)")
    for st in (8,4,2,1):
        for p in range(st): a(f"v_add_f32 v{48+p}, v{48+p}, v{48+p+st}")
    rnd1(a,48,35)
    a("v_mul_f32 v48, v48, v44"); rnd1(a,48,35)
    a("v_lshlrev_b32 v42, 16, v42"); a("v_lshlrev_b32 v43, 16, v43")
    a("v_add_f32 v48, v48, v43"); rnd1(a,48,35)
    a("v_mul_f32 v48, v48, v41"); rnd1(a,48,35)
    a("v_add_f32 v48, v48, v42"); a("v_cvt_pk_bf16_f32 v48, v48, v48")
    a("s_mov_b32 exec_lo, 0xffff"); a("s_mov_b32 exec_hi, 0")
    a("buffer_store_short v48, v12, s[12:15], 0 offen")
    prof_end(a,3,5,4)
    if DIAG:
        a("s_cmp_lg_u32 s2, 223"); a("s_cbranch_scc1 L5_end")
        a("s_load_dwordx2 s[88:89], s[0:1], 136"); a("s_waitcnt lgkmcnt(0)")
        a("s_sub_u32 s84, s88, 1536"); a("s_subb_u32 s85, s89, 0"); a("s_mov_b32 s86, 2048"); a("s_mov_b32 s87, 0x20000")
        a("s_sleep 100")
        a("v_lshrrev_b32 v1, 2, v0"); a("v_lshlrev_b32 v1, 9, v1"); a("v_and_b32 v2, 3, v0"); a("v_lshl_add_u32 v1, v2, 2, v1")
        a("buffer_load_dword v3, v1, s[84:87], 0 offen offset:192 sc1")
        a("s_waitcnt vmcnt(0)")
        a("v_lshlrev_b32 v1, 2, v0")
        a("s_mov_b64 exec, 0xffff")
        a("buffer_store_dword v3, v1, s[84:87], 0 offen offset:1536")
    a.label('L5_end'); a("s_endpgm")

def desc(name, vgpr, sgpr=102):
    return f""".amdhsa_kernel {name}
  .amdhsa_next_free_vgpr {vgpr}
  .amdhsa_next_free_sgpr {sgpr}
  .amdhsa_accum_offset {(vgpr+3)//4*4}
  .amdhsa_group_segment_fixed_size 0
  .amdhsa_kernarg_size 152
  .amdhsa_user_sgpr_count 2
  .amdhsa_user_sgpr_kernarg_segment_ptr 1
  .amdhsa_system_sgpr_workgroup_id_x 1
  .amdhsa_float_denorm_mode_32 3
.end_amdhsa_kernel
"""
DEBUG_ACT=False
PREPPRIO=int(__import__('os').environ.get('PREPPRIO','1'))
STF=[(' '+x if x else '') for x in __import__('os').environ.get('STF',',sc1,sc1').split(',')]
CODEPF=int(__import__('os').environ.get('CODEPF','1'))
PREFETCH=int(__import__('os').environ.get('PREFETCH','1'))
PRIO=int(__import__('os').environ.get('PRIO','2'))
def main(path):
    hdr = open('adaLN_cond__ssm_conv_s4__moe_arch_mod__prompt.s.ref').read().split('; Override')[0]
    pv = 120 if (PROF or DIAG) else 0
    kernels=[('f1_kernel',f1,F1_GRID,256,F1_LDS,160),
             ('k3_kernel',k3,256,512,14336,128),
             ('k4_kernel',k4,224,512,L4_LDS,max(96,pv)),
             ('k5_kernel',k5,224,256,1024,max(64,pv))]
    out=hdr
    for n,f,g,b,l,v in kernels: out+=f"; @launch kernel={n} grid=({g},1,1) block=({b},1,1) lds={l}\n"
    out+='.amdgcn_target "amdgcn-amd-amdhsa--gfx950"\n.text\n'
    for n,f,g,b,l,v in kernels:
        a=Asm()
        a.raw(f".globl {n}\n.p2align 8\n.type {n},@function")
        f(a)
        out+=a.text()
    out+='CODE_END:\n'
    out+='.section .rodata,"a"\n'
    for n,f,g,b,l,v in kernels: out+='.p2align 6\n'+desc(n,v)
    open(path,'w').write(out)

if __name__=='__main__':
    if 'prof' in sys.argv[2:]: PROF=True
    if 'diag' in sys.argv[2:]: DIAG=True
    if 'dbg' in sys.argv[2:]: DEBUG_ACT=True
    main(sys.argv[1] if len(sys.argv)>1 else 'adaLN_cond__ssm_conv_s4__moe_arch_mod__prompt.s')
```

```python
REC=0
ACC=112
def cmul(a, d, x, y, t):
    a(f"v_pk_mul_f32 v[{t}:{t+1}], v[{x}:{x+1}], v[{y}:{y+1}] op_sel:[0,0] op_sel_hi:[1,0]")
    a(f"v_pk_fma_f32 v[{d}:{d+1}], v[{x}:{x+1}], v[{y}:{y+1}], v[{t}:{t+1}] op_sel:[1,1,0] op_sel_hi:[0,1,1] neg_lo:[1,0,0]")
def mfmas(a, OP):
    for R in range(2):
        for C in range(2):
            acc=ACC+4*(2*R+C); Rh=OP+8*R; Rl=Rh+4; Ch=OP+8*(2+C); Cl=Ch+4
            for (x,y) in ((Rh,Ch),(Rh,Cl),(Rl,Ch)):
                a(f"v_mfma_f32_16x16x32_bf16 v[{acc}:{acc+3}], v[{x}:{x+3}], v[{y}:{y+3}], v[{acc}:{acc+3}]")
def loop_end(a, n, advance, lbl):
    if advance: a(f"v_add_u32 v1, {16*48}, v1")
    a("s_add_u32 s45, s45, 1"); a(f"s_cmp_lt_u32 s45, {n}"); a(f"s_cbranch_scc1 {lbl}")

def base(a, n, advance=True):
    OP=80; RB=[24,36]
    def conv(x, e, q, T):
        h=OP+8*q+e; l=OP+8*q+4+e
        a(f"v_cvt_pk_bf16_f32 v{h}, v{x}, v{x+1}")
        a(f"v_lshlrev_b32 v{T}, 16, v{h}"); a(f"v_and_b32 v{T+1}, 0xffff0000, v{h}")
        a(f"v_pk_add_f32 v[{T}:{T+1}], v[{x}:{x+1}], v[{T}:{T+1}] neg_lo:[0,1] neg_hi:[0,1]")
        a(f"v_cvt_pk_bf16_f32 v{l}, v{T}, v{T+1}")
    def recld(b, off):
        a(f"ds_read_b128 v[{b}:{b+3}], v1 offset:{REC+off}"); a(f"ds_read_b128 v[{b+4}:{b+7}], v1 offset:{REC+off+16}"); a(f"ds_read_b64 v[{b+8}:{b+9}], v1 offset:{REC+off+32}")
    recld(RB[0],0)
    a("s_mov_b32 s45, 0")
    a.label('F1_kloop')
    for e in range(4):
        b=RB[e&1]; b2=RB[(e+1)&1]
        nxt = (e+1) if e<3 else 16
        recld(b2, nxt*48)
        a("s_waitcnt lgkmcnt(3)")
        a(f"v_pk_mul_f32 v[48:49], v[{b}:{b+1}], v[16:17]")
        a(f"v_pk_mul_f32 v[56:57], v[{b}:{b+1}], v[18:19]")
        a("v_exp_f32 v50, v48"); a("v_exp_f32 v58, v56")
        a("v_fract_f32 v49, v49"); a("v_fract_f32 v57, v57")
        a(f"v_fma_f32 v49, v{b+2}, v17, v49"); a(f"v_fma_f32 v57, v{b+2}, v19, v57")
        a("v_cos_f32 v52, v49"); a("v_sin_f32 v53, v49")
        a("v_cos_f32 v60, v57"); a("v_sin_f32 v61, v57")
        a("v_pk_mul_f32 v[52:53], v[52:53], v[50:51] op_sel:[0,0] op_sel_hi:[1,0]")
        a("v_pk_mul_f32 v[60:61], v[60:61], v[58:59] op_sel:[0,0] op_sel_hi:[1,0]")
        cmul(a, 54, 52, b+4, 48); cmul(a, 62, 60, b+6, 56); cmul(a, 64, 54, b+8, 48)
        conv(60, e, 2, 66); conv(54, e, 0, 68); conv(62, e, 3, 70); conv(64, e, 1, 72)
    mfmas(a, OP)
    loop_end(a,n,advance,'F1_kloop')

def nomfma(a, n, advance=True):
    import types
    global mfmas
    sv=mfmas; mfmas=lambda a,OP: None
    base(a,n,advance); mfmas=sv

def scalar(a, n, advance=True):
    OP=80; RB=[24,36]
    def recld(b, off):
        a(f"ds_read_b128 v[{b}:{b+3}], v1 offset:{REC+off}"); a(f"ds_read_b128 v[{b+4}:{b+7}], v1 offset:{REC+off+16}"); a(f"ds_read_b64 v[{b+8}:{b+9}], v1 offset:{REC+off+32}")
    def cm(d,x,y):
        return [f"v_mul_f32 v{d}, v{x}, v{y}", f"v_mul_f32 v{d+1}, v{x+1}, v{y}", f"v_fma_f32 v{d}, -v{x+1}, v{y+1}, v{d}", f"v_fmac_f32 v{d+1}, v{x}, v{y+1}"]
    recld(RB[0],0)
    a("s_mov_b32 s45, 0")
    a.label('F1_kloop')
    for e in range(4):
        b=RB[e&1]; b2=RB[(e+1)&1]
        nxt = (e+1) if e<3 else 16
        recld(b2, nxt*48)
        a("s_waitcnt lgkmcnt(3)")
        a(f"v_mul_f32 v48, v{b}, v16"); a(f"v_mul_f32 v56, v{b}, v18"); a(f"v_mul_f32 v49, v{b+1}, v17"); a(f"v_mul_f32 v57, v{b+1}, v19")
        a("v_exp_f32 v50, v48"); a("v_exp_f32 v58, v56")
        a("v_fract_f32 v49, v49"); a("v_fract_f32 v57, v57")
        a(f"v_fmac_f32 v49, v{b+2}, v17"); a(f"v_fmac_f32 v57, v{b+2}, v19")
        a("v_cos_f32 v52, v49"); a("v_sin_f32 v53, v49"); a("v_cos_f32 v60, v57"); a("v_sin_f32 v61, v57")
        a("v_mul_f32 v52, v52, v50"); a("v_mul_f32 v53, v53, v50"); a("v_mul_f32 v60, v60, v58"); a("v_mul_f32 v61, v61, v58")
        for p,q in zip(cm(54,52,b+4),cm(62,60,b+6)): a(p); a(q)
        for p in cm(64,54,b+8): a(p)
        xs=[(60,2,66),(54,0,68),(62,3,70),(64,1,72)]
        for x,q,T in xs: a(f"v_cvt_pk_bf16_f32 v{OP+8*q+e}, v{x}, v{x+1}")
        for x,q,T in xs: a(f"v_lshlrev_b32 v{T}, 16, v{OP+8*q+e}"); a(f"v_and_b32 v{T+1}, 0xffff0000, v{OP+8*q+e}")
        for x,q,T in xs: a(f"v_sub_f32 v{T}, v{x}, v{T}"); a(f"v_sub_f32 v{T+1}, v{x+1}, v{T+1}")
        for x,q,T in xs: a(f"v_cvt_pk_bf16_f32 v{OP+8*q+4+e}, v{T}, v{T+1}")
    mfmas(a, OP)
    loop_end(a,n,advance,'F1_kloop')

def inter(a, n, advance=True):
    OP=80; RB=[24,36]
    def recld(b, off):
        a(f"ds_read_b128 v[{b}:{b+3}], v1 offset:{REC+off}"); a(f"ds_read_b128 v[{b+4}:{b+7}], v1 offset:{REC+off+16}"); a(f"ds_read_b64 v[{b+8}:{b+9}], v1 offset:{REC+off+32}")
    def c1(t,x,y): a(f"v_pk_mul_f32 v[{t}:{t+1}], v[{x}:{x+1}], v[{y}:{y+1}] op_sel:[0,0] op_sel_hi:[1,0]")
    def c2(d,x,y,t): a(f"v_pk_fma_f32 v[{d}:{d+1}], v[{x}:{x+1}], v[{y}:{y+1}], v[{t}:{t+1}] op_sel:[1,1,0] op_sel_hi:[0,1,1] neg_lo:[1,0,0]")
    recld(RB[0],0)
    a("s_mov_b32 s45, 0")
    a.label('F1_kloop')
    for e in range(4):
        b=RB[e&1]; b2=RB[(e+1)&1]
        nxt = (e+1) if e<3 else 16
        recld(b2, nxt*48)
        a("s_waitcnt lgkmcnt(3)")
        a(f"v_pk_mul_f32 v[48:49], v[{b}:{b+1}], v[16:17]")
        a(f"v_pk_mul_f32 v[56:57], v[{b}:{b+1}], v[18:19]")
        a("v_fract_f32 v49, v49"); a("v_fract_f32 v57, v57")
        a("v_exp_f32 v50, v48"); a("v_exp_f32 v58, v56")
        a(f"v_fma_f32 v49, v{b+2}, v17, v49"); a(f"v_fma_f32 v57, v{b+2}, v19, v57")
        a("v_cos_f32 v52, v49"); a("v_cos_f32 v60, v57"); a("v_sin_f32 v53, v49"); a("v_sin_f32 v61, v57")
        c1(52,52,50); c1(60,60,58)
        c1(48,52,b+4); c1(56,60,b+6); c2(54,52,b+4,48); c2(62,60,b+6,56)
        a(f"v_cvt_pk_bf16_f32 v{OP+16+e}, v60, v61")
        c1(48,54,b+8)
        a(f"v_cvt_pk_bf16_f32 v{OP+0+e}, v54, v55"); a(f"v_cvt_pk_bf16_f32 v{OP+24+e}, v62, v63")
        c2(64,54,b+8,48)
        xs=[(60,2,66),(54,0,68),(62,3,70),(64,1,72)]
        for x,q,T in xs[:3]: a(f"v_lshlrev_b32 v{T}, 16, v{OP+8*q+e}"); a(f"v_and_b32 v{T+1}, 0xffff0000, v{OP+8*q+e}")
        a(f"v_cvt_pk_bf16_f32 v{OP+8+e}, v64, v65")
        for x,q,T in xs[:3]: a(f"v_pk_add_f32 v[{T}:{T+1}], v[{x}:{x+1}], v[{T}:{T+1}] neg_lo:[0,1] neg_hi:[0,1]")
        x,q,T=xs[3]; a(f"v_lshlrev_b32 v{T}, 16, v{OP+8*q+e}"); a(f"v_and_b32 v{T+1}, 0xffff0000, v{OP+8*q+e}")
        for x,q,T in xs[:3]: a(f"v_cvt_pk_bf16_f32 v{OP+8*q+4+e}, v{T}, v{T+1}")
        x,q,T=xs[3]; a(f"v_pk_add_f32 v[{T}:{T+1}], v[{x}:{x+1}], v[{T}:{T+1}] neg_lo:[0,1] neg_hi:[0,1]"); a(f"v_cvt_pk_bf16_f32 v{OP+8*q+4+e}, v{T}, v{T+1}")
    mfmas(a, OP)
    loop_end(a,n,advance,'F1_kloop')

VARIANTS={'base':base,'nomfma':nomfma,'scalar':scalar,'inter':inter}

T2=8192
PLACE=1
def v2(a, n, advance=True, dot=False, standalone=True, hook=None):
    OPS=[48,80]
    RB=[24,32]
    TMP=128
    def recld(b, off):
        a(f"ds_read_b128 v[{b}:{b+3}], v1 offset:{REC+off}"); a(f"ds_read_b128 v[{b+4}:{b+7}], v1 offset:{REC+off+16}")
    def mf(OP):
        L=[]
        for R in range(2):
            for C in range(2):
                acc=ACC+4*(2*R+C); Rh=OP+(0 if R==0 else 24); Rl=Rh+4; Ch=OP+8+8*C; Cl=Ch+4
                for (x,y) in ((Rh,Ch),(Rh,Cl),(Rl,Ch)):
                    L.append(f"v_mfma_f32_16x16x32_bf16 v[{acc}:{acc+3}], v[{x}:{x+3}], v[{y}:{y+3}], v[{acc}:{acc+3}]")
        return L
    def c1(t,x,y): a(f"v_pk_mul_f32 v[{t}:{t+1}], v[{x}:{x+1}], v[{y}:{y+1}] op_sel:[0,0] op_sel_hi:[1,0]")
    def c2(d,x,y,t): a(f"v_pk_fma_f32 v[{d}:{d+1}], v[{x}:{x+1}], v[{y}:{y+1}], v[{t}:{t+1}] op_sel:[1,1,0] op_sel_hi:[0,1,1] neg_lo:[1,0,0]")
    def kb(OP, pend, kboff):
        pend=list(pend)
        def m():
            if pend: a(pend.pop(0))
        a(f"ds_read_b64 v[{TMP+24}:{TMP+25}], v15 offset:{kboff*512}")
        for e in range(4):
            b=RB[e&1]; b2=RB[(e+1)&1]
            nxt = (e+1) if e<3 else 16
            recld(b2, kboff*512+nxt*32)
            a("s_waitcnt lgkmcnt(2)")
            T=TMP
            a(f"v_pk_mul_f32 v[{T}:{T+1}], v[{b}:{b+1}], v[16:17]")
            a(f"v_pk_mul_f32 v[{T+8}:{T+9}], v[{b}:{b+1}], v[18:19]")
            if PLACE==1: m()
            a(f"v_and_b32 v{OP+24+e}, v{20+e}, v{TMP+24}"); a(f"v_and_b32 v{OP+28+e}, v{20+e}, v{TMP+25}")
            a(f"v_exp_f32 v{T+2}, v{T}"); a(f"v_exp_f32 v{T+10}, v{T+8}")
            if PLACE==2: m()
            a(f"v_fract_f32 v{T+1}, v{T+1}"); a(f"v_fract_f32 v{T+9}, v{T+9}")
            if PLACE==0: m()
            a(f"v_fma_f32 v{T+1}, v{b+2}, v17, v{T+1}"); a(f"v_fma_f32 v{T+9}, v{b+2}, v19, v{T+9}")
            if PLACE>=1: m()
            a(f"v_cos_f32 v{T+4}, v{T+1}"); a(f"v_sin_f32 v{T+5}, v{T+1}")
            if PLACE==2: m()
            a(f"v_cos_f32 v{T+12}, v{T+9}"); a(f"v_sin_f32 v{T+13}, v{T+9}")
            c1(T+4,T+4,T+2); c1(T+12,T+12,T+10)
            if PLACE==0: m()
            c1(T,T+4,b+4); c1(T+8,T+12,b+6); c2(T+6,T+4,b+4,T); c2(T+14,T+12,b+6,T+8)
            xs=[(T+12,OP+8,T+16),(T+6,OP,T+18),(T+14,OP+16,T+20)]
            if PLACE==1: m()
            for x,o,t in xs: a(f"v_cvt_pk_bf16_f32 v{o+e}, v{x}, v{x+1}")
            if PLACE==0: m()
            if dot:
                for x,o,t in xs: a(f"v_dot2_f32_bf16 v{t}, v{o+e}, v2, v{x}"); a(f"v_dot2_f32_bf16 v{t+1}, v{o+e}, v3, v{x+1}")
            else:
                for x,o,t in xs: a(f"v_lshlrev_b32 v{t}, 16, v{o+e}"); a(f"v_and_b32 v{t+1}, 0xffff0000, v{o+e}")
                for x,o,t in xs: a(f"v_pk_add_f32 v[{t}:{t+1}], v[{x}:{x+1}], v[{t}:{t+1}] neg_lo:[0,1] neg_hi:[0,1]")
            for x,o,t in xs: a(f"v_cvt_pk_bf16_f32 v{o+4+e}, v{t}, v{t+1}")
        assert not pend
    recld(RB[0],0)
    if standalone:
        a("s_mov_b32 s45, 0")
        a.label('F1_kloop')
        kb(OPS[0], mf(OPS[1]), 0)
        kb(OPS[1], mf(OPS[0]), 1)
        a("s_add_u32 s45, s45, 1"); a(f"s_cmp_lt_u32 s45, {n//2}"); a("s_cbranch_scc1 F1_kloop")
    else:
        kb(OPS[0], [], 0)
        kb(OPS[1], mf(OPS[0]), 1)
        kb(OPS[0], mf(OPS[1]), 2)
        if hook: hook()
        kb(OPS[1], mf(OPS[0]), 3)
        for x in mf(OPS[1]): a(x)
def v2dot(a,n,advance=True): v2(a,n,advance,dot=True)
def v2p(p):
    def f(a,n,advance=True):
        global PLACE
        PLACE=p; v2(a,n,advance)
    return f
def v2nom(a,n,advance=True):
    global PLACE
    PLACE=9
    try: v2(a,n,advance)
    except AssertionError: pass
VARIANTS={'v2p0':v2p(0),'v2p1':v2p(1),'v2p2':v2p(2)}


def v3(a, n, advance=True, standalone=True, hook=None):
    OPS=[48,76]
    RB=[24,32]
    TMP=128
    def recld(b, off):
        a(f"ds_read_b128 v[{b}:{b+3}], v1 offset:{REC+off}"); a(f"ds_read_b128 v[{b+4}:{b+7}], v1 offset:{REC+off+16}")
    def mf(OP):
        L=[]
        for C in range(2):
            Ch=OP+8+8*C; Cl=Ch+4; acc=ACC+4*C; acc2=ACC+8+4*C
            for (d,x,y) in ((acc,OP,Ch),(acc2,OP+24,Ch),(acc,OP,Cl),(acc2,OP+24,Cl),(acc,OP+4,Ch)):
                L.append(f"v_mfma_f32_16x16x32_bf16 v[{d}:{d+3}], v[{x}:{x+3}], v[{y}:{y+3}], v[{d}:{d+3}]")
        return L
    def c1(t,x,y): a(f"v_pk_mul_f32 v[{t}:{t+1}], v[{x}:{x+1}], v[{y}:{y+1}] op_sel:[0,0] op_sel_hi:[1,0]")
    def c2(d,x,y,t): a(f"v_pk_fma_f32 v[{d}:{d+1}], v[{x}:{x+1}], v[{y}:{y+1}], v[{t}:{t+1}] op_sel:[1,1,0] op_sel_hi:[0,1,1] neg_lo:[1,0,0]")
    def kb(OP, pend, kboff):
        pend=list(pend)
        def m():
            if pend: a(pend.pop(0))
        for e in range(4):
            b=RB[e&1]; b2=RB[(e+1)&1]
            nxt = (e+1) if e<3 else 16
            if e==0: a(f"ds_read_b128 v[{OP+24}:{OP+27}], v15 offset:{kboff*64}")
            recld(b2, kboff*512+nxt*32)
            a("s_waitcnt lgkmcnt(3)" if e==0 else "s_waitcnt lgkmcnt(2)")
            T=TMP
            a(f"v_pk_mul_f32 v[{T}:{T+1}], v[{b}:{b+1}], v[16:17]")
            a(f"v_pk_mul_f32 v[{T+8}:{T+9}], v[{b}:{b+1}], v[18:19]")
            m()
            a(f"v_exp_f32 v{T+2}, v{T}"); a(f"v_exp_f32 v{T+10}, v{T+8}")
            a(f"v_fract_f32 v{T+1}, v{T+1}"); a(f"v_fract_f32 v{T+9}, v{T+9}")
            a(f"v_fma_f32 v{T+1}, v{b+2}, v17, v{T+1}"); a(f"v_fma_f32 v{T+9}, v{b+2}, v19, v{T+9}")
            m()
            a(f"v_cos_f32 v{T+4}, v{T+1}"); a(f"v_sin_f32 v{T+5}, v{T+1}")
            a(f"v_cos_f32 v{T+12}, v{T+9}"); a(f"v_sin_f32 v{T+13}, v{T+9}")
            c1(T+4,T+4,T+2); c1(T+12,T+12,T+10)
            c1(T,T+4,b+4); c1(T+8,T+12,b+6); c2(T+6,T+4,b+4,T); c2(T+14,T+12,b+6,T+8)
            xs=[(T+12,OP+8,T+16),(T+6,OP,T+18),(T+14,OP+16,T+20)]
            if e&1: m()
            for x,o,t in xs: a(f"v_cvt_pk_bf16_f32 v{o+e}, v{x}, v{x+1}")
            for x,o,t in xs: a(f"v_lshlrev_b32 v{t}, 16, v{o+e}"); a(f"v_and_b32 v{t+1}, 0xffff0000, v{o+e}")
            for x,o,t in xs: a(f"v_pk_add_f32 v[{t}:{t+1}], v[{x}:{x+1}], v[{t}:{t+1}] neg_lo:[0,1] neg_hi:[0,1]")
            for x,o,t in xs: a(f"v_cvt_pk_bf16_f32 v{o+4+e}, v{t}, v{t+1}")
        assert not pend
    recld(RB[0],0)
    if standalone:
        a("s_mov_b32 s45, 0")
        a.label('F1_kloop')
        kb(OPS[0], mf(OPS[1]), 0)
        kb(OPS[1], mf(OPS[0]), 1)
        a("s_add_u32 s45, s45, 1"); a(f"s_cmp_lt_u32 s45, {n//2}"); a("s_cbranch_scc1 F1_kloop")
    else:
        kb(OPS[0], [], 0)
        kb(OPS[1], mf(OPS[0]), 1)
        kb(OPS[0], mf(OPS[1]), 2)
        if hook: hook()
        kb(OPS[1], mf(OPS[0]), 3)
        for x in mf(OPS[1]): a(x)
VARIANTS={'v2p1':v2p(1),'v3':v3}
```

```python
import sys, struct, math
sys.path.insert(0,'work')
from asmlib import Asm
from layout import *
import numpy as np

def f2u(x): return struct.unpack('<I', struct.pack('<f', x))[0]
def hx(x): return '0x%08x' % f2u(x)
LOG2E = 1.4426950408889634; L_HI = float(np.float32(LOG2E)); L_LO = float(np.float32(LOG2E-L_HI))
LN2 = 0.6931471805599453
I2P = 0.15915494309189535; I2P_HI = float(np.float32(I2P)); I2P_LO = float(np.float32(I2P-I2P_HI))
WS_SIZE = 268435456
KA = dict(A_u=0,A_re=8,A_im=16,B_re=24,B_im=32,C_re=40,C_im=48,log_dt=56,Dskip=64,B_x=72,w_r=80,w_gate=88,w_up=96,w_down=104,c=112,w_mod=120,out=128,dbg=136,ws=144)
SZ = dict(A_u=2048*896,A_re=448*512,A_im=448*512,B_re=448*512,B_im=448*512,C_re=448*512,C_im=448*512,log_dt=896,Dskip=896,w_r=896,w_gate=448*3584,w_up=448*3584,w_down=1792*896,c=896,w_mod=448*5376,out=2048*896,dbg=256,ws=WS_SIZE)

def srd_load(a, s, name):
    a(f"s_load_dwordx2 s[{s}:{s+1}], s[0:1], {KA[name]}")
    a(f"s_mov_b32 s{s+2}, {SZ[name]}")
    a(f"s_mov_b32 s{s+3}, 0x20000")

def rnd2(a, x0, x1, tmp):
    a(f"v_cvt_pk_bf16_f32 v{tmp}, v{x0}, v{x1}")
    a(f"v_lshlrev_b32 v{x0}, 16, v{tmp}")
    a(f"v_and_b32 v{x1}, 0xffff0000, v{tmp}")
def rnd1(a, x0, tmp):
    a(f"v_cvt_pk_bf16_f32 v{tmp}, v{x0}, v{x0}")
    a(f"v_lshlrev_b32 v{x0}, 16, v{tmp}")

def wave_red(a, regs, op='v_add_f32'):
    zero = ' bound_ctrl:0'
    for sh in (1,2,4,8):
        for r in regs: a(f"{op}_dpp v{r}, v{r}, v{r} row_shr:{sh} row_mask:0xf bank_mask:0xf{zero}")
    for r in regs: a(f"{op}_dpp v{r}, v{r}, v{r} row_bcast:15 row_mask:0xa bank_mask:0xf")
    for r in regs: a(f"{op}_dpp v{r}, v{r}, v{r} row_bcast:31 row_mask:0xc bank_mask:0xf")

def exp_acc(a, dst, x, t, e, sLhi, sLlo, sLn2, neg=False):
    n = '-' if neg else ''
    a(f"v_mul_f32 v{t}, s{sLhi}, v{x}")
    a(f"v_fma_f32 v{e}, v{x}, s{sLhi}, -v{t}")
    a(f"v_fma_f32 v{e}, v{x}, s{sLlo}, v{e}")
    a(f"v_exp_f32 v{dst}, v{t}" if not neg else f"v_exp_f32_e64 v{dst}, -v{t}")
    a(f"v_mul_f32 v{e}, s{sLn2}, v{e}")
    a(f"v_fma_f32 v{dst}, v{dst}, {n}v{e}, v{dst}")

def div_acc(a, q, num, den, r, e):
    a(f"v_mul_f32 v{q}, v{num}, v{r}")
    a(f"v_fma_f32 v{e}, -v{q}, v{den}, v{num}")
    a(f"v_fma_f32 v{q}, v{e}, v{r}, v{q}")

def cmul(a, d, x, y, t):
    a(f"v_pk_mul_f32 v[{t}:{t+1}], v[{x}:{x+1}], v[{y}:{y+1}] op_sel:[0,0] op_sel_hi:[1,0]")
    a(f"v_pk_fma_f32 v[{d}:{d+1}], v[{x}:{x+1}], v[{y}:{y+1}], v[{t}:{t+1}] op_sel:[1,1,0] op_sel_hi:[0,1,1] neg_lo:[1,0,0]")

def pk(a, op, d, x, y, z=None, bcast1=False, neg1=False):
    m=''
    n = 3 if z is not None else 2
    if bcast1: m += ' op_sel:['+','.join(['0']*n)+'] op_sel_hi:['+','.join(['1','0','1'][:n])+']'
    if neg1: m += ' neg_lo:['+','.join(['0','1','0'][:n])+'] neg_hi:['+','.join(['0','1','0'][:n])+']'
    zz = f", v[{z}:{z+1}]" if z is not None else ''
    a(f"v_pk_{op}_f32 v[{d}:{d+1}], v[{x}:{x+1}], v[{y}:{y+1}]{zz}{m}")

def ln_stats(a, X, nrows, sums, tmp, S0):
    P=tmp+6*nrows
    for i in range(nrows):
        x=X[i][0]
        pk(a,'add',P,x,x+2); pk(a,'add',P+2,x+4,x+6); pk(a,'add',P,P,P+2)
        a(f"v_add_f32 v{sums[i]}, v{P}, v{P+1}")
    wave_red(a, sums)
    for i in range(nrows): a(f"v_readlane_b32 s{S0+i}, v{sums[i]}, 63")
    mean=[tmp+6*i for i in range(nrows)]; sd=[tmp+6*i+2 for i in range(nrows)]; ri=[tmp+6*i+4 for i in range(nrows)]
    a(f"v_mov_b32 v{P+4}, {hx(1.0/448)}")
    for i in range(nrows): a(f"v_mul_f32 v{mean[i]}, s{S0+i}, v{P+4}")
    for i in range(nrows): a(f"v_mov_b32 v{sums[i]}, 0")
    a(f"s_mov_b32 exec_hi, 0x00ffffff")
    for i in range(nrows):
        x=X[i][0]; acc=sd[i]
        pk(a,'add',P,x,mean[i],bcast1=True,neg1=True); pk(a,'add',P+2,x+2,mean[i],bcast1=True,neg1=True)
        pk(a,'mul',acc,P,P); pk(a,'fma',acc,P+2,P+2,acc)
        pk(a,'add',P,x+4,mean[i],bcast1=True,neg1=True); pk(a,'add',P+2,x+6,mean[i],bcast1=True,neg1=True)
        pk(a,'fma',acc,P,P,acc); pk(a,'fma',acc,P+2,P+2,acc)
        a(f"v_add_f32 v{sums[i]}, v{acc}, v{acc+1}")
    a(f"s_mov_b32 exec_hi, -1")
    a.nop(1)
    wave_red(a, sums)
    for i in range(nrows): a(f"v_readlane_b32 s{S0+i}, v{sums[i]}, 63")
    for i in range(nrows): a(f"v_mul_f32 v{sd[i]}, s{S0+i}, v{P+4}")
    for i in range(nrows): rnd2(a, mean[i], sd[i], P+(i&3))
    for i in range(nrows): a(f"v_add_f32 v{sd[i]}, {hx(1e-5)}, v{sd[i]}")
    for i in range(nrows): rnd1(a, sd[i], P+(i&3))
    for i in range(nrows): a(f"v_sqrt_f32 v{sd[i]}, v{sd[i]}")
    for i in range(nrows): rnd1(a, sd[i], P+(i&3))
    for i in range(nrows): a(f"v_rcp_f32 v{ri[i]}, v{sd[i]}")
    return mean, sd, ri

def ln_norm(a, x, out, m, s, ri, t0, final_round=True):
    for e in range(0,8,2):
        pk(a,'add',out[e],x[e],m,bcast1=True,neg1=True)
        rnd2(a, out[e], out[e+1], t0)
        pk(a,'mul',out[e],out[e],ri,bcast1=True)
        if final_round: rnd2(a, out[e], out[e+1], t0)

def unpack8(a, src, dst):
    for i in range(4):
        a(f"v_lshlrev_b32 v{dst[2*i]}, 16, v{src+i}")
        a(f"v_and_b32 v{dst[2*i+1]}, 0xffff0000, v{src+i}")

def idx_of_l(a, dst, lf, lu, t, c128, sc):
    a(f"v_cvt_pk_bf16_f32 v{t}, v{lf}, v{lf}")
    a(f"v_and_b32 v{t}, 0xffff, v{t}")
    a(f"v_subrev_u32 v{t}, {(134<<7)-128}, v{t}")
    a(f"v_cmp_lt_u32_e64 s[{sc}:{sc+1}], v{lu}, v{c128}")
    a(f"v_cndmask_b32_e64 v{dst}, v{t}, v{lu}, s[{sc}:{sc+1}]")

PROF = False
DIAG=False
def diag_end(a, kidx, slots):
    if not DIAG: return
    a("s_memrealtime s[94:95]")
    a("s_load_dwordx2 s[88:89], s[0:1], 136"); a("s_mov_b32 s90, 256"); a("s_mov_b32 s91, 0x20000")
    a("s_mov_b64 exec, 1")
    a("s_waitcnt lgkmcnt(0)")
    a("v_mov_b32 v98, 0")
    a("s_not_b32 s92, s70"); a("v_mov_b32 v99, s92"); a("buffer_atomic_umax v99, v98, s[88:91], 0 offen offset:192 sc1")
    a("v_mov_b32 v99, s94"); a("buffer_atomic_umax v99, v98, s[88:91], 0 offen offset:196 sc1")
    for j,sl in enumerate(slots):
        a(f"v_mov_b32 v99, s{70+2*sl}"); a(f"buffer_atomic_umax v99, v98, s[88:91], 0 offen offset:{200+4*j} sc1")
    a("s_mov_b64 exec, -1")
def stamp(a, i):
    if DIAG: a(f"s_memrealtime s[{70+2*i}:{71+2*i}]")
    if PROF:
        a(f"s_memrealtime s[{70+2*i}:{71+2*i}]")
        if i==0: a("s_memtime s[96:97]")
        if i==8: a("s_memtime s[100:101]")
        if i==9: a("s_memtime s[64:65]")
def prof_end(a, kidx, n, srd):
    if DIAG:
        diag_end(a, kidx, {(0,11):[2,4,7],(0,4):[]}.get((kidx,n),[]))
    if not PROF: return
    stamp(a, n); n+=1
    a("s_memtime s[98:99]")
    a("s_mov_b64 exec, -1")
    a("s_waitcnt lgkmcnt(0)")
    a("s_sub_u32 s98, s98, s96")
    for i in range(n): a(f"v_mov_b32 v{100+i}, s{70+2*i}")
    for i in range(n,12): a(f"v_mov_b32 v{100+i}, 0")
    a("v_lshrrev_b32 v99, 6, v0"); a("v_lshlrev_b32 v99, 6, v99")
    a(f"s_lshl_b32 s69, s2, 9"); a(f"s_add_u32 s69, s69, {WS_PROF+kidx*0x80000}")
    a("v_and_b32 v98, 63, v0"); a("v_cmp_eq_u32 vcc, 0, v98"); a("s_and_saveexec_b64 s[66:67], vcc")
    a("s_getreg_b32 s68, hwreg(HW_REG_HW_ID)"); a("v_mov_b32 v112, s68"); a("s_getreg_b32 s68, hwreg(HW_REG_XCC_ID)"); a("v_mov_b32 v113, s68"); a("v_mov_b32 v114, s98"); a("s_sub_u32 s64, s64, s100"); a("v_mov_b32 v115, s64")
    for j in range(4): a(f"buffer_store_dwordx4 v[{100+4*j}:{103+4*j}], v99, s[{srd}:{srd+3}], s69 offen offset:{16*j}")
    a("s_mov_b64 exec, -1")

N_GEMV=84; N_STAT=128; N_CONV=448; N_PROD=N_GEMV+N_STAT
REC=0; TAB=18432; TABN=664
C_P=0
C_KH=32768; C_KL=C_KH+4608; C_H0=C_KH+9216; C_H1=C_H0+4160+12
F1_LDS=C_H1+4160+4
assert C_H1%16==12 and F1_LDS%16==0

N_SIG=128+28; F1_GRID=668
def sig(a, lbl):
    a("v_mov_b32 v1, 0"); a("v_mov_b32 v2, 1"); a("v_mov_b32 v3, 1")
    a("v_cmp_eq_u32 vcc, 0, v0"); a("s_and_saveexec_b64 s[40:41], vcc")
    a(f"s_cbranch_execz {lbl}")
    a("buffer_atomic_add v2, v1, s[60:63], 0 offen sc0 sc1")
    a("s_waitcnt vmcnt(0)")
    a("v_readfirstlane_b32 s39, v2")
    a(f"s_cmp_lg_u32 s39, {N_SIG-1}"); a(f"s_cbranch_scc1 {lbl}")
    a("buffer_store_dword v3, v1, s[60:63], 0 offen offset:128 sc1")

def f1(a):
    a.label('f1_kernel'); stamp(a,0)
    a("s_load_dwordx16 s[4:19], s[0:1], 0"); a("s_load_dwordx4 s[20:23], s[0:1], 112"); a("s_load_dwordx4 s[24:27], s[0:1], 136")
    a(f"s_cmp_ge_u32 s2, {F1_GRID}"); a("s_cbranch_scc1 F1_end")
    a("s_cmp_ge_u32 s2, 660"); a("s_cbranch_scc1 F1_cpf")
    a("s_sub_u32 s42, s2, 576")
    a("s_cmp_ge_u32 s2, 604"); a("s_cbranch_scc1 F1_lowg")
    a("s_cmp_ge_u32 s2, 156"); a("s_cbranch_scc1 F1_conv")
    a("s_setprio 3")
    a("s_sub_u32 s42, s2, 128")
    a.label('F1_lowg')
    for (d,nm) in ((48,'A_u'),(52,'w_mod'),(56,'c'),(32,'ws'),(60,'dbg')):
        a(f"s_mov_b32 s{d+2}, {SZ[nm]}"); a(f"s_mov_b32 s{d+3}, 0x20000")
    a("s_waitcnt lgkmcnt(0)")
    a("s_mov_b64 s[48:49], s[4:5]"); a("s_mov_b64 s[52:53], s[22:23]"); a("s_mov_b64 s[56:57], s[20:21]"); a("s_mov_b64 s[32:33], s[26:27]"); a("s_mov_b64 s[60:61], s[24:25]")
    a(f"s_mov_b32 s36, {hx(L_HI)}"); a(f"s_mov_b32 s37, {hx(L_LO)}"); a(f"s_mov_b32 s38, {hx(LN2)}")
    a("s_mov_b32 s3, s2")
    a("s_cmp_ge_u32 s2, 128"); a("s_cbranch_scc1 F1_gemv")
    a("v_and_b32 v1, 63, v0"); a("v_lshrrev_b32 v2, 6, v0")
    a("s_mul_i32 s16, s3, 14336")
    a("v_mul_u32_u24 v3, 3584, v2"); a("v_lshl_add_u32 v3, v1, 4, v3")
    for i in range(16): a(f"v_mov_b32 v{96+i}, 0")
    a("s_waitcnt lgkmcnt(0)"); stamp(a,1)
    a("s_mov_b32 exec_hi, 0x00ffffff")
    for i in range(4): a(f"buffer_load_dwordx4 v[{96+4*i}:{99+4*i}], v3, s[48:51], s16 offen offset:{896*i}")
    a("s_mov_b32 exec_hi, -1")
    a("v_and_b32 v4, 15, v1"); a("v_lshlrev_b32 v4, 4, v4"); a("v_lshlrev_b32 v5, 3, v2"); a("v_xor_b32 v4, v4, v5")
    a("v_lshl_add_u32 v4, v1, 8, v4")
    a("v_lshlrev_b32 v7, 5, v2")
    a("s_lshl_b32 s18, s3, 7"); a(f"s_add_u32 s18, s18, {WS_ST}")
    a("v_lshlrev_b32 v5, 4, v0"); a("v_bfe_u32 v6, v0, 4, 4"); a("v_lshlrev_b32 v6, 4, v6"); a("v_xor_b32 v6, v6, v5")
    a(f"s_add_u32 s16, s16, {WS_NB}"); a("s_add_u32 s17, s16, 4096"); a("s_add_u32 s19, s16, 8192"); a("s_add_u32 s20, s16, 12288")
    a("s_waitcnt vmcnt(0)"); stamp(a,2)
    X=[[24+8*i+e for e in range(8)] for i in range(4)]
    for i in range(4): unpack8(a, 96+4*i, X[i])
    mean,sd,ri = ln_stats(a, X, 4, [56,57,58,59], 60, 64)
    for i in range(4): ln_norm(a, X[i], X[i], mean[i], sd[i], ri[i], 92+(i&1), final_round=False)
    a("s_mov_b32 exec_hi, 0x00ffffff")
    for e in range(8):
        q=16+2*(e&3)
        a(f"v_cvt_pk_bf16_f32 v{q}, v{X[0][e]}, v{X[1][e]}"); a(f"v_cvt_pk_bf16_f32 v{q+1}, v{X[2][e]}, v{X[3][e]}")
        a(f"v_xor_b32 v{92+(e&3)}, {32*e}, v4")
        a(f"ds_write_b64 v{92+(e&3)}, v[{q}:{q+1}]")
    a("s_mov_b32 exec_hi, -1")
    for i in range(4):
        a(f"v_mov_b32 v{8+2*i}, v{mean[i]}"); a(f"v_mov_b32 v{9+2*i}, v{ri[i]}")
    a("v_cmp_gt_u32 vcc, 128, v0")
    a("s_waitcnt lgkmcnt(0)"); a("s_barrier"); stamp(a,3)
    for it in range(4): a(f"ds_read_b128 v[{24+4*it}:{27+4*it}], v6 offset:{4096*it}")
    for it,sr in enumerate((16,17,19)):
        a(f"s_waitcnt lgkmcnt({3-it})")
        a(f"buffer_store_dwordx4 v[{24+4*it}:{27+4*it}], v5, s[32:35], s{sr} offen sc1")
    a("s_waitcnt lgkmcnt(0)")
    a("s_and_saveexec_b64 s[40:41], vcc")
    a("s_cbranch_execz F1_st3")
    a("buffer_store_dwordx4 v[36:39], v5, s[32:35], s20 offen sc1")
    a.label('F1_st3'); a("s_mov_b64 exec, s[40:41]")
    a("s_waitcnt vmcnt(0)"); a("s_barrier")
    a("s_mov_b32 exec_lo, 1"); a("s_mov_b32 exec_hi, 0")
    a("buffer_store_dwordx4 v[8:11], v7, s[32:35], s18 offen")
    a("buffer_store_dwordx4 v[12:15], v7, s[32:35], s18 offen offset:16")
    a("s_mov_b64 exec, -1")
    prof_end(a,0,4,32)
    sig(a,'F1_end')
    a("s_endpgm")
    a.label('F1_gemv'); a.flush()
    for i in range(7): a(f"s_mov_b32 s{20+i}, {344064*i}")
    a("v_lshrrev_b32 v1, 2, v0"); a("v_and_b32 v2, 3, v0")
    a("v_mul_u32_u24 v3, 5376, v1"); a("v_lshl_add_u32 v3, v2, 4, v3")
    a("s_lshl_b32 s39, s42, 6"); a("v_add_u32 v3, s39, v3")
    a("v_lshlrev_b32 v4, 1, v1")
    a("s_waitcnt lgkmcnt(0)")
    for i in range(7): a(f"buffer_load_ushort v{8+i}, v4, s[56:59], 0 offen offset:{128*i}")
    for i in range(7): a(f"buffer_load_dwordx4 v[{16+4*i}:{19+4*i}], v3, s[52:55], s{20+i} offen")
    a("s_waitcnt vmcnt(7)")
    R7=range(7)
    for i in R7: a(f"v_lshlrev_b32 v{8+i}, 16, v{8+i}")
    for i in R7: a(f"v_mul_f32 v{68+i}, s36, v{8+i}")
    for i in R7: a(f"v_fma_f32 v{76+i}, v{8+i}, s36, -v{68+i}")
    for i in R7: a(f"v_fma_f32 v{76+i}, v{8+i}, s37, v{76+i}")
    for i in R7: a(f"v_exp_f32_e64 v{68+i}, -v{68+i}")
    for i in R7: a(f"v_mul_f32 v{76+i}, s38, v{76+i}")
    for i in R7: a(f"v_fma_f32 v{68+i}, v{68+i}, -v{76+i}, v{68+i}")
    for i in R7: a(f"v_add_f32 v{68+i}, 1.0, v{68+i}")
    for i in R7: a(f"v_rcp_f32 v{76+i}, v{68+i}")
    for i in R7: a(f"v_mul_f32 v{84+i}, v{8+i}, v{76+i}")
    for i in R7: a(f"v_fma_f32 v{68+i}, -v{84+i}, v{68+i}, v{8+i}")
    for i in R7: a(f"v_fma_f32 v{84+i}, v{68+i}, v{76+i}, v{84+i}")
    for i in R7: a(f"v_cvt_pk_bf16_f32 v{84+i}, v{84+i}, v{84+i}")
    for i in R7: a(f"v_lshlrev_b32 v{68+2*i}, 16, v{84+i}")
    for e in range(8): a(f"v_mov_b32 v{48+e}, 0")
    for i in R7:
        a(f"s_waitcnt vmcnt({6-i})")
        for j in range(4):
            t=56+2*(j&1)
            a(f"v_lshlrev_b32 v{t}, 16, v{16+4*i+j}"); a(f"v_and_b32 v{t+1}, 0xffff0000, v{16+4*i+j}")
            pk(a,'fma',48+2*j,t,68+2*i,48+2*j,bcast1=True)
    for sh in (4,8):
        for e in range(8): a(f"v_add_f32_dpp v{48+e}, v{48+e}, v{48+e} row_ror:{sh} row_mask:0xf bank_mask:0xf")
    a("v_lshrrev_b32 v5, 4, v0"); a("v_lshlrev_b32 v5, 7, v5"); a("v_lshl_add_u32 v5, v2, 5, v5")
    a("v_and_b32 v6, 12, v0"); a("v_cmp_eq_u32 vcc, 0, v6")
    a("s_and_saveexec_b64 s[40:41], vcc")
    a("ds_write_b128 v5, v[48:51] offset:16384"); a("ds_write_b128 v5, v[52:55] offset:16400")
    a("s_mov_b64 exec, s[40:41]")
    a("s_waitcnt lgkmcnt(0)"); a("s_barrier")
    a("v_lshlrev_b32 v5, 2, v0")
    a("v_cmp_gt_u32 vcc, 32, v0"); a("s_and_saveexec_b64 s[40:41], vcc")
    a("s_cbranch_execz F1_end")
    for p in range(16): a(f"ds_read_b32 v{16+p}, v5 offset:{16384+128*p}")
    a("s_waitcnt lgkmcnt(0)")
    for st in (8,4,2,1):
        for p in range(st): a(f"v_add_f32 v{16+p}, v{16+p}, v{16+p+st}")
    rnd1(a, 16, 17)
    a("s_lshl_b32 s39, s42, 7"); a("v_add_u32 v5, s39, v5")
    a(f"buffer_store_dword v16, v5, s[32:35], 0 offen offset:{WS_MOD} sc1")
    a("s_sub_u32 s39, s42, 14"); a("s_cmp_lt_u32 s39, 14"); a("s_cselect_b32 s28, 1.0, 0")
    a("s_sub_u32 s39, s42, 56"); a("s_cmp_lt_u32 s39, 14"); a("s_cselect_b32 s28, 1.0, s28")
    a("v_add_f32 v18, s28, v16"); a("v_cvt_pk_bf16_f32 v18, v18, v18")
    a("v_lshrrev_b32 v6, 1, v5"); a(f"s_mov_b32 s39, {WS_MODB}")
    a("s_waitcnt vmcnt(0)")
    a("buffer_store_short v18, v6, s[32:35], s39 offen")
    a("s_cmp_ge_u32 s42, 28"); a("s_cbranch_scc1 F1_end")
    sig(a,'F1_end')
    a("s_endpgm")
    a.label('F1_cpf'); a.flush()
    a("s_getpc_b64 s[44:45]")
    a.label('F1_pcref')
    a("v_lshlrev_b32 v4, 6, v0"); a("v_add_u32 v6, 16384, v4")
    a("v_min_u32 v4, CODE_END-F1_pcref-4, v4"); a("v_min_u32 v6, CODE_END-F1_pcref-4, v6")
    a("v_mov_b32 v15, s45"); a("v_add_co_u32 v14, vcc, s44, v4"); a("v_addc_co_u32 v15, vcc, 0, v15, vcc")
    a("v_mov_b32 v17, s45"); a("v_add_co_u32 v16, vcc, s44, v6"); a("v_addc_co_u32 v17, vcc, 0, v17, vcc")
    a("global_load_dword v3, v[14:15], off"); a("global_load_dword v5, v[16:17], off")
    a("s_endpgm")
    a.label('F1_conv'); a.flush()
    conv_role(a)
    a.label('F1_end'); a("s_endpgm")

def conv_mfma(a,AA,BA,ACC2,BTS,NOLDS=False,NOMF=False,hook=None):
    bases=[BA,BA+1,BA+2,BA+3]
    ops=[]
    def issue(tag,text):
        if (not NOLDS) or (NOLDS is not True and NOLDS!=1 and tag[0] in NOLDS): a(text)
        ops.append(tag)
    pendq=[]
    real_issue=issue
    def defer(tag,text): pendq.append((tag,text))
    def drain(n=1):
        for _ in range(n):
            if pendq: real_issue(*pendq.pop(0))
    def wait(tags):
        idx=max(i for i,t in enumerate(ops) if t in tags)
        a(f"s_waitcnt lgkmcnt({min(len(ops)-1-idx,15)})")
    def bload(rr,m):
        k=7-m; bs=bases[k>>1]; off=(k&1)*128+16*rr; BT=BTS[rr]
        issue(('B',rr,m), f"ds_read2_b32 v[{BT+4*m}:{BT+4*m+1}], v{bs} offset0:{off} offset1:{off+1}")
        issue(('B',rr,m), f"ds_read2_b32 v[{BT+4*m+2}:{BT+4*m+3}], v{bs} offset0:{off+2} offset1:{off+3}")
    groups=[(rr,k) for rr in range(2) for k in range(4)]
    ATG=[28,44]
    def aload(gi):
        rr,k=groups[gi]; b=ATG[gi&1]
        for j,s_ in enumerate((k,7-k)):
            off=64*(8*s_+rr)
            issue(('A',gi,2*j), f"ds_read_b128 v[{b+8*j}:{b+8*j+3}], v{AA} offset:{C_KH+off}")
            issue(('A',gi,2*j+1), f"ds_read_b128 v[{b+8*j+4}:{b+8*j+7}], v{AA} offset:{C_KL+off}")
    issue(('A',0,0), f"ds_read_b128 v[{ATG[0]}:{ATG[0]+3}], v{AA} offset:{C_KH}")
    for m in range(8): bload(0,m)
    issue(('A',0,1), f"ds_read_b128 v[{ATG[0]+4}:{ATG[0]+7}], v{AA} offset:{C_KL}")
    issue(('A',0,2), f"ds_read_b128 v[{ATG[0]+8}:{ATG[0]+11}], v{AA} offset:{C_KH+64*56}")
    issue(('A',0,3), f"ds_read_b128 v[{ATG[0]+12}:{ATG[0]+15}], v{AA} offset:{C_KL+64*56}")
    last=[-99]*8; inited=[False]*8; slot=0; waited=set()
    remaining={c: sum(1 for (rr,k) in groups for s_ in (k,7-k) if c>=s_)*2 for c in range(8)}
    done_at={}; written=set()
    for gi,(rr,k) in enumerate(groups):
        drain(99)
        if gi==4 and hook: hook()
        issue=defer
        if gi+1<len(groups): aload(gi+1)
        if rr==0:
            for m in range(2*k,2*k+2): bload(1,m)
        for c in list(done_at):
            if c not in written and slot-done_at[c]>=0:
                issue(('W',c), f"ds_write_b128 v16, v[{ACC2+4*c}:{ACC2+4*c+3}] offset:{C_P+1024*c}"); written.add(c)
        b=ATG[gi&1]; BT=BTS[rr]
        todo=[(c,j,hl) for j,s_ in enumerate((k,7-k)) for hl in range(2) for c in range(s_,8)]
        while todo:
            if gi==0 and slot<8: pick=(slot,0,0)
            else:
                cnt={}
                for (c,j,hl) in todo: cnt[c]=cnt.get(c,0)+1
                pick=max(todo, key=lambda t:(min(slot-last[t[0]],3), cnt[t[0]], slot-last[t[0]], -t[1], -t[2]))
            todo.remove(pick); c,j,hl=pick
            s_=(k,7-k)[j]
            need={('A',gi,2*j+hl),('B',rr,c-s_)}-waited
            if need: wait(need);
            if need:
                idx=max(i for i,t in enumerate(ops) if t in need)
                waited|=set(ops[:idx+1])
            bt=BT+4*(c-s_); acc=ACC2+4*c; ar=b+8*j+4*hl
            cin = f"v[{acc}:{acc+3}]" if inited[c] else "0"
            if not NOMF: a(f"v_mfma_f32_16x16x32_bf16 v[{acc}:{acc+3}], v[{bt}:{bt+3}], v[{ar}:{ar+3}], {cin}")
            inited[c]=True; last[c]=slot; slot+=1
            if slot%2==0: drain(1)
            remaining[c]-=1
            if remaining[c]==0: done_at[c]=slot
    drain(99)
    return written,done_at

def conv_role(a):
    import kloop
    a("s_sub_u32 s38, s2, 156")
    a("s_setprio 1")
    a("s_cmp_lt_u32 s38, 256"); a("s_cbranch_scc1 F1_p1"); a("s_setprio 2")
    a.label('F1_p1')
    if CODEPF>=2:
        a("s_cmp_ge_u32 s38, 16"); a("s_cbranch_scc1 F1_cpf2")
        a("s_getpc_b64 s[46:47]")
        a.label('F1_pcref2')
        a("v_lshlrev_b32 v4, 6, v0"); a("v_mov_b32 v5, s47"); a("v_add_co_u32 v4, vcc, s46, v4"); a("v_addc_co_u32 v5, vcc, 0, v5, vcc")
        a(f"v_cmp_gt_u32 vcc, (k3_kernel-F1_pcref2)/64, v0"); a("s_and_saveexec_b64 s[48:49], vcc")
        a("s_cbranch_execz F1_cpf1")
        a("global_load_dword v153, v[4:5], off")
        a.label('F1_cpf1'); a("s_mov_b64 exec, -1")
        a.label('F1_cpf2'); a.flush()
    a("s_and_b32 s3, s38, 7"); a("s_mul_i32 s3, s3, 56"); a("s_lshr_b32 s39, s38, 3"); a("s_add_u32 s3, s3, s39")
    a(f"s_mov_b32 s40, {hx(L_HI)}"); a(f"s_mov_b32 s41, {hx(L_LO)}"); a(f"s_mov_b32 s42, {hx(LN2)}")
    a(f"s_mov_b32 s43, {hx(I2P_HI)}"); a(f"s_mov_b32 s44, {hx(I2P_LO)}")
    a("s_lshl_b32 s36, s3, 9"); a("s_lshl_b32 s37, s3, 1")
    a("v_lshlrev_b32 v1, 1, v0"); a("v_mov_b32 v2, s37")
    for (d,nm) in ((28,'log_dt'),(32,'ws'),(60,'dbg'),(48,'A_re'),(52,'A_re'),(56,'A_re')):
        a(f"s_mov_b32 s{d+2}, {SZ[nm]}"); a(f"s_mov_b32 s{d+3}, 0x20000")
    a("s_waitcnt lgkmcnt(0)"); stamp(a,1)
    a("s_mov_b64 s[28:29], s[18:19]"); a("s_mov_b64 s[32:33], s[26:27]"); a("s_mov_b64 s[60:61], s[24:25]")
    a("buffer_load_ushort v3, v2, s[28:31], 0 offen")
    for i in range(6):
        d=48+4*(i%3)
        a(f"s_mov_b64 s[{d}:{d+1}], s[{6+2*i}:{7+2*i}]")
        a(f"buffer_load_ushort v{4+i}, v1, s[{d}:{d+3}], s36 offen")
    a("v_and_b32 v10, 63, v0"); a("v_and_b32 v11, 15, v0"); a("v_bfe_u32 v12, v0, 4, 2"); a("v_lshrrev_b32 v13, 6, v0")
    a("v_mov_b32 v14, v11")
    a("v_lshlrev_b32 v15, 1, v11"); a("v_add_u32 v15, 240, v15")
    a("v_cmp_le_u32_e64 s[46:47], 8, v11"); a("v_cmp_le_u32_e64 s[48:49], 12, v11"); a("v_cmp_le_u32_e64 s[50:51], 14, v11")
    a("v_lshlrev_b32 v20, 2, v11"); a("v_add_u32 v21, 464, v20"); a("v_add_u32 v20, 712, v20")
    a("v_cndmask_b32_e64 v14, v14, v15, s[46:47]"); a("v_cndmask_b32_e64 v14, v14, v21, s[48:49]"); a("v_cndmask_b32_e64 v14, v14, v20, s[50:51]")
    a("v_cvt_f32_u32 v16, v14"); a("v_sub_f32 v17, 0, v16")
    a("v_lshlrev_b32 v15, 3, v11"); a("v_cvt_f32_u32 v18, v15"); a("v_mov_b32 v19, v18")
    ACC=112; SA=154
    a(f"v_mul_u32_u24 v2, {TABN*4}, v13")
    a("v_cmp_le_u32_e64 s[46:47], 2, v12"); a("v_cmp_eq_u32_e64 s[48:49], 3, v12")
    a("v_add_u32 v20, -1, v12"); a("v_max_i32 v20, 0, v20"); a("v_sub_u32 v21, 3, v20")
    a("v_lshlrev_b32 v22, v21, v11")
    a("v_lshlrev_b32 v23, 2, v12"); a("v_lshlrev_b32 v24, 7, v12"); a("v_cndmask_b32_e64 v23, v23, v24, s[46:47]")
    a("v_add_u32 v22, v22, v23"); a(f"v_lshl_add_u32 v{SA}, v22, 2, v2")
    a(f"v_add_u32 v24, 248, v{SA}"); a(f"v_cndmask_b32_e64 v{SA+1}, v{SA}, v24, s[48:49]")
    a("v_mov_b32 v25, 64"); a("v_lshlrev_b32 v24, v21, v25")
    a(f"v_add_u32 v{SA+2}, v{SA}, v24"); a(f"v_add_u32 v{SA+3}, v{SA+1}, v24")
    a("v_lshl_add_u32 v22, v12, 6, v11"); a(f"v_lshl_add_u32 v{SA+4}, v22, 2, v2")
    scat=[]
    for C in range(2):
        for r in range(4): scat.append((SA+2*C+(r>>1), 4*r, ACC+4*C+r))
    a("v_lshlrev_b32 v159, 6, v13"); a("v_lshl_add_u32 v159, v12, 2, v159")
    a("v_min_u32 v24, 9, v11"); a("v_lshlrev_b32 v15, 10, v24"); a("v_lshl_add_u32 v15, v159, 2, v15")
    a(f"v_add_u32 v15, {kloop.T2}, v15")
    a("v_lshlrev_b32 v159, 5, v159")
    for i in range(16): a(f"v_mov_b32 v{ACC+i}, 0")
    a("s_waitcnt vmcnt(6)")
    a("v_lshlrev_b32 v3, 16, v3")
    exp_acc(a, 40, 3, 41, 42, 40, 41, 42)
    rnd1(a, 40, 41)
    a("s_waitcnt vmcnt(0)"); stamp(a,2)
    for i in range(6): a(f"v_lshlrev_b32 v{4+i}, 16, v{4+i}")
    a("v_mul_f32 v4, v40, v4"); a("v_mul_f32 v5, v40, v5"); a("v_mul_f32 v6, v40, v6"); a("v_mul_f32 v7, v40, v7")
    a("v_mul_f32 v24, s40, v4")
    a("v_mul_f32 v25, s43, v5"); a("v_and_b32 v25, 0xffffff00, v25")
    a("v_fma_f32 v26, v5, s43, -v25"); a("v_fma_f32 v26, v5, s44, v26")
    cmul(a, 28, 8, 6, 36)
    a("v_sub_f32 v29, 0, v29")
    ds=[(30,128,+1,48),(32,1024,-1,56),(34,256,-1,64)]
    for (dst,l,sg,T) in ds: a(f"v_mov_b32 v{T}, {hx(float(l))}"); a(f"v_mov_b32 v{T+1}, {hx(float(sg*l))}")
    for (dst,l,sg,T) in ds: a(f"v_pk_mul_f32 v[{T+4}:{T+5}], v[24:25], v[{T}:{T+1}]")
    for (dst,l,sg,T) in ds: a(f"v_exp_f32 v{T+2}, v{T+4}")
    for (dst,l,sg,T) in ds: a(f"v_fract_f32 v{T+5}, v{T+5}")
    for (dst,l,sg,T) in ds: a(f"v_fma_f32 v{T+5}, v26, v{T+1}, v{T+5}")
    for (dst,l,sg,T) in ds: a(f"v_cos_f32 v{T+4}, v{T+5}"); a(f"v_sin_f32 v{T+5}, v{T+5}")
    for (dst,l,sg,T) in ds: a(f"v_pk_mul_f32 v[{dst}:{dst+1}], v[{T+4}:{T+5}], v[{T+2}:{T+3}] op_sel:[0,0] op_sel_hi:[1,0]")
    a("v_lshlrev_b32 v1, 5, v0")
    a(f"ds_write_b128 v1, v[24:27] offset:{REC}"); a(f"ds_write_b128 v1, v[28:31] offset:{REC+16}")
    cmul(a, 72, 32, 28, 36); cmul(a, 74, 72, 34, 36); cmul(a, 76, 74, 34, 36); cmul(a, 78, 76, 34, 36); cmul(a, 80, 78, 34, 36)
    a("v_lshlrev_b32 v1, 2, v0")
    for sidx in range(5):
        x=72+2*sidx; h=84+2*sidx; T=48+2*sidx
        a(f"v_cvt_pk_bf16_f32 v{h}, v{x}, v{x+1}")
        a(f"v_lshlrev_b32 v{T}, 16, v{h}"); a(f"v_and_b32 v{T+1}, 0xffff0000, v{h}")
        a(f"v_pk_add_f32 v[{T}:{T+1}], v[{x}:{x+1}], v[{T}:{T+1}] neg_lo:[0,1] neg_hi:[0,1]")
        a(f"v_cvt_pk_bf16_f32 v{h+1}, v{T}, v{T+1}")
        rh = 2*sidx; rl = 2*sidx+1
        a(f"ds_write_b32 v1, v{h} offset:{kloop.T2+1024*rh}"); a(f"ds_write_b32 v1, v{h+1} offset:{kloop.T2+1024*rl}")
    a("v_mov_b32 v1, v159")
    a("v_mov_b32 v3, 128")
    stamp(a,3)
    a("s_waitcnt lgkmcnt(0)")
    kloop.v3(a, 4, standalone=False, hook=lambda: a("buffer_load_dword v4, v3, s[60:63], 0 offen sc1"))
    stamp(a,4)
    a(f"s_setprio {PREPPRIO}")
    srd_load(a,4,'w_gate'); srd_load(a,8,'w_up'); srd_load(a,16,'w_down')
    a("v_lshrrev_b32 v5, 1, v0"); a("v_mul_u32_u24 v5, 14336, v5"); a("v_and_b32 v6, 1, v0"); a("v_lshl_add_u32 v5, v6, 4, v5")
    a("s_lshl_b32 s12, s3, 5"); a(f"s_add_u32 s12, s12, {WS_NB}")
    a("s_lshl_b32 s14, s3, 2"); a("v_mov_b32 v7, s14")
    a("v_lshlrev_b32 v6, 4, v0")
    a("v_readfirstlane_b32 s48, v13")
    def nloads():
        a("buffer_load_dwordx4 v[80:83], v5, s[32:35], s12 offen sc1")
        a(f"buffer_load_dword v9, v7, s[32:35], 0 offen offset:{WS_MOD} sc1")
        a(f"buffer_load_dword v14, v7, s[32:35], 0 offen offset:{WS_MOD+1792} sc1")
    a("s_waitcnt vmcnt(0)")
    a("v_readfirstlane_b32 s13, v4")
    a("s_cmp_eq_u32 s13, 0"); a("s_cbranch_scc1 F1_notyet")
    nloads()
    a.label('F1_notyet'); a.flush(); stamp(a,5)
    for i in range(4): a(f"v_mov_b32 v{140+i}, 0")
    for (sa,off,src) in scat: a(f"ds_write_b32 v{sa}, v{src} offset:{TAB+off}")
    for C in range(2):
        for j in range(2): a(f"v_add_f32 v{144+2*C+j}, v{ACC+8+4*C+2*j}, v{ACC+9+4*C+2*j}")
    a("s_mov_b32 exec_hi, 1")
    a(f"ds_write_b32 v{SA+4}, v144 offset:{TAB+4*512}")
    a("s_mov_b32 exec_hi, 0")
    a(f"ds_write_b32 v{SA+4}, v145 offset:{TAB+4*(512+32)}")
    a(f"ds_write_b32 v{SA+4}, v146 offset:{TAB+4*(512+16)}")
    a(f"ds_write_b32 v{SA+4}, v147 offset:{TAB+4*(512+48)}")
    a("s_mov_b64 exec, -1")
    a("v_cmp_gt_u32 vcc, 30, v0"); a("s_and_saveexec_b64 s[46:47], vcc")
    a(f"ds_write_b128 v6, v[140:143] offset:{C_KH}"); a(f"ds_write_b128 v6, v[140:143] offset:{C_KL}")
    a("v_cmp_gt_u32 vcc, 2, v0"); a("s_and_b64 exec, exec, vcc")
    a(f"ds_write_b128 v6, v[140:143] offset:{C_H0+4096}"); a(f"ds_write_b128 v6, v[140:143] offset:{C_H1+4100}")
    a("s_mov_b64 exec, s[46:47]")
    AA=20; BA=21
    a(f"v_lshlrev_b32 v{AA}, 5, v11"); a(f"v_lshl_add_u32 v{AA}, v12, 4, v{AA}"); a(f"v_lshl_add_u32 v{AA}, v13, 7, v{AA}")
    a(f"v_and_b32 v{BA}, 14, v11"); a(f"v_lshlrev_b32 v{BA}, 1, v{BA}")
    a("v_lshlrev_b32 v16, 4, v12"); a(f"v_sub_u32 v{BA}, v16, v{BA}")
    a("v_and_b32 v16, 1, v11"); a(f"v_mul_u32_u24 v16, {C_H1-C_H0}, v16")
    a(f"v_add_u32 v{BA}, v{BA}, v16"); a(f"v_add_u32 v{BA}, {C_H0+3616-512*7}, v{BA}"); a(f"v_lshl_add_u32 v{BA}, v13, 7, v{BA}")
    for q in range(1,4): a(f"v_add_u32 v{BA+q}, {1024*q}, v{BA}")
    a("v_sub_u32 v8, 4080, v6")
    a("s_waitcnt lgkmcnt(0)"); a("s_barrier"); stamp(a,6)
    W4=TABN; EB=28
    def rd2(dst, j, w): a(f"ds_read2_b32 v[{dst}:{dst+1}], v{EB+w} offset0:{j} offset1:{j+1}")
    a("s_cmp_eq_u32 s48, 0"); a("s_cbranch_scc1 F1_expA")
    a("s_cmp_eq_u32 s48, 1"); a("s_cbranch_scc1 F1_expB")
    a(f"v_lshlrev_b32 v{EB}, 2, v0"); a(f"v_add_u32 v{EB}, {TAB+384*4}, v{EB}")
    for w in range(1,4): a(f"v_add_u32 v{EB+w}, {W4*4*w}, v{EB}")
    for w in range(4): rd2(32+2*w, 0, w)
    a("v_and_b32 v16, 1, v0"); a("v_cmp_eq_u32 vcc, 1, v16")
    a("s_waitcnt lgkmcnt(0)")
    for j in range(2):
        a(f"v_add_f32 v{32+j}, v{32+j}, v{34+j}"); a(f"v_add_f32 v{36+j}, v{36+j}, v{38+j}")
    a("v_add_f32 v64, v32, v36"); a("v_add_f32 v69, v33, v37")
    a("v_cndmask_b32_e64 v68, v64, v69, vcc")
    a("v_mov_b32 v65, v64"); a("v_mov_b32 v66, v64"); a("v_mov_b32 v67, v64"); a("v_mov_b32 v70, v69"); a("v_mov_b32 v71, v69")
    a("s_branch F1_expD")
    a.label('F1_expB'); a.flush()
    a(f"v_lshlrev_b32 v{EB}, 3, v0"); a(f"v_add_u32 v{EB}, {TAB+256*4}, v{EB}")
    for w in range(1,4): a(f"v_add_u32 v{EB+w}, {W4*4*w}, v{EB}")
    for w in range(4): rd2(32+4*w, 0, w); rd2(34+4*w, 2, w)
    a("s_waitcnt lgkmcnt(0)")
    for j in range(3):
        a(f"v_add_f32 v{32+j}, v{32+j}, v{36+j}"); a(f"v_add_f32 v{40+j}, v{40+j}, v{44+j}")
    a("v_add_f32 v64, v32, v40"); a("v_add_f32 v67, v33, v41"); a("v_add_f32 v70, v34, v42")
    a("v_mov_b32 v65, v64"); a("v_mov_b32 v66, v64"); a("v_mov_b32 v68, v67"); a("v_mov_b32 v69, v67"); a("v_mov_b32 v71, v70")
    a("s_branch F1_expD")
    a.label('F1_expA'); a.flush()
    a(f"v_lshlrev_b32 v{EB}, 5, v0"); a("v_lshlrev_b32 v16, 4, v0"); a("v_add_u32 v16, 512, v16")
    a("v_cmp_gt_u32 vcc, 32, v0"); a(f"v_cndmask_b32_e64 v{EB}, v16, v{EB}, vcc"); a(f"v_add_u32 v{EB}, {TAB}, v{EB}")
    for w in range(1,4): a(f"v_add_u32 v{EB+w}, {W4*4*w}, v{EB}")
    for w in range(4):
        for j in range(0,8,2): rd2(32+8*w+j, j, w)
    a("s_waitcnt lgkmcnt(0)")
    for j in range(8):
        a(f"v_add_f32 v{32+j}, v{32+j}, v{40+j}"); a(f"v_add_f32 v{48+j}, v{48+j}, v{56+j}"); a(f"v_add_f32 v{32+j}, v{32+j}, v{48+j}")
    t1=[0,0,1,2,2,2,3,4]
    for e in range(8): a(f"v_cndmask_b32_e64 v{64+e}, v{32+t1[e]}, v{32+e}, vcc")
    a.label('F1_expD'); a.flush()
    for j in range(4):
        x=64+2*j
        a(f"v_cvt_pk_bf16_f32 v{72+j}, v{x}, v{x+1}")
        a(f"v_lshlrev_b32 v{32+2*j}, 16, v{72+j}"); a(f"v_and_b32 v{33+2*j}, 0xffff0000, v{72+j}")
        a(f"v_pk_add_f32 v[{32+2*j}:{33+2*j}], v[{x}:{x+1}], v[{32+2*j}:{33+2*j}] neg_lo:[0,1] neg_hi:[0,1]")
        a(f"v_cvt_pk_bf16_f32 v{76+j}, v{32+2*j}, v{33+2*j}")
    a(f"ds_write_b128 v6, v[72:75] offset:{C_KH+480}"); a(f"ds_write_b128 v6, v[76:79] offset:{C_KL+480}")
    a("s_cmp_lg_u32 s13, 0"); a("s_cbranch_scc1 F1_ready")
    a("s_setprio 0")
    a("s_mov_b32 s45, 0")
    a.label('F1_poll')
    a("buffer_load_dword v4, v3, s[60:63], 0 offen sc1")
    a("s_waitcnt vmcnt(0)")
    a("v_readfirstlane_b32 s13, v4")
    a("s_cmp_lg_u32 s13, 0"); a("s_cbranch_scc1 F1_got")
    a("s_add_u32 s45, s45, 1"); a("s_cmp_ge_u32 s45, 0x40000"); a("s_cbranch_scc1 F1_got")
    a("s_sleep 2")
    a("s_branch F1_poll")
    a.label('F1_got'); a.flush()
    a("s_setprio 2")
    nloads()
    a.label('F1_ready'); a.flush()
    a("s_waitcnt vmcnt(0)"); stamp(a,7)
    a("v_add_f32 v14, 1.0, v14"); rnd1(a, 14, 15)
    unpack8(a, 80, [48+e for e in range(8)])
    for e in range(0,8,2):
        h0,h1=48+e,49+e
        a(f"v_mul_f32 v{h0}, v{h0}, v14"); a(f"v_mul_f32 v{h1}, v{h1}, v14"); rnd2(a,h0,h1,15)
        a(f"v_add_f32 v{h0}, v{h0}, v9"); a(f"v_add_f32 v{h1}, v{h1}, v9")
    for j in range(4): a(f"v_cvt_pk_bf16_f32 v{60+j}, v{48+7-2*j}, v{48+6-2*j}")
    for j in range(1,4): a(f"v_cvt_pk_bf16_f32 v{64+j}, v{48+8-2*j}, v{48+7-2*j}")
    a(f"ds_write_b128 v8, v[60:63] offset:{C_H1+4}")
    a(f"ds_write_b16 v8, v60 offset:{C_H0+2}")
    a(f"ds_write_b32 v8, v65 offset:{C_H0+4}")
    a(f"ds_write_b64 v8, v[66:67] offset:{C_H0+8}")
    a(f"ds_write_b16_d16_hi v8, v63 offset:{C_H0+16}")
    a("v_bfe_u32 v16, v11, 1, 2"); a("v_xor_b32 v16, v16, v12"); a("v_lshlrev_b32 v16, 4, v16")
    a("v_lshl_add_u32 v16, v11, 6, v16"); a("v_lshl_add_u32 v16, v13, 13, v16")
    a("v_and_b32 v4, 1, v0"); a("v_lshlrev_b32 v4, 1, v4"); a("v_bfe_u32 v17, v0, 2, 2")
    a("v_xor_b32 v18, v4, v17"); a("v_xor_b32 v19, 1, v18")
    a("v_lshrrev_b32 v17, 1, v0"); a("v_lshlrev_b32 v17, 6, v17")
    a("v_lshl_add_u32 v18, v18, 4, v17"); a("v_lshl_add_u32 v19, v19, 4, v17")
    a("v_mul_u32_u24 v5, 7168, v0")
    a("s_lshl_b32 s12, s3, 4"); a(f"s_add_u32 s12, s12, {WS_YB}")
    ACC2=64; BTS=[96,128]; AT=[28,36,44]
    a("s_and_b32 s22, s2, 7"); a("s_lshr_b32 s23, s38, 3")
    a("v_lshrrev_b32 v4, 3, v10"); a("v_and_b32 v7, 7, v10"); a("v_lshlrev_b32 v7, 6, v7"); a("v_min_u32 v7, 444, v7")
    a("v_mul_u32_u24 v4, 3584, v4"); a("v_add_u32 v4, v4, v7")
    a("s_mul_i32 s24, s23, 28672"); a("s_mul_i32 s25, s22, 448"); a("s_add_u32 s24, s24, s25")
    a("s_mul_i32 s26, s22, 224"); a("s_lshl_b32 s25, s23, 2"); a("s_add_u32 s26, s26, s25"); a("s_mul_i32 s26, s26, 896")
    a("v_lshlrev_b32 v7, 6, v10"); a("v_min_u32 v7, 3520, v7")
    def pfhook():
        a("s_cmp_eq_u32 s48, 0"); a("s_cbranch_scc0 F1_pf1")
        a("buffer_load_dword v3, v4, s[4:7], s24 offen")
        a.label('F1_pf1')
        a("s_cmp_eq_u32 s48, 1"); a("s_cbranch_scc0 F1_pf2")
        a("buffer_load_dword v3, v4, s[8:11], s24 offen")
        a.label('F1_pf2')
        a("s_cmp_eq_u32 s48, 2"); a("s_cbranch_scc0 F1_pf3")
        a("buffer_load_dword v3, v7, s[16:19], s26 offen")
        a.label('F1_pf3')
    a("s_waitcnt lgkmcnt(0)"); a("s_barrier"); stamp(a,8)
    a("s_setprio 0")
    if PROF or DIAG: a("s_waitcnt lgkmcnt(0)")
    written,done_at=conv_mfma(a,AA,BA,ACC2,BTS,hook=pfhook)
    stamp(a,9)
    a("s_setprio 2")
    for c in sorted(set(range(8))-written, key=lambda c: done_at[c]):
        a(f"ds_write_b128 v16, v[{ACC2+4*c}:{ACC2+4*c+3}] offset:{C_P+1024*c}")
    a("s_waitcnt lgkmcnt(0)"); a("s_barrier"); stamp(a,10)
    for w in range(4):
        a(f"ds_read_b128 v[{64+8*w}:{67+8*w}], v18 offset:{C_P+8192*w}")
        a(f"ds_read_b128 v[{68+8*w}:{71+8*w}], v19 offset:{C_P+8192*w}")
    a("s_waitcnt lgkmcnt(0)")
    for e in range(8):
        a(f"v_add_f32 v{64+e}, v{64+e}, v{72+e}"); a(f"v_add_f32 v{80+e}, v{80+e}, v{88+e}"); a(f"v_add_f32 v{64+e}, v{64+e}, v{80+e}")
    for e in range(0,8,2): a(f"v_cvt_pk_bf16_f32 v{20+e//2}, v{64+e}, v{65+e}")
    a("buffer_store_dwordx4 v[20:23], v5, s[32:35], s12 offen"+STF[0])
    prof_end(a,0,11,32)

L3_C=7168
def k3(a):
    a.label('k3_kernel'); a.flush(); stamp(a,0)
    a("s_cmp_ge_u32 s2, 256"); a("s_cbranch_scc1 L3_end")
    srd_load(a,4,'ws'); srd_load(a,8,'w_r'); srd_load(a,12,'out'); srd_load(a,36,'A_u'); srd_load(a,40,'Dskip')
    srd_load(a,44,'w_gate'); srd_load(a,48,'w_up'); srd_load(a,52,'w_down')
    a("v_and_b32 v1, 63, v0"); a("v_lshrrev_b32 v2, 6, v0")
    a("v_lshlrev_b32 v3, 5, v0")
    a("s_mul_i32 s16, s2, 7168"); a(f"s_add_u32 s17, s16, {WS_YB}")
    a("v_lshlrev_b32 v5, 4, v1")
    for i in range(36): a(f"v_mov_b32 v{88+i}, 0")
    a("v_readfirstlane_b32 s18, v2")
    a("v_mul_u32_u24 v6, 896, v2"); a("v_add_u32 v6, v6, v5")
    a("v_lshlrev_b32 v7, 3, v2"); a("s_lshl_b32 s19, s2, 6"); a(f"s_add_u32 s19, s19, {WS_ST}")
    a("s_mov_b32 s30, 0x05040100"); a("s_mov_b32 s31, 0x07060302")
    a("v_cmp_gt_u32 vcc, 224, v0")
    a("s_waitcnt lgkmcnt(0)"); stamp(a,1)
    a("s_cmp_ge_u32 s18, 4"); a("s_cbranch_scc1 L3_cw")
    a("s_and_saveexec_b64 s[20:21], vcc")
    a("buffer_load_dwordx4 v[8:11], v3, s[4:7], s17 offen")
    a("buffer_load_dwordx4 v[12:15], v3, s[4:7], s17 offen offset:16")
    a("s_mov_b64 exec, s[20:21]")
    a("buffer_load_dwordx2 v[124:125], v7, s[4:7], s19 offen")
    a("s_mov_b32 exec_hi, 0x00ffffff")
    a("buffer_load_dwordx4 v[120:123], v6, s[36:39], s16 offen")
    a("s_mov_b32 exec_hi, -1")
    a("v_lshlrev_b32 v3, 2, v0")
    a("s_waitcnt vmcnt(2)"); stamp(a,2)
    a("s_and_saveexec_b64 s[20:21], vcc")
    for j in range(4):
        a(f"v_perm_b32 v{16+2*j}, v{12+j}, v{8+j}, s30"); a(f"v_perm_b32 v{17+2*j}, v{12+j}, v{8+j}, s31")
    for j in range(8): a(f"ds_write_b32 v3, v{16+j} offset:{896*j}")
    a("s_mov_b64 exec, s[20:21]")
    a("s_branch L3_join")
    a.label('L3_cw'); a.flush()
    a("s_sub_u32 s22, s18, 4"); a("s_mul_i32 s22, s22, 1792"); a(f"s_add_u32 s23, s22, {L3_C}"); a("s_mov_b32 m0, s23")
    a(f"s_add_u32 s22, s22, {WS_MODB}")
    a("s_mov_b32 exec_hi, 0x00ffffff")
    a("s_cmp_eq_u32 s18, 7"); a("s_cbranch_scc1 L3_cw7")
    a("buffer_load_dwordx4 v5, s[4:7], s22 offen lds")
    a("buffer_load_dwordx4 v5, s[4:7], s22 offen offset:896 lds")
    a("s_branch L3_cw8")
    a.label('L3_cw7'); a.flush()
    a("buffer_load_dwordx4 v5, s[40:43], 0 offen lds")
    a("s_add_u32 s23, s23, 896"); a("s_mov_b32 m0, s23")
    a("buffer_load_dwordx4 v5, s[8:11], 0 offen lds")
    a.label('L3_cw8'); a.flush()
    a("buffer_load_dwordx4 v[120:123], v6, s[36:39], s16 offen")
    a("s_mov_b32 exec_hi, -1")
    a("buffer_load_dwordx2 v[124:125], v7, s[4:7], s19 offen")
    if PREFETCH==2:
        a("s_and_b32 s33, s2, 7"); a("s_lshr_b32 s34, s2, 3")
        a("v_subrev_u32 v16, 256, v0")
        a("v_subrev_u32 v17, 112, v16"); a("v_cmp_gt_u32 vcc, 112, v16"); a("s_mov_b64 s[56:57], vcc"); a("v_cndmask_b32_e64 v17, v17, v16, vcc")
        a("v_lshrrev_b32 v18, 3, v17"); a("v_and_b32 v19, 7, v17"); a("v_lshlrev_b32 v19, 6, v19"); a("v_min_u32 v19, 444, v19")
        a("v_mul_u32_u24 v18, 3584, v18"); a("v_add_u32 v18, v18, v19")
        a("s_mul_i32 s35, s34, 50176"); a("s_mul_i32 s58, s33, 448"); a("s_add_u32 s35, s35, s58")
        a("s_mul_i32 s58, s33, 224"); a("s_mul_i32 s59, s34, 7"); a("s_add_u32 s58, s58, s59"); a("s_mul_i32 s58, s58, 896")
        a("v_lshlrev_b32 v19, 6, v16")
        a("v_cmp_gt_u32 vcc, 224, v16"); a("s_mov_b64 s[60:61], vcc"); a("v_cmp_gt_u32 vcc, 98, v16"); a("s_mov_b64 s[62:63], vcc")
        a("s_waitcnt vmcnt(0)")
        a("s_andn2_b64 s[60:61], s[60:61], s[56:57]")
        a("s_mov_b64 exec, s[56:57]"); a("buffer_load_dword v127, v18, s[44:47], s35 offen")
        a("s_mov_b64 exec, s[60:61]"); a("buffer_load_dword v127, v18, s[48:51], s35 offen")
        a("s_mov_b64 exec, s[62:63]"); a("buffer_load_dword v127, v19, s[52:55], s58 offen")
        a("s_mov_b64 exec, -1")
        a("s_branch L3_join2")
    a.label('L3_join'); a.flush()
    a("s_waitcnt vmcnt(0)")
    a.label('L3_join2'); a.flush()
    X0=[24+e for e in range(8)]; H1=[32+e for e in range(8)]
    for i in range(4): a(f"v_mov_b32 v{8+i}, 0")
    unpack8(a, 120, X0)
    a("v_mov_b32 v126, v125")
    ln_norm(a, X0, H1, 124, None, 126, 48)
    a("s_waitcnt lgkmcnt(0)"); a("s_barrier"); stamp(a,3)
    a("s_mov_b32 exec_hi, 0x00ffffff")
    for k in (1,0,6): a(f"ds_read_b128 v[{88+4*k}:{91+4*k}], v5 offset:{L3_C+896*k}")
    a("ds_read_b128 v[8:11], v6")
    for k in (2,4,3,7,5): a(f"ds_read_b128 v[{88+4*k}:{91+4*k}], v5 offset:{L3_C+896*k}")
    a("s_mov_b32 exec_hi, -1")
    T=[64+e for e in range(8)]; T2_=[72+e for e in range(8)]; T3=[80+e for e in range(8)]
    a("s_waitcnt lgkmcnt(6)")
    unpack8(a, 92, T); unpack8(a, 88, T2_); unpack8(a, 112, T3)
    for e in range(0,8,2):
        h0,h1=H1[e],H1[e+1]
        pk(a,'mul',h0,h0,T[e]); rnd2(a,h0,h1,48)
        pk(a,'add',h0,h0,T2_[e]); rnd2(a,h0,h1,48)
        pk(a,'mul',h0,h0,T3[e]); rnd2(a,h0,h1,48)
    a("s_waitcnt lgkmcnt(4)")
    X=[[16+e for e in range(8)]]
    unpack8(a, 8, X[0]); unpack8(a, 96, T)
    for e in range(0,8,2):
        y0,y1=X[0][e],X[0][e+1]
        pk(a,'add',y0,y0,H1[e]); rnd2(a,y0,y1,48)
        pk(a,'mul',y0,y0,T[e]); rnd2(a,y0,y1,48)
        pk(a,'add',y0,y0,X0[e])
        a(f"v_cvt_pk_bf16_f32 v{8+e//2}, v{y0}, v{y1}")
        a(f"v_lshlrev_b32 v{y0}, 16, v{8+e//2}"); a(f"v_and_b32 v{y1}, 0xffff0000, v{8+e//2}")
    a("v_add_u32 v6, s16, v6")
    a(f"s_mov_b32 s17, {WS_X1}")
    a("s_mov_b32 exec_hi, 0x00ffffff")
    a("buffer_store_dwordx4 v[8:11], v6, s[4:7], s17 offen"+STF[1])
    a("s_mov_b32 exec_hi, -1")
    mean,sd,ri = ln_stats(a, X, 1, [32], 34, 28)
    H=[[48+e for e in range(8)]]
    ln_norm(a, X[0], H[0], mean[0], sd[0], ri[0], 46)
    stamp(a,4)
    a("s_waitcnt lgkmcnt(0)")
    unpack8(a, 104, T); unpack8(a, 100, T2_); unpack8(a, 116, T3)
    for e in range(0,8,2):
        h0,h1=H[0][e],H[0][e+1]
        pk(a,'mul',h0,h0,T[e]); rnd2(a,h0,h1,46)
        pk(a,'add',h0,h0,T2_[e])
        a(f"v_cvt_pk_bf16_f32 v{24+e//2}, v{h0}, v{h1}")
        a(f"v_lshlrev_b32 v{h0}, 16, v{24+e//2}"); a(f"v_and_b32 v{h1}, 0xffff0000, v{24+e//2}")
        if e==0: pk(a,'mul',32,h0,T3[e])
        else: pk(a,'fma',32,h0,T3[e],32)
    a("v_add_f32 v32, v32, v33")
    a(f"s_mov_b32 s17, {WS_H2}")
    a("s_mov_b32 exec_hi, 0x00ffffff")
    a("buffer_store_dwordx4 v[24:27], v6, s[4:7], s17 offen"+STF[1])
    a("s_mov_b32 exec_hi, -1")
    unpack8(a, 108, T)
    wave_red(a,[32])
    for e in range(0,8,2):
        h0,h1=H[0][e],H[0][e+1]
        pk(a,'mul',h0,h0,T[e]); rnd2(a,h0,h1,46)
        pk(a,'add',h0,h0,X[0][e])
        a(f"v_cvt_pk_bf16_f32 v{28+e//2}, v{h0}, v{h1}")
    a("v_cvt_pk_bf16_f32 v34, v32, v32")
    a("s_lshl_b32 s16, s2, 3"); a("v_add_u32 v35, s16, v2")
    a("v_and_b32 v36, 0xffff, v34")
    a("v_bfe_i32 v37, v36, 15, 1"); a("v_or_b32 v37, 0x8000, v37"); a("v_xor_b32 v36, v36, v37")
    a("v_sub_u32 v38, 2047, v35"); a("v_lshl_or_b32 v40, v36, 16, v38")
    a("v_lshlrev_b32 v35, 2, v35")
    a("s_mov_b32 exec_hi, 0x00ffffff")
    a("buffer_store_dwordx4 v[28:31], v6, s[12:15], 0 offen"+STF[1])
    a("s_mov_b32 exec_lo, 0"); a("s_mov_b32 exec_hi, 0x80000000")
    a(f"s_mov_b32 s17, {WS_R}")
    a("buffer_store_dword v40, v35, s[4:7], s17 offen")
    prof_end(a,1,5,4)
    a.label('L3_end'); a("s_endpgm")

def topk(a, K0, lds_off, TK):
    K=[K0+i for i in range(8)]
    free=K0+8
    net=[(0,1),(2,3),(4,5),(6,7),(0,2),(1,3),(4,6),(5,7),(1,2),(5,6),(0,4),(3,7),(1,5),(2,6),(1,4),(3,6),(2,4),(3,5),(3,4)]
    for (i,j) in net:
        a(f"v_max_u32 v{free}, v{K[i]}, v{K[j]}"); a(f"v_min_u32 v{K[j]}, v{K[i]}, v{K[j]}")
        K[i],free = free,K[i]
    T=K0+9
    pend=[]
    def fill(n=2):
        for _ in range(n):
            if pend: a(pend.pop(0))
    for rnd in range(8):
        zero=' bound_ctrl:0'
        fill()
        a(f"v_max_u32_dpp v{T}, v{K[0]}, v{K[0]} row_shr:1 row_mask:0xf bank_mask:0xf{zero}")
        for sh in (2,4,8):
            fill(); a(f"v_max_u32_dpp v{T}, v{T}, v{T} row_shr:{sh} row_mask:0xf bank_mask:0xf{zero}")
        fill(); a(f"v_max_u32_dpp v{T}, v{T}, v{T} row_bcast:15 row_mask:0xa bank_mask:0xf")
        fill(); a(f"v_max_u32_dpp v{T}, v{T}, v{T} row_bcast:31 row_mask:0xc bank_mask:0xf")
        assert not pend
        a(f"v_readlane_b32 s{TK+rnd}, v{T}, 63")
        if rnd<7:
            a(f"v_cmp_eq_u32_e64 s[20:21], s{TK+rnd}, v{K[0]}")
            a(f"v_cndmask_b32_e64 v{K[0]}, v{K[0]}, v{K[1]}, s[20:21]")
            for i in range(1,7-rnd): pend.append(f"v_cndmask_b32_e64 v{K[i]}, v{K[i]}, v{K[i+1]}, s[20:21]")
    Q=K0+12
    for i in range(8): a(f"v_mov_b32 v{Q+i}, s{TK+i}")
    a(f"v_lshlrev_b32 v{T}, 5, v2")
    a("v_cmp_eq_u32 vcc, 0, v1"); a("s_and_saveexec_b64 s[20:21], vcc")
    a(f"ds_write_b128 v{T}, v[{Q}:{Q+3}] offset:{lds_off}"); a(f"ds_write_b128 v{T}, v[{Q+4}:{Q+7}] offset:{lds_off+16}")
    a("s_mov_b64 exec, s[20:21]")
    a(f"v_and_b32 v{T}, 31, v1"); a(f"v_lshlrev_b32 v{T}, 2, v{T}")
    a(f"v_mov_b32 v{T+2}, 0")
    a("s_waitcnt lgkmcnt(0)"); a("s_barrier")
    a(f"ds_read_b32 v{T+1}, v{T} offset:{lds_off}")
    A0=K0+20
    for j in range(8): a(f"ds_read_b128 v[{A0+4*j}:{A0+4*j+3}], v{T+2} offset:{lds_off+16*j}")
    a("s_waitcnt lgkmcnt(0)")
    R=[K0,K0+1,K0+2,K0+3]
    for r in R: a(f"v_mov_b32 v{r}, 0")
    for j0 in range(0,32,4):
        for q in range(4): a(f"v_cmp_gt_u32_e64 s[{22+2*q}:{23+2*q}], v{A0+j0+q}, v{T+1}")
        for q in range(4): a(f"v_addc_co_u32_e64 v{R[q]}, s[{22+2*q}:{23+2*q}], 0, v{R[q]}, s[{22+2*q}:{23+2*q}]")
    a(f"v_add_u32 v{R[0]}, v{R[0]}, v{R[1]}"); a(f"v_add_u32 v{R[2]}, v{R[2]}, v{R[3]}"); a(f"v_add_u32 v{R[0]}, v{R[0]}, v{R[2]}")
    for r0 in range(0,8,4):
        for q in range(4): a(f"v_cmp_eq_u32_e64 s[{22+2*q}:{23+2*q}], {r0+q}, v{R[0]}")
        for q in range(4): a(f"s_ff1_i32_b32 s{22+2*q}, s{22+2*q}")
        for q in range(4): a(f"v_readlane_b32 s{TK+r0+q}, v{T+1}, s{22+2*q}")

L4_W=0; L4_WD=14336; L4_RED=L4_WD+7168; L4_TK=L4_RED+4096; L4_ACT=L4_TK+256; L4_LDS=L4_ACT+4*128
def k4(a):
    a.label('k4_kernel'); a.flush(); stamp(a,0)
    a("s_cmp_ge_u32 s2, 224"); a("s_cbranch_scc1 L4_end")
    srd_load(a,4,'ws'); srd_load(a,8,'w_gate'); srd_load(a,12,'w_up'); srd_load(a,48,'w_down')
    a(f"s_mov_b32 s30, {hx(L_HI)}"); a(f"s_mov_b32 s31, {hx(L_LO)}"); a(f"s_mov_b32 s32, {hx(LN2)}")
    a("v_and_b32 v1, 63, v0"); a("v_lshrrev_b32 v2, 6, v0")
    a("s_and_b32 s16, s2, 7"); a("s_mul_i32 s16, s16, 28"); a("s_lshr_b32 s17, s2, 3"); a("s_add_u32 s16, s16, s17")
    a("s_lshl_b32 s17, s16, 4")
    a("v_lshrrev_b32 v3, 1, v1"); a("v_lshl_add_u32 v3, v2, 5, v3"); a("v_mul_u32_u24 v3, 3584, v3"); a("v_add_u32 v3, s17, v3")
    a("v_readfirstlane_b32 s18, v2")
    a("v_lshlrev_b32 v4, 5, v0"); a("v_lshlrev_b32 v10, 4, v0")
    a(f"s_mov_b32 s19, {WS_R}")
    a("s_mul_i32 s33, s16, 7168")
    a("s_waitcnt lgkmcnt(0)"); stamp(a,1)
    a("s_cmp_ge_u32 s18, 4"); a("s_cbranch_scc0 L4_cmp")
    a("s_sub_u32 s18, s18, 4")
    a("v_subrev_u32 v3, 458752, v3")
    a("v_subrev_u32 v10, 4096, v10")
    a("s_lshl_b32 s22, s18, 10")
    a("s_mov_b32 s24, 0x55555555"); a("s_mov_b32 s25, 0x55555555"); a("s_mov_b32 s26, 0xaaaaaaaa"); a("s_mov_b32 s27, 0xaaaaaaaa")
    for it in range(3):
        a(f"s_add_u32 s23, s22, {L4_W+4096*it}"); a("s_mov_b32 m0, s23"); a(f"s_mov_b32 s28, {128*3584*it}")
        a("s_mov_b64 exec, s[24:25]"); a("buffer_load_dwordx4 v3, s[8:11], s28 offen lds")
        a("s_mov_b64 exec, s[26:27]"); a("buffer_load_dwordx4 v3, s[12:15], s28 offen lds")
    a("s_mov_b64 exec, -1")
    a("s_cmp_ge_u32 s18, 2"); a("s_cbranch_scc1 L4_alt")
    a(f"s_add_u32 s23, s22, {L4_W+4096*3}"); a("s_mov_b32 m0, s23"); a(f"s_mov_b32 s28, {128*3584*3}")
    a("s_mov_b64 exec, s[24:25]"); a("buffer_load_dwordx4 v3, s[8:11], s28 offen lds")
    a("s_mov_b64 exec, s[26:27]"); a("buffer_load_dwordx4 v3, s[12:15], s28 offen lds")
    a("s_mov_b64 exec, -1")
    a(f"s_add_u32 s23, s22, {L4_WD}"); a("s_mov_b32 m0, s23")
    a("buffer_load_dwordx4 v10, s[48:51], s33 offen lds")
    a("s_branch L4_dmadone")
    a.label('L4_alt'); a.flush()
    a(f"s_add_u32 s23, s22, {L4_WD}"); a("s_mov_b32 m0, s23")
    a("buffer_load_dwordx4 v10, s[48:51], s33 offen lds")
    a("buffer_load_dwordx4 v10, s[48:51], s33 offen offset:2048 lds")
    a("s_cmp_eq_u32 s18, 2"); a("s_cselect_b32 s28, 2048, 0"); a("s_add_u32 s23, s23, s28"); a("s_mov_b32 m0, s23"); a("s_add_u32 s28, s28, s33")
    a("buffer_load_dwordx4 v10, s[48:51], s28 offen offset:2048 lds")
    a.label('L4_dmadone'); a.flush()
    a("s_barrier")
    a("s_waitcnt vmcnt(0)")
    a("s_barrier")
    a("s_endpgm")
    a.label('L4_cmp'); a.flush()
    a("buffer_load_dwordx4 v[16:19], v4, s[4:7], s19 offen"); a("buffer_load_dwordx4 v[20:23], v4, s[4:7], s19 offen offset:16")
    a("s_waitcnt vmcnt(0)"); stamp(a,2)
    TK=40
    topk(a, 16, L4_TK, TK)
    stamp(a,3)
    a("v_and_b32 v5, 7, v1"); a("v_mov_b32 v6, 0")
    for i in range(8):
        a(f"s_and_b32 s20, s{TK+i}, 0xffff"); a("s_sub_u32 s20, 2047, s20"); a("s_mul_i32 s20, s20, 896")
        a(f"v_cmp_eq_u32_e64 s[34:35], {i}, v5"); a("v_mov_b32 v7, s20"); a("v_cndmask_b32_e64 v6, v6, v7, s[34:35]")
    a("v_lshrrev_b32 v7, 4, v1"); a("v_lshl_add_u32 v6, v7, 4, v6"); a("v_lshl_add_u32 v6, v2, 6, v6")
    a(f"s_mov_b32 s19, {WS_H2}")
    for it in range(4): a(f"buffer_load_dwordx4 v[{16+4*it}:{19+4*it}], v6, s[4:7], s19 offen offset:{256*it}")
    a("s_cmp_lg_u32 s2, 0"); a("s_cbranch_scc1 L4_nokeys")
    for i in range(8): a(f"v_mov_b32 v{64+i}, s{TK+i}")
    a("v_mov_b32 v72, 0"); a(f"s_mov_b32 s19, {WS_IDX}")
    a("v_cmp_eq_u32 vcc, 0, v0"); a("s_and_saveexec_b64 s[20:21], vcc")
    a("buffer_store_dwordx4 v[64:67], v72, s[4:7], s19 offen"); a("buffer_store_dwordx4 v[68:71], v72, s[4:7], s19 offen offset:16")
    a("s_mov_b64 exec, s[20:21]")
    a.label('L4_nokeys'); a.flush(); a.nop(2)
    a("v_and_b32 v8, 3, v1"); a("v_bfe_u32 v9, v1, 2, 2"); a("v_lshl_add_u32 v9, v7, 3, v9")
    a("v_lshlrev_b32 v9, 5, v9"); a("v_lshl_add_u32 v9, v8, 3, v9"); a("v_lshl_add_u32 v9, v2, 10, v9")
    for i in range(4): a(f"v_mov_b32 v{60+i}, 0")
    a("v_and_b32 v11, 1, v7"); a("v_bfe_u32 v12, v1, 2, 2"); a("v_lshl_add_u32 v11, v11, 2, v12"); a("v_mul_u32_u24 v11, 896, v11")
    a("v_lshl_add_u32 v11, v8, 3, v11"); a("v_mul_u32_u24 v12, 224, v2"); a("v_add_u32 v11, v11, v12")
    a("s_barrier")
    for it in range(4):
        a(f"ds_read_b64_tr_b16 v[{32+4*it}:{33+4*it}], v9 offset:{L4_W+4096*it}")
        a(f"ds_read_b64_tr_b16 v[{34+4*it}:{35+4*it}], v9 offset:{L4_W+4096*it+128}")
    a("s_waitcnt vmcnt(0)"); stamp(a,4)
    for it in range(4):
        if it==3:
            a("s_cmp_ge_u32 s18, 2"); a("s_cbranch_scc1 L4_mmdone")
        a(f"s_waitcnt lgkmcnt({6-2*it})" if not (PROF or DIAG) else "s_waitcnt lgkmcnt(0)")
        a(f"v_mfma_f32_16x16x32_bf16 v[60:63], v[{32+4*it}:{35+4*it}], v[{16+4*it}:{19+4*it}], v[60:63]")
    a.label('L4_mmdone'); a.flush()
    for dt in range(7): a(f"ds_read_b64_tr_b16 v[{76+2*dt}:{77+2*dt}], v11 offset:{L4_WD+32*dt}")
    a("v_lshlrev_b32 v13, 4, v1")
    a(f"ds_write_b128 v10, v[60:63] offset:{L4_RED}")
    a("v_and_b32 v5, 15, v1")
    a("v_mul_u32_u24 v15, 28, v5"); a("v_mul_u32_u24 v12, 7, v2"); a("v_add_u32 v15, v15, v12"); a("v_mul_u32_u24 v15, 14336, v15")
    a("v_lshl_add_u32 v15, v7, 4, v15")
    a("s_lshl_b32 s19, s16, 6"); a(f"s_add_u32 s19, s19, {WS_P}")
    a("v_mov_b32 v30, 0"); a("v_mov_b32 v31, 0")
    a("s_waitcnt lgkmcnt(0)"); a("s_barrier"); stamp(a,5)
    for w in range(4): a(f"ds_read_b128 v[{16+4*w if w<3 else 32}:{19+4*w if w<3 else 35}], v13 offset:{L4_RED+1024*w}")
    a("s_waitcnt lgkmcnt(0)")
    pk(a,'add',16,16,20); pk(a,'add',18,18,22); pk(a,'add',24,24,32); pk(a,'add',26,26,34); pk(a,'add',16,16,24); pk(a,'add',18,18,26)
    rnd2(a,16,17,36); rnd2(a,18,19,37)
    for r in range(4): a(f"v_mul_f32 v{64+r}, s30, v{16+r}")
    for r in range(4): a(f"v_mov_b32 v{40+r}, v{16+r}")
    for r in range(4): a(f"v_fma_f32 v{68+r}, v{16+r}, s30, -v{64+r}")
    for r in range(4): a(f"v_exp_f32_e64 v{64+r}, -v{64+r}")
    for r in range(4): a(f"v_fma_f32 v{68+r}, v{16+r}, s31, v{68+r}")
    for r in range(4): a(f"v_permlane32_swap_b32 v{40+r}, v{24+r}")
    for r in range(4): a(f"v_mul_f32 v{68+r}, s32, v{68+r}")
    for r in range(4): a(f"v_fma_f32 v{64+r}, v{64+r}, -v{68+r}, v{64+r}")
    for r in range(4): a(f"v_add_f32 v{64+r}, 1.0, v{64+r}")
    for r in range(4): a(f"v_rcp_f32 v{68+r}, v{64+r}")
    for r in range(4): a(f"v_mul_f32 v{20+r}, v{16+r}, v{68+r}")
    for r in range(4): a(f"v_fma_f32 v{72+r}, -v{20+r}, v{64+r}, v{16+r}")
    for r in range(4): a(f"v_fma_f32 v{20+r}, v{72+r}, v{68+r}, v{20+r}")
    rnd2(a,20,21,36); rnd2(a,22,23,37)
    pk(a,'mul',20,20,24); pk(a,'mul',22,22,26)
    a("s_mov_b32 exec_lo, 0x00ff00ff"); a("s_mov_b32 exec_hi, 0")
    a("v_cvt_pk_bf16_f32 v30, v20, v21"); a("v_cvt_pk_bf16_f32 v31, v22, v23")
    if DEBUG_ACT:
        a("v_mul_u32_u24 v6, 3584, v5"); a("v_lshl_add_u32 v6, v7, 3, v6"); a("v_add_u32 v6, s17, v6")
        a(f"s_mov_b32 s21, {WS_ACT}")
        a("buffer_store_dwordx2 v[30:31], v6, s[4:7], s21 offen")
    a("s_mov_b64 exec, -1")
    for dt in range(7):
        a(f"v_mfma_f32_16x16x16_bf16 v[{32+4*dt}:{35+4*dt}], v[{76+2*dt}:{77+2*dt}], v[30:31], 0")
    a("s_mov_b32 exec_lo, 0x00ff00ff"); a("s_mov_b32 exec_hi, 0x00ff00ff")
    for dt in range(7):
        a(f"buffer_store_dwordx4 v[{32+4*dt}:{35+4*dt}], v15, s[4:7], s19 offen"+STF[2])
        if dt<6: a(f"s_add_u32 s19, s19, 14336")
    prof_end(a,2,6,4)
    a.label('L4_end'); a("s_endpgm")

def k5(a):
    a.label('k5_kernel'); a.flush(); stamp(a,0)
    a("s_cmp_ge_u32 s2, 224"); a("s_cbranch_scc1 L5_end")
    srd_load(a,4,'ws'); srd_load(a,12,'out')
    a(f"s_mov_b32 s30, {hx(L_HI)}"); a(f"s_mov_b32 s31, {hx(L_LO)}"); a(f"s_mov_b32 s32, {hx(LN2)}")
    a("s_mul_hi_u32 s16, s2, 153391690"); a("s_mul_i32 s17, s16, 28"); a("s_sub_u32 s17, s2, s17")
    a("v_lshlrev_b32 v4, 4, v0")
    a("s_mul_i32 s19, s2, 14336"); a(f"s_add_u32 s19, s19, {WS_P}")
    a("s_lshl_b32 s20, s16, 2"); a(f"s_add_u32 s20, s20, {WS_IDX}")
    a("v_mov_b32 v5, 0"); a("v_mov_b32 v12, 0")
    for i in range(4): a(f"v_mov_b32 v{28+i}, 0")
    a("s_waitcnt lgkmcnt(0)"); stamp(a,1)
    a("buffer_load_dword v40, v5, s[4:7], s20 offen")
    for it in range(3):
        a(f"buffer_load_dwordx4 v[{16+4*it}:{19+4*it}], v4, s[4:7], s19 offen"); a("s_add_u32 s19, s19, 4096")
    a("v_cmp_gt_u32 vcc, 128, v0"); a("s_and_saveexec_b64 s[22:23], vcc")
    a("s_cbranch_execz L5_skip")
    a("buffer_load_dwordx4 v[28:31], v4, s[4:7], s19 offen")
    a.label('L5_skip'); a("s_mov_b64 exec, s[22:23]")
    a("v_and_b32 v6, 15, v0"); a("v_lshlrev_b32 v7, 2, v6")
    a("s_lshl_b32 s21, s17, 6"); a(f"s_add_u32 s21, s21, {WS_MOD+5*1792}")
    a("buffer_load_dword v41, v7, s[4:7], s21 offen")
    a("v_readfirstlane_b32 s24, v0")
    a("s_cmp_lg_u32 s24, 0"); a("s_cbranch_scc1 L5_nogather")
    a("s_waitcnt vmcnt(5)"); stamp(a,2)
    a("v_and_b32 v8, 0xffff, v40"); a("v_sub_u32 v8, 2047, v8")
    a("s_lshl_b32 s25, s17, 4"); a("v_add_u32 v9, s25, v6")
    a(f"s_mov_b32 s26, {WS_X1}"); a(f"s_mov_b32 s27, {WS_H2}")
    a("v_mul_u32_u24 v12, 896, v8"); a("v_lshl_add_u32 v12, v9, 1, v12")
    a("buffer_load_ushort v42, v12, s[4:7], s26 offen")
    a("buffer_load_ushort v43, v12, s[4:7], s27 offen")
    a("v_lshrrev_b32 v33, 16, v40"); a("v_bfe_i32 v34, v33, 15, 1")
    a("v_not_b32 v34, v34"); a("v_or_b32 v34, 0x8000, v34"); a("v_xor_b32 v33, v33, v34"); a("v_lshlrev_b32 v33, 16, v33")
    exp_acc(a, 34, 33, 35, 36, 30, 31, 32, neg=True)
    a("v_add_f32 v34, 1.0, v34"); a("v_rcp_f32 v35, v34"); a("v_mov_b32 v37, 1.0")
    div_acc(a, 44, 37, 34, 35, 36)
    rnd1(a,44,35)
    a("s_waitcnt vmcnt(3)")
    a("s_branch L5_sum")
    a.label('L5_nogather'); a.flush()
    a("s_waitcnt vmcnt(1)")
    a.label('L5_sum'); a.flush(); stamp(a,3)
    for i in range(4):
        a(f"v_add_f32 v{16+i}, v{16+i}, v{20+i}"); a(f"v_add_f32 v{24+i}, v{24+i}, v{28+i}"); a(f"v_add_f32 v{16+i}, v{16+i}, v{24+i}")
    for sh in (4,8):
        for i in range(4): a(f"v_add_f32_dpp v{16+i}, v{16+i}, v{16+i} row_ror:{sh} row_mask:0xf bank_mask:0xf")
    a("v_lshrrev_b32 v13, 4, v0"); a("v_lshlrev_b32 v13, 6, v13"); a("v_and_b32 v14, 3, v0"); a("v_lshl_add_u32 v13, v14, 4, v13")
    a("v_and_b32 v14, 12, v0"); a("v_cmp_eq_u32 vcc, 0, v14"); a("s_and_saveexec_b64 s[22:23], vcc")
    a("ds_write_b128 v13, v[16:19]")
    a("s_mov_b64 exec, s[22:23]")
    a("s_waitcnt lgkmcnt(0)"); a("s_barrier"); stamp(a,4)
    a("s_cmp_lg_u32 s24, 0"); a("s_cbranch_scc1 L5_end")
    for p in range(16): a(f"ds_read_b32 v{48+p}, v7 offset:{64*p}")
    a("s_waitcnt lgkmcnt(0) vmcnt(0)")
    for st in (8,4,2,1):
        for p in range(st): a(f"v_add_f32 v{48+p}, v{48+p}, v{48+p+st}")
    rnd1(a,48,35)
    a("v_mul_f32 v48, v48, v44"); rnd1(a,48,35)
    a("v_lshlrev_b32 v42, 16, v42"); a("v_lshlrev_b32 v43, 16, v43")
    a("v_add_f32 v48, v48, v43"); rnd1(a,48,35)
    a("v_mul_f32 v48, v48, v41"); rnd1(a,48,35)
    a("v_add_f32 v48, v48, v42"); a("v_cvt_pk_bf16_f32 v48, v48, v48")
    a("s_mov_b32 exec_lo, 0xffff"); a("s_mov_b32 exec_hi, 0")
    a("buffer_store_short v48, v12, s[12:15], 0 offen")
    prof_end(a,3,5,4)
    if DIAG:
        a("s_cmp_lg_u32 s2, 223"); a("s_cbranch_scc1 L5_end")
        a("s_load_dwordx2 s[88:89], s[0:1], 136"); a("s_waitcnt lgkmcnt(0)")
        a("s_sub_u32 s84, s88, 1536"); a("s_subb_u32 s85, s89, 0"); a("s_mov_b32 s86, 2048"); a("s_mov_b32 s87, 0x20000")
        a("s_sleep 100")
        a("v_lshrrev_b32 v1, 2, v0"); a("v_lshlrev_b32 v1, 9, v1"); a("v_and_b32 v2, 3, v0"); a("v_lshl_add_u32 v1, v2, 2, v1")
        a("buffer_load_dword v3, v1, s[84:87], 0 offen offset:192 sc1")
        a("s_waitcnt vmcnt(0)")
        a("v_lshlrev_b32 v1, 2, v0")
        a("s_mov_b64 exec, 0xffff")
        a("buffer_store_dword v3, v1, s[84:87], 0 offen offset:1536")
    a.label('L5_end'); a("s_endpgm")

def desc(name, vgpr, sgpr=102):
    return f""".amdhsa_kernel {name}
  .amdhsa_next_free_vgpr {vgpr}
  .amdhsa_next_free_sgpr {sgpr}
  .amdhsa_accum_offset {(vgpr+3)//4*4}
  .amdhsa_group_segment_fixed_size 0
  .amdhsa_kernarg_size 152
  .amdhsa_user_sgpr_count 2
  .amdhsa_user_sgpr_kernarg_segment_ptr 1
  .amdhsa_system_sgpr_workgroup_id_x 1
  .amdhsa_float_denorm_mode_32 3
.end_amdhsa_kernel
"""
DEBUG_ACT=False
PREPPRIO=int(__import__('os').environ.get('PREPPRIO','1'))
STF=[(' '+x if x else '') for x in __import__('os').environ.get('STF',',sc1,sc1').split(',')]
CODEPF=int(__import__('os').environ.get('CODEPF','1'))
PREFETCH=int(__import__('os').environ.get('PREFETCH','1'))
PRIO=int(__import__('os').environ.get('PRIO','2'))
def main(path):
    hdr = open('adaLN_cond__ssm_conv_s4__moe_arch_mod__prompt.s.ref').read().split('; Override')[0]
    pv = 120 if (PROF or DIAG) else 0
    kernels=[('f1_kernel',f1,F1_GRID,256,F1_LDS,160),
             ('k3_kernel',k3,256,512,14336,128),
             ('k4_kernel',k4,224,512,L4_LDS,max(96,pv)),
             ('k5_kernel',k5,224,256,1024,max(64,pv))]
    out=hdr
    for n,f,g,b,l,v in kernels: out+=f"; @launch kernel={n} grid=({g},1,1) block=({b},1,1) lds={l}\n"
    out+='.amdgcn_target "amdgcn-amd-amdhsa--gfx950"\n.text\n'
    for n,f,g,b,l,v in kernels:
        a=Asm()
        a.raw(f".globl {n}\n.p2align 8\n.type {n},@function")
        f(a)
        out+=a.text()
    out+='CODE_END:\n'
    out+='.section .rodata,"a"\n'
    for n,f,g,b,l,v in kernels: out+='.p2align 6\n'+desc(n,v)
    open(path,'w').write(out)

if __name__=='__main__':
    if 'prof' in sys.argv[2:]: PROF=True
    if 'diag' in sys.argv[2:]: DIAG=True
    if 'dbg' in sys.argv[2:]: DEBUG_ACT=True
    main(sys.argv[1] if len(sys.argv)>1 else 'adaLN_cond__ssm_conv_s4__moe_arch_mod__prompt.s')
```

```python
import sys, struct, math
sys.path.insert(0,'work')
from asmlib import Asm
from layout import *
import numpy as np

def f2u(x): return struct.unpack('<I', struct.pack('<f', x))[0]
def hx(x): return '0x%08x' % f2u(x)
LOG2E = 1.4426950408889634; L_HI = float(np.float32(LOG2E)); L_LO = float(np.float32(LOG2E-L_HI))
LN2 = 0.6931471805599453
I2P = 0.15915494309189535; I2P_HI = float(np.float32(I2P)); I2P_LO = float(np.float32(I2P-I2P_HI))
WS_SIZE = 268435456
KA = dict(A_u=0,A_re=8,A_im=16,B_re=24,B_im=32,C_re=40,C_im=48,log_dt=56,Dskip=64,B_x=72,w_r=80,w_gate=88,w_up=96,w_down=104,c=112,w_mod=120,out=128,dbg=136,ws=144)
SZ = dict(A_u=2048*896,A_re=448*512,A_im=448*512,B_re=448*512,B_im=448*512,C_re=448*512,C_im=448*512,log_dt=896,Dskip=896,w_r=896,w_gate=448*3584,w_up=448*3584,w_down=1792*896,c=896,w_mod=448*5376,out=2048*896,dbg=256,ws=WS_SIZE)

def srd_load(a, s, name):
    a(f"s_load_dwordx2 s[{s}:{s+1}], s[0:1], {KA[name]}")
    a(f"s_mov_b32 s{s+2}, {SZ[name]}")
    a(f"s_mov_b32 s{s+3}, 0x20000")

def rnd2(a, x0, x1, tmp):
    a(f"v_cvt_pk_bf16_f32 v{tmp}, v{x0}, v{x1}")
    a(f"v_lshlrev_b32 v{x0}, 16, v{tmp}")
    a(f"v_and_b32 v{x1}, 0xffff0000, v{tmp}")
def rnd1(a, x0, tmp):
    a(f"v_cvt_pk_bf16_f32 v{tmp}, v{x0}, v{x0}")
    a(f"v_lshlrev_b32 v{x0}, 16, v{tmp}")

def wave_red(a, regs, op='v_add_f32'):
    zero = ' bound_ctrl:0'
    for sh in (1,2,4,8):
        for r in regs: a(f"{op}_dpp v{r}, v{r}, v{r} row_shr:{sh} row_mask:0xf bank_mask:0xf{zero}")
    for r in regs: a(f"{op}_dpp v{r}, v{r}, v{r} row_bcast:15 row_mask:0xa bank_mask:0xf")
    for r in regs: a(f"{op}_dpp v{r}, v{r}, v{r} row_bcast:31 row_mask:0xc bank_mask:0xf")

def exp_acc(a, dst, x, t, e, sLhi, sLlo, sLn2, neg=False):
    n = '-' if neg else ''
    a(f"v_mul_f32 v{t}, s{sLhi}, v{x}")
    a(f"v_fma_f32 v{e}, v{x}, s{sLhi}, -v{t}")
    a(f"v_fma_f32 v{e}, v{x}, s{sLlo}, v{e}")
    a(f"v_exp_f32 v{dst}, v{t}" if not neg else f"v_exp_f32_e64 v{dst}, -v{t}")
    a(f"v_mul_f32 v{e}, s{sLn2}, v{e}")
    a(f"v_fma_f32 v{dst}, v{dst}, {n}v{e}, v{dst}")

def div_acc(a, q, num, den, r, e):
    a(f"v_mul_f32 v{q}, v{num}, v{r}")
    a(f"v_fma_f32 v{e}, -v{q}, v{den}, v{num}")
    a(f"v_fma_f32 v{q}, v{e}, v{r}, v{q}")

def cmul(a, d, x, y, t):
    a(f"v_pk_mul_f32 v[{t}:{t+1}], v[{x}:{x+1}], v[{y}:{y+1}] op_sel:[0,0] op_sel_hi:[1,0]")
    a(f"v_pk_fma_f32 v[{d}:{d+1}], v[{x}:{x+1}], v[{y}:{y+1}], v[{t}:{t+1}] op_sel:[1,1,0] op_sel_hi:[0,1,1] neg_lo:[1,0,0]")

def pk(a, op, d, x, y, z=None, bcast1=False, neg1=False):
    m=''
    n = 3 if z is not None else 2
    if bcast1: m += ' op_sel:['+','.join(['0']*n)+'] op_sel_hi:['+','.join(['1','0','1'][:n])+']'
    if neg1: m += ' neg_lo:['+','.join(['0','1','0'][:n])+'] neg_hi:['+','.join(['0','1','0'][:n])+']'
    zz = f", v[{z}:{z+1}]" if z is not None else ''
    a(f"v_pk_{op}_f32 v[{d}:{d+1}], v[{x}:{x+1}], v[{y}:{y+1}]{zz}{m}")

def ln_stats(a, X, nrows, sums, tmp, S0):
    P=tmp+6*nrows
    for i in range(nrows):
        x=X[i][0]
        pk(a,'add',P,x,x+2); pk(a,'add',P+2,x+4,x+6); pk(a,'add',P,P,P+2)
        a(f"v_add_f32 v{sums[i]}, v{P}, v{P+1}")
    wave_red(a, sums)
    for i in range(nrows): a(f"v_readlane_b32 s{S0+i}, v{sums[i]}, 63")
    mean=[tmp+6*i for i in range(nrows)]; sd=[tmp+6*i+2 for i in range(nrows)]; ri=[tmp+6*i+4 for i in range(nrows)]
    a(f"v_mov_b32 v{P+4}, {hx(1.0/448)}")
    for i in range(nrows): a(f"v_mul_f32 v{mean[i]}, s{S0+i}, v{P+4}")
    for i in range(nrows): a(f"v_mov_b32 v{sums[i]}, 0")
    a(f"s_mov_b32 exec_hi, 0x00ffffff")
    for i in range(nrows):
        x=X[i][0]; acc=sd[i]
        pk(a,'add',P,x,mean[i],bcast1=True,neg1=True); pk(a,'add',P+2,x+2,mean[i],bcast1=True,neg1=True)
        pk(a,'mul',acc,P,P); pk(a,'fma',acc,P+2,P+2,acc)
        pk(a,'add',P,x+4,mean[i],bcast1=True,neg1=True); pk(a,'add',P+2,x+6,mean[i],bcast1=True,neg1=True)
        pk(a,'fma',acc,P,P,acc); pk(a,'fma',acc,P+2,P+2,acc)
        a(f"v_add_f32 v{sums[i]}, v{acc}, v{acc+1}")
    a(f"s_mov_b32 exec_hi, -1")
    a.nop(1)
    wave_red(a, sums)
    for i in range(nrows): a(f"v_readlane_b32 s{S0+i}, v{sums[i]}, 63")
    for i in range(nrows): a(f"v_mul_f32 v{sd[i]}, s{S0+i}, v{P+4}")
    for i in range(nrows): rnd2(a, mean[i], sd[i], P+(i&3))
    for i in range(nrows): a(f"v_add_f32 v{sd[i]}, {hx(1e-5)}, v{sd[i]}")
    for i in range(nrows): rnd1(a, sd[i], P+(i&3))
    for i in range(nrows): a(f"v_sqrt_f32 v{sd[i]}, v{sd[i]}")
    for i in range(nrows): rnd1(a, sd[i], P+(i&3))
    for i in range(nrows): a(f"v_rcp_f32 v{ri[i]}, v{sd[i]}")
    return mean, sd, ri

def ln_norm(a, x, out, m, s, ri, t0, final_round=True):
    for e in range(0,8,2):
        pk(a,'add',out[e],x[e],m,bcast1=True,neg1=True)
        rnd2(a, out[e], out[e+1], t0)
        pk(a,'mul',out[e],out[e],ri,bcast1=True)
        if final_round: rnd2(a, out[e], out[e+1], t0)

def unpack8(a, src, dst):
    for i in range(4):
        a(f"v_lshlrev_b32 v{dst[2*i]}, 16, v{src+i}")
        a(f"v_and_b32 v{dst[2*i+1]}, 0xffff0000, v{src+i}")

def idx_of_l(a, dst, lf, lu, t, c128, sc):
    a(f"v_cvt_pk_bf16_f32 v{t}, v{lf}, v{lf}")
    a(f"v_and_b32 v{t}, 0xffff, v{t}")
    a(f"v_subrev_u32 v{t}, {(134<<7)-128}, v{t}")
    a(f"v_cmp_lt_u32_e64 s[{sc}:{sc+1}], v{lu}, v{c128}")
    a(f"v_cndmask_b32_e64 v{dst}, v{t}, v{lu}, s[{sc}:{sc+1}]")

PROF = False
DIAG=False
def diag_end(a, kidx, slots):
    if not DIAG: return
    a("s_memrealtime s[94:95]")
    a("s_load_dwordx2 s[88:89], s[0:1], 136"); a("s_mov_b32 s90, 256"); a("s_mov_b32 s91, 0x20000")
    a("s_mov_b64 exec, 1")
    a("s_waitcnt lgkmcnt(0)")
    a("v_mov_b32 v98, 0")
    a("s_not_b32 s92, s70"); a("v_mov_b32 v99, s92"); a("buffer_atomic_umax v99, v98, s[88:91], 0 offen offset:192 sc1")
    a("v_mov_b32 v99, s94"); a("buffer_atomic_umax v99, v98, s[88:91], 0 offen offset:196 sc1")
    for j,sl in enumerate(slots):
        a(f"v_mov_b32 v99, s{70+2*sl}"); a(f"buffer_atomic_umax v99, v98, s[88:91], 0 offen offset:{200+4*j} sc1")
    a("s_mov_b64 exec, -1")
def stamp(a, i):
    if DIAG: a(f"s_memrealtime s[{70+2*i}:{71+2*i}]")
    if PROF:
        a(f"s_memrealtime s[{70+2*i}:{71+2*i}]")
        if i==0: a("s_memtime s[96:97]")
        if i==8: a("s_memtime s[100:101]")
        if i==9: a("s_memtime s[64:65]")
def prof_end(a, kidx, n, srd):
    if DIAG:
        diag_end(a, kidx, {(0,11):[2,4,7],(0,4):[]}.get((kidx,n),[]))
    if not PROF: return
    stamp(a, n); n+=1
    a("s_memtime s[98:99]")
    a("s_mov_b64 exec, -1")
    a("s_waitcnt lgkmcnt(0)")
    a("s_sub_u32 s98, s98, s96")
    for i in range(n): a(f"v_mov_b32 v{100+i}, s{70+2*i}")
    for i in range(n,12): a(f"v_mov_b32 v{100+i}, 0")
    a("v_lshrrev_b32 v99, 6, v0"); a("v_lshlrev_b32 v99, 6, v99")
    a(f"s_lshl_b32 s69, s2, 9"); a(f"s_add_u32 s69, s69, {WS_PROF+kidx*0x80000}")
    a("v_and_b32 v98, 63, v0"); a("v_cmp_eq_u32 vcc, 0, v98"); a("s_and_saveexec_b64 s[66:67], vcc")
    a("s_getreg_b32 s68, hwreg(HW_REG_HW_ID)"); a("v_mov_b32 v112, s68"); a("s_getreg_b32 s68, hwreg(HW_REG_XCC_ID)"); a("v_mov_b32 v113, s68"); a("v_mov_b32 v114, s98"); a("s_sub_u32 s64, s64, s100"); a("v_mov_b32 v115, s64")
    for j in range(4): a(f"buffer_store_dwordx4 v[{100+4*j}:{103+4*j}], v99, s[{srd}:{srd+3}], s69 offen offset:{16*j}")
    a("s_mov_b64 exec, -1")

N_GEMV=84; N_STAT=128; N_CONV=448; N_PROD=N_GEMV+N_STAT
REC=0; TAB=18432; TABN=664
C_P=0
C_KH=32768; C_KL=C_KH+4608; C_H0=C_KH+9216; C_H1=C_H0+4160+12
F1_LDS=C_H1+4160+4
assert C_H1%16==12 and F1_LDS%16==0

N_SIG=128+28; F1_GRID=668
def sig(a, lbl):
    a("v_mov_b32 v1, 0"); a("v_mov_b32 v2, 1"); a("v_mov_b32 v3, 1")
    a("v_cmp_eq_u32 vcc, 0, v0"); a("s_and_saveexec_b64 s[40:41], vcc")
    a(f"s_cbranch_execz {lbl}")
    a("buffer_atomic_add v2, v1, s[60:63], 0 offen sc0 sc1")
    a("s_waitcnt vmcnt(0)")
    a("v_readfirstlane_b32 s39, v2")
    a(f"s_cmp_lg_u32 s39, {N_SIG-1}"); a(f"s_cbranch_scc1 {lbl}")
    a("buffer_store_dword v3, v1, s[60:63], 0 offen offset:128 sc1")

def f1(a):
    a.label('f1_kernel'); stamp(a,0)
    a("s_load_dwordx16 s[4:19], s[0:1], 0"); a("s_load_dwordx4 s[20:23], s[0:1], 112"); a("s_load_dwordx4 s[24:27], s[0:1], 136")
    a(f"s_cmp_ge_u32 s2, {F1_GRID}"); a("s_cbranch_scc1 F1_end")
    a("s_cmp_ge_u32 s2, 660"); a("s_cbranch_scc1 F1_cpf")
    a("s_sub_u32 s42, s2, 576")
    a("s_cmp_ge_u32 s2, 604"); a("s_cbranch_scc1 F1_lowg")
    a("s_cmp_ge_u32 s2, 156"); a("s_cbranch_scc1 F1_conv")
    a("s_setprio 3")
    a("s_sub_u32 s42, s2, 128")
    a.label('F1_lowg')
    for (d,nm) in ((48,'A_u'),(52,'w_mod'),(56,'c'),(32,'ws'),(60,'dbg')):
        a(f"s_mov_b32 s{d+2}, {SZ[nm]}"); a(f"s_mov_b32 s{d+3}, 0x20000")
    a("s_waitcnt lgkmcnt(0)")
    a("s_mov_b64 s[48:49], s[4:5]"); a("s_mov_b64 s[52:53], s[22:23]"); a("s_mov_b64 s[56:57], s[20:21]"); a("s_mov_b64 s[32:33], s[26:27]"); a("s_mov_b64 s[60:61], s[24:25]")
    a(f"s_mov_b32 s36, {hx(L_HI)}"); a(f"s_mov_b32 s37, {hx(L_LO)}"); a(f"s_mov_b32 s38, {hx(LN2)}")
    a("s_mov_b32 s3, s2")
    a("s_cmp_ge_u32 s2, 128"); a("s_cbranch_scc1 F1_gemv")
    a("v_and_b32 v1, 63, v0"); a("v_lshrrev_b32 v2, 6, v0")
    a("s_mul_i32 s16, s3, 14336")
    a("v_mul_u32_u24 v3, 3584, v2"); a("v_lshl_add_u32 v3, v1, 4, v3")
    for i in range(16): a(f"v_mov_b32 v{96+i}, 0")
    a("s_waitcnt lgkmcnt(0)"); stamp(a,1)
    a("s_mov_b32 exec_hi, 0x00ffffff")
    for i in range(4): a(f"buffer_load_dwordx4 v[{96+4*i}:{99+4*i}], v3, s[48:51], s16 offen offset:{896*i}")
    a("s_mov_b32 exec_hi, -1")
    a("v_and_b32 v4, 15, v1"); a("v_lshlrev_b32 v4, 4, v4"); a("v_lshlrev_b32 v5, 3, v2"); a("v_xor_b32 v4, v4, v5")
    a("v_lshl_add_u32 v4, v1, 8, v4")
    a("v_lshlrev_b32 v7, 5, v2")
    a("s_lshl_b32 s18, s3, 7"); a(f"s_add_u32 s18, s18, {WS_ST}")
    a("v_lshlrev_b32 v5, 4, v0"); a("v_bfe_u32 v6, v0, 4, 4"); a("v_lshlrev_b32 v6, 4, v6"); a("v_xor_b32 v6, v6, v5")
    a(f"s_add_u32 s16, s16, {WS_NB}"); a("s_add_u32 s17, s16, 4096"); a("s_add_u32 s19, s16, 8192"); a("s_add_u32 s20, s16, 12288")
    a("s_waitcnt vmcnt(0)"); stamp(a,2)
    X=[[24+8*i+e for e in range(8)] for i in range(4)]
    for i in range(4): unpack8(a, 96+4*i, X[i])
    mean,sd,ri = ln_stats(a, X, 4, [56,57,58,59], 60, 64)
    for i in range(4): ln_norm(a, X[i], X[i], mean[i], sd[i], ri[i], 92+(i&1), final_round=False)
    a("s_mov_b32 exec_hi, 0x00ffffff")
    for e in range(8):
        q=16+2*(e&3)
        a(f"v_cvt_pk_bf16_f32 v{q}, v{X[0][e]}, v{X[1][e]}"); a(f"v_cvt_pk_bf16_f32 v{q+1}, v{X[2][e]}, v{X[3][e]}")
        a(f"v_xor_b32 v{92+(e&3)}, {32*e}, v4")
        a(f"ds_write_b64 v{92+(e&3)}, v[{q}:{q+1}]")
    a("s_mov_b32 exec_hi, -1")
    for i in range(4):
        a(f"v_mov_b32 v{8+2*i}, v{mean[i]}"); a(f"v_mov_b32 v{9+2*i}, v{ri[i]}")
    a("v_cmp_gt_u32 vcc, 128, v0")
    a("s_waitcnt lgkmcnt(0)"); a("s_barrier"); stamp(a,3)
    for it in range(4): a(f"ds_read_b128 v[{24+4*it}:{27+4*it}], v6 offset:{4096*it}")
    for it,sr in enumerate((16,17,19)):
        a(f"s_waitcnt lgkmcnt({3-it})")
        a(f"buffer_store_dwordx4 v[{24+4*it}:{27+4*it}], v5, s[32:35], s{sr} offen sc1")
    a("s_waitcnt lgkmcnt(0)")
    a("s_and_saveexec_b64 s[40:41], vcc")
    a("s_cbranch_execz F1_st3")
    a("buffer_store_dwordx4 v[36:39], v5, s[32:35], s20 offen sc1")
    a.label('F1_st3'); a("s_mov_b64 exec, s[40:41]")
    a("s_waitcnt vmcnt(0)"); a("s_barrier")
    a("s_mov_b32 exec_lo, 1"); a("s_mov_b32 exec_hi, 0")
    a("buffer_store_dwordx4 v[8:11], v7, s[32:35], s18 offen")
    a("buffer_store_dwordx4 v[12:15], v7, s[32:35], s18 offen offset:16")
    a("s_mov_b64 exec, -1")
    prof_end(a,0,4,32)
    sig(a,'F1_end')
    a("s_endpgm")
    a.label('F1_gemv'); a.flush()
    for i in range(7): a(f"s_mov_b32 s{20+i}, {344064*i}")
    a("v_lshrrev_b32 v1, 2, v0"); a("v_and_b32 v2, 3, v0")
    a("v_mul_u32_u24 v3, 5376, v1"); a("v_lshl_add_u32 v3, v2, 4, v3")
    a("s_lshl_b32 s39, s42, 6"); a("v_add_u32 v3, s39, v3")
    a("v_lshlrev_b32 v4, 1, v1")
    a("s_waitcnt lgkmcnt(0)")
    for i in range(7): a(f"buffer_load_ushort v{8+i}, v4, s[56:59], 0 offen offset:{128*i}")
    for i in range(7): a(f"buffer_load_dwordx4 v[{16+4*i}:{19+4*i}], v3, s[52:55], s{20+i} offen")
    a("s_waitcnt vmcnt(7)")
    R7=range(7)
    for i in R7: a(f"v_lshlrev_b32 v{8+i}, 16, v{8+i}")
    for i in R7: a(f"v_max_f32 v{100+i}, {hx(-87.0)}, v{8+i}")
    for i in R7: a(f"v_min_f32 v{100+i}, {hx(87.0)}, v{100+i}")
    for i in R7: a(f"v_mul_f32 v{68+i}, s36, v{100+i}")
    for i in R7: a(f"v_fma_f32 v{76+i}, v{100+i}, s36, -v{68+i}")
    for i in R7: a(f"v_fma_f32 v{76+i}, v{100+i}, s37, v{76+i}")
    for i in R7: a(f"v_exp_f32_e64 v{68+i}, -v{68+i}")
    for i in R7: a(f"v_mul_f32 v{76+i}, s38, v{76+i}")
    for i in R7: a(f"v_fma_f32 v{68+i}, v{68+i}, -v{76+i}, v{68+i}")
    for i in R7: a(f"v_add_f32 v{68+i}, 1.0, v{68+i}")
    for i in R7: a(f"v_rcp_f32 v{76+i}, v{68+i}")
    for i in R7: a(f"v_mul_f32 v{84+i}, v{8+i}, v{76+i}")
    for i in R7: a(f"v_fma_f32 v{68+i}, -v{84+i}, v{68+i}, v{8+i}")
    for i in R7: a(f"v_fma_f32 v{84+i}, v{68+i}, v{76+i}, v{84+i}")
    for i in R7: a(f"v_cvt_pk_bf16_f32 v{84+i}, v{84+i}, v{84+i}")
    for i in R7: a(f"v_lshlrev_b32 v{68+2*i}, 16, v{84+i}")
    for e in range(8): a(f"v_mov_b32 v{48+e}, 0")
    for i in R7:
        a(f"s_waitcnt vmcnt({6-i})")
        for j in range(4):
            t=56+2*(j&1)
            a(f"v_lshlrev_b32 v{t}, 16, v{16+4*i+j}"); a(f"v_and_b32 v{t+1}, 0xffff0000, v{16+4*i+j}")
            pk(a,'fma',48+2*j,t,68+2*i,48+2*j,bcast1=True)
    for sh in (4,8):
        for e in range(8): a(f"v_add_f32_dpp v{48+e}, v{48+e}, v{48+e} row_ror:{sh} row_mask:0xf bank_mask:0xf")
    a("v_lshrrev_b32 v5, 4, v0"); a("v_lshlrev_b32 v5, 7, v5"); a("v_lshl_add_u32 v5, v2, 5, v5")
    a("v_and_b32 v6, 12, v0"); a("v_cmp_eq_u32 vcc, 0, v6")
    a("s_and_saveexec_b64 s[40:41], vcc")
    a("ds_write_b128 v5, v[48:51] offset:16384"); a("ds_write_b128 v5, v[52:55] offset:16400")
    a("s_mov_b64 exec, s[40:41]")
    a("s_waitcnt lgkmcnt(0)"); a("s_barrier")
    a("v_lshlrev_b32 v5, 2, v0")
    a("v_cmp_gt_u32 vcc, 32, v0"); a("s_and_saveexec_b64 s[40:41], vcc")
    a("s_cbranch_execz F1_end")
    for p in range(16): a(f"ds_read_b32 v{16+p}, v5 offset:{16384+128*p}")
    a("s_waitcnt lgkmcnt(0)")
    for st in (8,4,2,1):
        for p in range(st): a(f"v_add_f32 v{16+p}, v{16+p}, v{16+p+st}")
    rnd1(a, 16, 17)
    a("s_lshl_b32 s39, s42, 7"); a("v_add_u32 v5, s39, v5")
    a(f"buffer_store_dword v16, v5, s[32:35], 0 offen offset:{WS_MOD} sc1")
    a("s_sub_u32 s39, s42, 14"); a("s_cmp_lt_u32 s39, 14"); a("s_cselect_b32 s28, 1.0, 0")
    a("s_sub_u32 s39, s42, 56"); a("s_cmp_lt_u32 s39, 14"); a("s_cselect_b32 s28, 1.0, s28")
    a("v_add_f32 v18, s28, v16"); a("v_cvt_pk_bf16_f32 v18, v18, v18")
    a("v_lshrrev_b32 v6, 1, v5"); a(f"s_mov_b32 s39, {WS_MODB}")
    a("s_waitcnt vmcnt(0)")
    a("buffer_store_short v18, v6, s[32:35], s39 offen")
    a("s_cmp_ge_u32 s42, 28"); a("s_cbranch_scc1 F1_end")
    sig(a,'F1_end')
    a("s_endpgm")
    a.label('F1_cpf'); a.flush()
    a("s_getpc_b64 s[44:45]")
    a.label('F1_pcref')
    a("v_lshlrev_b32 v4, 6, v0"); a("v_add_u32 v6, 16384, v4")
    a("v_min_u32 v4, CODE_END-F1_pcref-4, v4"); a("v_min_u32 v6, CODE_END-F1_pcref-4, v6")
    a("v_mov_b32 v15, s45"); a("v_add_co_u32 v14, vcc, s44, v4"); a("v_addc_co_u32 v15, vcc, 0, v15, vcc")
    a("v_mov_b32 v17, s45"); a("v_add_co_u32 v16, vcc, s44, v6"); a("v_addc_co_u32 v17, vcc, 0, v17, vcc")
    a("global_load_dword v3, v[14:15], off"); a("global_load_dword v5, v[16:17], off")
    a("s_endpgm")
    a.label('F1_conv'); a.flush()
    conv_role(a)
    a.label('F1_end'); a("s_endpgm")

def conv_mfma(a,AA,BA,ACC2,BTS,NOLDS=False,NOMF=False,hook=None):
    bases=[BA,BA+1,BA+2,BA+3]
    ops=[]
    def issue(tag,text):
        if (not NOLDS) or (NOLDS is not True and NOLDS!=1 and tag[0] in NOLDS): a(text)
        ops.append(tag)
    pendq=[]
    real_issue=issue
    def defer(tag,text): pendq.append((tag,text))
    def drain(n=1):
        for _ in range(n):
            if pendq: real_issue(*pendq.pop(0))
    def wait(tags):
        idx=max(i for i,t in enumerate(ops) if t in tags)
        a(f"s_waitcnt lgkmcnt({min(len(ops)-1-idx,15)})")
    def bload(rr,m):
        k=7-m; bs=bases[k>>1]; off=(k&1)*128+16*rr; BT=BTS[rr]
        issue(('B',rr,m), f"ds_read2_b32 v[{BT+4*m}:{BT+4*m+1}], v{bs} offset0:{off} offset1:{off+1}")
        issue(('B',rr,m), f"ds_read2_b32 v[{BT+4*m+2}:{BT+4*m+3}], v{bs} offset0:{off+2} offset1:{off+3}")
    groups=[(rr,k) for rr in range(2) for k in range(4)]
    ATG=[28,44]
    def aload(gi):
        rr,k=groups[gi]; b=ATG[gi&1]
        for j,s_ in enumerate((k,7-k)):
            off=64*(8*s_+rr)
            issue(('A',gi,2*j), f"ds_read_b128 v[{b+8*j}:{b+8*j+3}], v{AA} offset:{C_KH+off}")
            issue(('A',gi,2*j+1), f"ds_read_b128 v[{b+8*j+4}:{b+8*j+7}], v{AA} offset:{C_KL+off}")
    issue(('A',0,0), f"ds_read_b128 v[{ATG[0]}:{ATG[0]+3}], v{AA} offset:{C_KH}")
    for m in range(8): bload(0,m)
    issue(('A',0,1), f"ds_read_b128 v[{ATG[0]+4}:{ATG[0]+7}], v{AA} offset:{C_KL}")
    issue(('A',0,2), f"ds_read_b128 v[{ATG[0]+8}:{ATG[0]+11}], v{AA} offset:{C_KH+64*56}")
    issue(('A',0,3), f"ds_read_b128 v[{ATG[0]+12}:{ATG[0]+15}], v{AA} offset:{C_KL+64*56}")
    last=[-99]*8; inited=[False]*8; slot=0; waited=set()
    remaining={c: sum(1 for (rr,k) in groups for s_ in (k,7-k) if c>=s_)*2 for c in range(8)}
    done_at={}; written=set()
    for gi,(rr,k) in enumerate(groups):
        drain(99)
        if gi==4 and hook: hook()
        issue=defer
        if gi+1<len(groups): aload(gi+1)
        if rr==0:
            for m in range(2*k,2*k+2): bload(1,m)
        for c in list(done_at):
            if c not in written and slot-done_at[c]>=0:
                issue(('W',c), f"ds_write_b128 v16, v[{ACC2+4*c}:{ACC2+4*c+3}] offset:{C_P+1024*c}"); written.add(c)
        b=ATG[gi&1]; BT=BTS[rr]
        todo=[(c,j,hl) for j,s_ in enumerate((k,7-k)) for hl in range(2) for c in range(s_,8)]
        while todo:
            if gi==0 and slot<8: pick=(slot,0,0)
            else:
                cnt={}
                for (c,j,hl) in todo: cnt[c]=cnt.get(c,0)+1
                pick=max(todo, key=lambda t:(min(slot-last[t[0]],3), cnt[t[0]], slot-last[t[0]], -t[1], -t[2]))
            todo.remove(pick); c,j,hl=pick
            s_=(k,7-k)[j]
            need={('A',gi,2*j+hl),('B',rr,c-s_)}-waited
            if need: wait(need);
            if need:
                idx=max(i for i,t in enumerate(ops) if t in need)
                waited|=set(ops[:idx+1])
            bt=BT+4*(c-s_); acc=ACC2+4*c; ar=b+8*j+4*hl
            cin = f"v[{acc}:{acc+3}]" if inited[c] else "0"
            if not NOMF: a(f"v_mfma_f32_16x16x32_bf16 v[{acc}:{acc+3}], v[{bt}:{bt+3}], v[{ar}:{ar+3}], {cin}")
            inited[c]=True; last[c]=slot; slot+=1
            if slot%2==0: drain(1)
            remaining[c]-=1
            if remaining[c]==0: done_at[c]=slot
    drain(99)
    return written,done_at

def conv_role(a):
    import kloop
    a("s_sub_u32 s38, s2, 156")
    a("s_setprio 1")
    a("s_cmp_lt_u32 s38, 256"); a("s_cbranch_scc1 F1_p1"); a("s_setprio 2")
    a.label('F1_p1')
    if CODEPF>=2:
        a("s_cmp_ge_u32 s38, 16"); a("s_cbranch_scc1 F1_cpf2")
        a("s_getpc_b64 s[46:47]")
        a.label('F1_pcref2')
        a("v_lshlrev_b32 v4, 6, v0"); a("v_mov_b32 v5, s47"); a("v_add_co_u32 v4, vcc, s46, v4"); a("v_addc_co_u32 v5, vcc, 0, v5, vcc")
        a(f"v_cmp_gt_u32 vcc, (k3_kernel-F1_pcref2)/64, v0"); a("s_and_saveexec_b64 s[48:49], vcc")
        a("s_cbranch_execz F1_cpf1")
        a("global_load_dword v153, v[4:5], off")
        a.label('F1_cpf1'); a("s_mov_b64 exec, -1")
        a.label('F1_cpf2'); a.flush()
    a("s_and_b32 s3, s38, 7"); a("s_mul_i32 s3, s3, 56"); a("s_lshr_b32 s39, s38, 3"); a("s_add_u32 s3, s3, s39")
    a(f"s_mov_b32 s40, {hx(L_HI)}"); a(f"s_mov_b32 s41, {hx(L_LO)}"); a(f"s_mov_b32 s42, {hx(LN2)}")
    a(f"s_mov_b32 s43, {hx(I2P_HI)}"); a(f"s_mov_b32 s44, {hx(I2P_LO)}")
    a("s_lshl_b32 s36, s3, 9"); a("s_lshl_b32 s37, s3, 1")
    a("v_lshlrev_b32 v1, 1, v0"); a("v_mov_b32 v2, s37")
    for (d,nm) in ((28,'log_dt'),(32,'ws'),(60,'dbg'),(48,'A_re'),(52,'A_re'),(56,'A_re')):
        a(f"s_mov_b32 s{d+2}, {SZ[nm]}"); a(f"s_mov_b32 s{d+3}, 0x20000")
    a("s_waitcnt lgkmcnt(0)"); stamp(a,1)
    a("s_mov_b64 s[28:29], s[18:19]"); a("s_mov_b64 s[32:33], s[26:27]"); a("s_mov_b64 s[60:61], s[24:25]")
    a("buffer_load_ushort v3, v2, s[28:31], 0 offen")
    for i in range(6):
        d=48+4*(i%3)
        a(f"s_mov_b64 s[{d}:{d+1}], s[{6+2*i}:{7+2*i}]")
        a(f"buffer_load_ushort v{4+i}, v1, s[{d}:{d+3}], s36 offen")
    a("v_and_b32 v10, 63, v0"); a("v_and_b32 v11, 15, v0"); a("v_bfe_u32 v12, v0, 4, 2"); a("v_lshrrev_b32 v13, 6, v0")
    a("v_mov_b32 v14, v11")
    a("v_lshlrev_b32 v15, 1, v11"); a("v_add_u32 v15, 240, v15")
    a("v_cmp_le_u32_e64 s[46:47], 8, v11"); a("v_cmp_le_u32_e64 s[48:49], 12, v11"); a("v_cmp_le_u32_e64 s[50:51], 14, v11")
    a("v_lshlrev_b32 v20, 2, v11"); a("v_add_u32 v21, 464, v20"); a("v_add_u32 v20, 712, v20")
    a("v_cndmask_b32_e64 v14, v14, v15, s[46:47]"); a("v_cndmask_b32_e64 v14, v14, v21, s[48:49]"); a("v_cndmask_b32_e64 v14, v14, v20, s[50:51]")
    a("v_cvt_f32_u32 v16, v14"); a("v_sub_f32 v17, 0, v16")
    a("v_lshlrev_b32 v15, 3, v11"); a("v_cvt_f32_u32 v18, v15"); a("v_mov_b32 v19, v18")
    ACC=112; SA=154
    a(f"v_mul_u32_u24 v2, {TABN*4}, v13")
    a("v_cmp_le_u32_e64 s[46:47], 2, v12"); a("v_cmp_eq_u32_e64 s[48:49], 3, v12")
    a("v_add_u32 v20, -1, v12"); a("v_max_i32 v20, 0, v20"); a("v_sub_u32 v21, 3, v20")
    a("v_lshlrev_b32 v22, v21, v11")
    a("v_lshlrev_b32 v23, 2, v12"); a("v_lshlrev_b32 v24, 7, v12"); a("v_cndmask_b32_e64 v23, v23, v24, s[46:47]")
    a("v_add_u32 v22, v22, v23"); a(f"v_lshl_add_u32 v{SA}, v22, 2, v2")
    a(f"v_add_u32 v24, 248, v{SA}"); a(f"v_cndmask_b32_e64 v{SA+1}, v{SA}, v24, s[48:49]")
    a("v_mov_b32 v25, 64"); a("v_lshlrev_b32 v24, v21, v25")
    a(f"v_add_u32 v{SA+2}, v{SA}, v24"); a(f"v_add_u32 v{SA+3}, v{SA+1}, v24")
    a("v_lshl_add_u32 v22, v12, 6, v11"); a(f"v_lshl_add_u32 v{SA+4}, v22, 2, v2")
    scat=[]
    for C in range(2):
        for r in range(4): scat.append((SA+2*C+(r>>1), 4*r, ACC+4*C+r))
    a("v_lshlrev_b32 v159, 6, v13"); a("v_lshl_add_u32 v159, v12, 2, v159")
    a("v_min_u32 v24, 9, v11"); a("v_lshlrev_b32 v15, 10, v24"); a("v_lshl_add_u32 v15, v159, 2, v15")
    a(f"v_add_u32 v15, {kloop.T2}, v15")
    a("v_lshlrev_b32 v159, 5, v159")
    for i in range(16): a(f"v_mov_b32 v{ACC+i}, 0")
    a("s_waitcnt vmcnt(6)")
    a("v_lshlrev_b32 v3, 16, v3")
    exp_acc(a, 40, 3, 41, 42, 40, 41, 42)
    rnd1(a, 40, 41)
    a("s_waitcnt vmcnt(0)"); stamp(a,2)
    for i in range(6): a(f"v_lshlrev_b32 v{4+i}, 16, v{4+i}")
    a("v_mul_f32 v4, v40, v4"); a("v_mul_f32 v5, v40, v5"); a("v_mul_f32 v6, v40, v6"); a("v_mul_f32 v7, v40, v7")
    a("v_mul_f32 v24, s40, v4")
    a("v_mul_f32 v25, s43, v5"); a("v_and_b32 v25, 0xffffff00, v25")
    a("v_fma_f32 v26, v5, s43, -v25"); a("v_fma_f32 v26, v5, s44, v26")
    cmul(a, 28, 8, 6, 36)
    a("v_sub_f32 v29, 0, v29")
    ds=[(30,128,+1,48),(32,1024,-1,56),(34,256,-1,64)]
    for (dst,l,sg,T) in ds: a(f"v_mov_b32 v{T}, {hx(float(l))}"); a(f"v_mov_b32 v{T+1}, {hx(float(sg*l))}")
    for (dst,l,sg,T) in ds: a(f"v_pk_mul_f32 v[{T+4}:{T+5}], v[24:25], v[{T}:{T+1}]")
    for (dst,l,sg,T) in ds: a(f"v_exp_f32 v{T+2}, v{T+4}")
    for (dst,l,sg,T) in ds: a(f"v_fract_f32 v{T+5}, v{T+5}")
    for (dst,l,sg,T) in ds: a(f"v_fma_f32 v{T+5}, v26, v{T+1}, v{T+5}")
    for (dst,l,sg,T) in ds: a(f"v_cos_f32 v{T+4}, v{T+5}"); a(f"v_sin_f32 v{T+5}, v{T+5}")
    for (dst,l,sg,T) in ds: a(f"v_pk_mul_f32 v[{dst}:{dst+1}], v[{T+4}:{T+5}], v[{T+2}:{T+3}] op_sel:[0,0] op_sel_hi:[1,0]")
    a("v_lshlrev_b32 v1, 5, v0")
    a(f"ds_write_b128 v1, v[24:27] offset:{REC}"); a(f"ds_write_b128 v1, v[28:31] offset:{REC+16}")
    cmul(a, 72, 32, 28, 36); cmul(a, 74, 72, 34, 36); cmul(a, 76, 74, 34, 36); cmul(a, 78, 76, 34, 36); cmul(a, 80, 78, 34, 36)
    a("v_lshlrev_b32 v1, 2, v0")
    for sidx in range(5):
        x=72+2*sidx; h=84+2*sidx; T=48+2*sidx
        a(f"v_cvt_pk_bf16_f32 v{h}, v{x}, v{x+1}")
        a(f"v_lshlrev_b32 v{T}, 16, v{h}"); a(f"v_and_b32 v{T+1}, 0xffff0000, v{h}")
        a(f"v_pk_add_f32 v[{T}:{T+1}], v[{x}:{x+1}], v[{T}:{T+1}] neg_lo:[0,1] neg_hi:[0,1]")
        a(f"v_cvt_pk_bf16_f32 v{h+1}, v{T}, v{T+1}")
        rh = 2*sidx; rl = 2*sidx+1
        a(f"ds_write_b32 v1, v{h} offset:{kloop.T2+1024*rh}"); a(f"ds_write_b32 v1, v{h+1} offset:{kloop.T2+1024*rl}")
    a("v_mov_b32 v1, v159")
    a("v_mov_b32 v3, 128")
    stamp(a,3)
    a("s_waitcnt lgkmcnt(0)")
    kloop.v3(a, 4, standalone=False, hook=lambda: a("buffer_load_dword v4, v3, s[60:63], 0 offen sc1"))
    stamp(a,4)
    a(f"s_setprio {PREPPRIO}")
    srd_load(a,4,'w_gate'); srd_load(a,8,'w_up'); srd_load(a,16,'w_down')
    a("v_lshrrev_b32 v5, 1, v0"); a("v_mul_u32_u24 v5, 14336, v5"); a("v_and_b32 v6, 1, v0"); a("v_lshl_add_u32 v5, v6, 4, v5")
    a("s_lshl_b32 s12, s3, 5"); a(f"s_add_u32 s12, s12, {WS_NB}")
    a("s_lshl_b32 s14, s3, 2"); a("v_mov_b32 v7, s14")
    a("v_lshlrev_b32 v6, 4, v0")
    a("v_readfirstlane_b32 s48, v13")
    def nloads():
        a("buffer_load_dwordx4 v[80:83], v5, s[32:35], s12 offen sc1")
        a(f"buffer_load_dword v9, v7, s[32:35], 0 offen offset:{WS_MOD} sc1")
        a(f"buffer_load_dword v14, v7, s[32:35], 0 offen offset:{WS_MOD+1792} sc1")
    a("s_waitcnt vmcnt(0)")
    a("v_readfirstlane_b32 s13, v4")
    a("s_cmp_eq_u32 s13, 0"); a("s_cbranch_scc1 F1_notyet")
    nloads()
    a.label('F1_notyet'); a.flush(); stamp(a,5)
    for i in range(4): a(f"v_mov_b32 v{140+i}, 0")
    for (sa,off,src) in scat: a(f"ds_write_b32 v{sa}, v{src} offset:{TAB+off}")
    for C in range(2):
        for j in range(2): a(f"v_add_f32 v{144+2*C+j}, v{ACC+8+4*C+2*j}, v{ACC+9+4*C+2*j}")
    a("s_mov_b32 exec_hi, 1")
    a(f"ds_write_b32 v{SA+4}, v144 offset:{TAB+4*512}")
    a("s_mov_b32 exec_hi, 0")
    a(f"ds_write_b32 v{SA+4}, v145 offset:{TAB+4*(512+32)}")
    a(f"ds_write_b32 v{SA+4}, v146 offset:{TAB+4*(512+16)}")
    a(f"ds_write_b32 v{SA+4}, v147 offset:{TAB+4*(512+48)}")
    a("s_mov_b64 exec, -1")
    a("v_cmp_gt_u32 vcc, 30, v0"); a("s_and_saveexec_b64 s[46:47], vcc")
    a(f"ds_write_b128 v6, v[140:143] offset:{C_KH}"); a(f"ds_write_b128 v6, v[140:143] offset:{C_KL}")
    a("v_cmp_gt_u32 vcc, 2, v0"); a("s_and_b64 exec, exec, vcc")
    a(f"ds_write_b128 v6, v[140:143] offset:{C_H0+4096}"); a(f"ds_write_b128 v6, v[140:143] offset:{C_H1+4100}")
    a("s_mov_b64 exec, s[46:47]")
    AA=20; BA=21
    a(f"v_lshlrev_b32 v{AA}, 5, v11"); a(f"v_lshl_add_u32 v{AA}, v12, 4, v{AA}"); a(f"v_lshl_add_u32 v{AA}, v13, 7, v{AA}")
    a(f"v_and_b32 v{BA}, 14, v11"); a(f"v_lshlrev_b32 v{BA}, 1, v{BA}")
    a("v_lshlrev_b32 v16, 4, v12"); a(f"v_sub_u32 v{BA}, v16, v{BA}")
    a("v_and_b32 v16, 1, v11"); a(f"v_mul_u32_u24 v16, {C_H1-C_H0}, v16")
    a(f"v_add_u32 v{BA}, v{BA}, v16"); a(f"v_add_u32 v{BA}, {C_H0+3616-512*7}, v{BA}"); a(f"v_lshl_add_u32 v{BA}, v13, 7, v{BA}")
    for q in range(1,4): a(f"v_add_u32 v{BA+q}, {1024*q}, v{BA}")
    a("v_sub_u32 v8, 4080, v6")
    a("s_waitcnt lgkmcnt(0)"); a("s_barrier"); stamp(a,6)
    W4=TABN; EB=28
    def rd2(dst, j, w): a(f"ds_read2_b32 v[{dst}:{dst+1}], v{EB+w} offset0:{j} offset1:{j+1}")
    a("s_cmp_eq_u32 s48, 0"); a("s_cbranch_scc1 F1_expA")
    a("s_cmp_eq_u32 s48, 1"); a("s_cbranch_scc1 F1_expB")
    a(f"v_lshlrev_b32 v{EB}, 2, v0"); a(f"v_add_u32 v{EB}, {TAB+384*4}, v{EB}")
    for w in range(1,4): a(f"v_add_u32 v{EB+w}, {W4*4*w}, v{EB}")
    for w in range(4): rd2(32+2*w, 0, w)
    a("v_and_b32 v16, 1, v0"); a("v_cmp_eq_u32 vcc, 1, v16")
    a("s_waitcnt lgkmcnt(0)")
    for j in range(2):
        a(f"v_add_f32 v{32+j}, v{32+j}, v{34+j}"); a(f"v_add_f32 v{36+j}, v{36+j}, v{38+j}")
    a("v_add_f32 v64, v32, v36"); a("v_add_f32 v69, v33, v37")
    a("v_cndmask_b32_e64 v68, v64, v69, vcc")
    a("v_mov_b32 v65, v64"); a("v_mov_b32 v66, v64"); a("v_mov_b32 v67, v64"); a("v_mov_b32 v70, v69"); a("v_mov_b32 v71, v69")
    a("s_branch F1_expD")
    a.label('F1_expB'); a.flush()
    a(f"v_lshlrev_b32 v{EB}, 3, v0"); a(f"v_add_u32 v{EB}, {TAB+256*4}, v{EB}")
    for w in range(1,4): a(f"v_add_u32 v{EB+w}, {W4*4*w}, v{EB}")
    for w in range(4): rd2(32+4*w, 0, w); rd2(34+4*w, 2, w)
    a("s_waitcnt lgkmcnt(0)")
    for j in range(3):
        a(f"v_add_f32 v{32+j}, v{32+j}, v{36+j}"); a(f"v_add_f32 v{40+j}, v{40+j}, v{44+j}")
    a("v_add_f32 v64, v32, v40"); a("v_add_f32 v67, v33, v41"); a("v_add_f32 v70, v34, v42")
    a("v_mov_b32 v65, v64"); a("v_mov_b32 v66, v64"); a("v_mov_b32 v68, v67"); a("v_mov_b32 v69, v67"); a("v_mov_b32 v71, v70")
    a("s_branch F1_expD")
    a.label('F1_expA'); a.flush()
    a(f"v_lshlrev_b32 v{EB}, 5, v0"); a("v_lshlrev_b32 v16, 4, v0"); a("v_add_u32 v16, 512, v16")
    a("v_cmp_gt_u32 vcc, 32, v0"); a(f"v_cndmask_b32_e64 v{EB}, v16, v{EB}, vcc"); a(f"v_add_u32 v{EB}, {TAB}, v{EB}")
    for w in range(1,4): a(f"v_add_u32 v{EB+w}, {W4*4*w}, v{EB}")
    for w in range(4):
        for j in range(0,8,2): rd2(32+8*w+j, j, w)
    a("s_waitcnt lgkmcnt(0)")
    for j in range(8):
        a(f"v_add_f32 v{32+j}, v{32+j}, v{40+j}"); a(f"v_add_f32 v{48+j}, v{48+j}, v{56+j}"); a(f"v_add_f32 v{32+j}, v{32+j}, v{48+j}")
    t1=[0,0,1,2,2,2,3,4]
    for e in range(8): a(f"v_cndmask_b32_e64 v{64+e}, v{32+t1[e]}, v{32+e}, vcc")
    a.label('F1_expD'); a.flush()
    for j in range(4):
        x=64+2*j
        a(f"v_cvt_pk_bf16_f32 v{72+j}, v{x}, v{x+1}")
        a(f"v_lshlrev_b32 v{32+2*j}, 16, v{72+j}"); a(f"v_and_b32 v{33+2*j}, 0xffff0000, v{72+j}")
        a(f"v_pk_add_f32 v[{32+2*j}:{33+2*j}], v[{x}:{x+1}], v[{32+2*j}:{33+2*j}] neg_lo:[0,1] neg_hi:[0,1]")
        a(f"v_cvt_pk_bf16_f32 v{76+j}, v{32+2*j}, v{33+2*j}")
    a(f"ds_write_b128 v6, v[72:75] offset:{C_KH+480}"); a(f"ds_write_b128 v6, v[76:79] offset:{C_KL+480}")
    a("s_cmp_lg_u32 s13, 0"); a("s_cbranch_scc1 F1_ready")
    a("s_setprio 0")
    a("s_mov_b32 s45, 0")
    a.label('F1_poll')
    a("buffer_load_dword v4, v3, s[60:63], 0 offen sc1")
    a("s_waitcnt vmcnt(0)")
    a("v_readfirstlane_b32 s13, v4")
    a("s_cmp_lg_u32 s13, 0"); a("s_cbranch_scc1 F1_got")
    a("s_add_u32 s45, s45, 1"); a("s_cmp_ge_u32 s45, 0x40000"); a("s_cbranch_scc1 F1_got")
    a("s_sleep 2")
    a("s_branch F1_poll")
    a.label('F1_got'); a.flush()
    a("s_setprio 2")
    nloads()
    a.label('F1_ready'); a.flush()
    a("s_waitcnt vmcnt(0)"); stamp(a,7)
    a("v_add_f32 v14, 1.0, v14"); rnd1(a, 14, 15)
    unpack8(a, 80, [48+e for e in range(8)])
    for e in range(0,8,2):
        h0,h1=48+e,49+e
        a(f"v_mul_f32 v{h0}, v{h0}, v14"); a(f"v_mul_f32 v{h1}, v{h1}, v14"); rnd2(a,h0,h1,15)
        a(f"v_add_f32 v{h0}, v{h0}, v9"); a(f"v_add_f32 v{h1}, v{h1}, v9")
    for j in range(4): a(f"v_cvt_pk_bf16_f32 v{60+j}, v{48+7-2*j}, v{48+6-2*j}")
    for j in range(1,4): a(f"v_cvt_pk_bf16_f32 v{64+j}, v{48+8-2*j}, v{48+7-2*j}")
    a(f"ds_write_b128 v8, v[60:63] offset:{C_H1+4}")
    a(f"ds_write_b16 v8, v60 offset:{C_H0+2}")
    a(f"ds_write_b32 v8, v65 offset:{C_H0+4}")
    a(f"ds_write_b64 v8, v[66:67] offset:{C_H0+8}")
    a(f"ds_write_b16_d16_hi v8, v63 offset:{C_H0+16}")
    a("v_bfe_u32 v16, v11, 1, 2"); a("v_xor_b32 v16, v16, v12"); a("v_lshlrev_b32 v16, 4, v16")
    a("v_lshl_add_u32 v16, v11, 6, v16"); a("v_lshl_add_u32 v16, v13, 13, v16")
    a("v_and_b32 v4, 1, v0"); a("v_lshlrev_b32 v4, 1, v4"); a("v_bfe_u32 v17, v0, 2, 2")
    a("v_xor_b32 v18, v4, v17"); a("v_xor_b32 v19, 1, v18")
    a("v_lshrrev_b32 v17, 1, v0"); a("v_lshlrev_b32 v17, 6, v17")
    a("v_lshl_add_u32 v18, v18, 4, v17"); a("v_lshl_add_u32 v19, v19, 4, v17")
    a("v_mul_u32_u24 v5, 7168, v0")
    a("s_lshl_b32 s12, s3, 4"); a(f"s_add_u32 s12, s12, {WS_YB}")
    ACC2=64; BTS=[96,128]; AT=[28,36,44]
    a("s_and_b32 s22, s2, 7"); a("s_lshr_b32 s23, s38, 3")
    a("v_lshrrev_b32 v4, 3, v10"); a("v_and_b32 v7, 7, v10"); a("v_lshlrev_b32 v7, 6, v7"); a("v_min_u32 v7, 444, v7")
    a("v_mul_u32_u24 v4, 3584, v4"); a("v_add_u32 v4, v4, v7")
    a("s_mul_i32 s24, s23, 28672"); a("s_mul_i32 s25, s22, 448"); a("s_add_u32 s24, s24, s25")
    a("s_mul_i32 s26, s22, 224"); a("s_lshl_b32 s25, s23, 2"); a("s_add_u32 s26, s26, s25"); a("s_mul_i32 s26, s26, 896")
    a("v_lshlrev_b32 v7, 6, v10"); a("v_min_u32 v7, 3520, v7")
    def pfhook():
        a("s_cmp_eq_u32 s48, 0"); a("s_cbranch_scc0 F1_pf1")
        a("buffer_load_dword v3, v4, s[4:7], s24 offen")
        a.label('F1_pf1')
        a("s_cmp_eq_u32 s48, 1"); a("s_cbranch_scc0 F1_pf2")
        a("buffer_load_dword v3, v4, s[8:11], s24 offen")
        a.label('F1_pf2')
        a("s_cmp_eq_u32 s48, 2"); a("s_cbranch_scc0 F1_pf3")
        a("buffer_load_dword v3, v7, s[16:19], s26 offen")
        a.label('F1_pf3')
    a("s_waitcnt lgkmcnt(0)"); a("s_barrier"); stamp(a,8)
    a("s_setprio 0")
    if PROF or DIAG: a("s_waitcnt lgkmcnt(0)")
    written,done_at=conv_mfma(a,AA,BA,ACC2,BTS,hook=pfhook)
    stamp(a,9)
    a("s_setprio 2")
    for c in sorted(set(range(8))-written, key=lambda c: done_at[c]):
        a(f"ds_write_b128 v16, v[{ACC2+4*c}:{ACC2+4*c+3}] offset:{C_P+1024*c}")
    a("s_waitcnt lgkmcnt(0)"); a("s_barrier"); stamp(a,10)
    for w in range(4):
        a(f"ds_read_b128 v[{64+8*w}:{67+8*w}], v18 offset:{C_P+8192*w}")
        a(f"ds_read_b128 v[{68+8*w}:{71+8*w}], v19 offset:{C_P+8192*w}")
    a("s_waitcnt lgkmcnt(0)")
    for e in range(8):
        a(f"v_add_f32 v{64+e}, v{64+e}, v{72+e}"); a(f"v_add_f32 v{80+e}, v{80+e}, v{88+e}"); a(f"v_add_f32 v{64+e}, v{64+e}, v{80+e}")
    for e in range(0,8,2): a(f"v_cvt_pk_bf16_f32 v{20+e//2}, v{64+e}, v{65+e}")
    a("buffer_store_dwordx4 v[20:23], v5, s[32:35], s12 offen"+STF[0])
    prof_end(a,0,11,32)

L3_C=7168
def k3(a):
    a.label('k3_kernel'); a.flush(); stamp(a,0)
    a("s_cmp_ge_u32 s2, 256"); a("s_cbranch_scc1 L3_end")
    srd_load(a,4,'ws'); srd_load(a,8,'w_r'); srd_load(a,12,'out'); srd_load(a,36,'A_u'); srd_load(a,40,'Dskip')
    srd_load(a,44,'w_gate'); srd_load(a,48,'w_up'); srd_load(a,52,'w_down')
    a("v_and_b32 v1, 63, v0"); a("v_lshrrev_b32 v2, 6, v0")
    a("v_lshlrev_b32 v3, 5, v0")
    a("s_mul_i32 s16, s2, 7168"); a(f"s_add_u32 s17, s16, {WS_YB}")
    a("v_lshlrev_b32 v5, 4, v1")
    for i in range(36): a(f"v_mov_b32 v{88+i}, 0")
    a("v_readfirstlane_b32 s18, v2")
    a("v_mul_u32_u24 v6, 896, v2"); a("v_add_u32 v6, v6, v5")
    a("v_lshlrev_b32 v7, 3, v2"); a("s_lshl_b32 s19, s2, 6"); a(f"s_add_u32 s19, s19, {WS_ST}")
    a("s_mov_b32 s30, 0x05040100"); a("s_mov_b32 s31, 0x07060302")
    a("v_cmp_gt_u32 vcc, 224, v0")
    a("s_waitcnt lgkmcnt(0)"); stamp(a,1)
    a("s_cmp_ge_u32 s18, 4"); a("s_cbranch_scc1 L3_cw")
    a("s_and_saveexec_b64 s[20:21], vcc")
    a("buffer_load_dwordx4 v[8:11], v3, s[4:7], s17 offen")
    a("buffer_load_dwordx4 v[12:15], v3, s[4:7], s17 offen offset:16")
    a("s_mov_b64 exec, s[20:21]")
    a("buffer_load_dwordx2 v[124:125], v7, s[4:7], s19 offen")
    a("s_mov_b32 exec_hi, 0x00ffffff")
    a("buffer_load_dwordx4 v[120:123], v6, s[36:39], s16 offen")
    a("s_mov_b32 exec_hi, -1")
    a("v_lshlrev_b32 v3, 2, v0")
    a("s_waitcnt vmcnt(2)"); stamp(a,2)
    a("s_and_saveexec_b64 s[20:21], vcc")
    for j in range(4):
        a(f"v_perm_b32 v{16+2*j}, v{12+j}, v{8+j}, s30"); a(f"v_perm_b32 v{17+2*j}, v{12+j}, v{8+j}, s31")
    for j in range(8): a(f"ds_write_b32 v3, v{16+j} offset:{896*j}")
    a("s_mov_b64 exec, s[20:21]")
    a("s_branch L3_join")
    a.label('L3_cw'); a.flush()
    a("s_sub_u32 s22, s18, 4"); a("s_mul_i32 s22, s22, 1792"); a(f"s_add_u32 s23, s22, {L3_C}"); a("s_mov_b32 m0, s23")
    a(f"s_add_u32 s22, s22, {WS_MODB}")
    a("s_mov_b32 exec_hi, 0x00ffffff")
    a("s_cmp_eq_u32 s18, 7"); a("s_cbranch_scc1 L3_cw7")
    a("buffer_load_dwordx4 v5, s[4:7], s22 offen lds")
    a("buffer_load_dwordx4 v5, s[4:7], s22 offen offset:896 lds")
    a("s_branch L3_cw8")
    a.label('L3_cw7'); a.flush()
    a("buffer_load_dwordx4 v5, s[40:43], 0 offen lds")
    a("s_add_u32 s23, s23, 896"); a("s_mov_b32 m0, s23")
    a("buffer_load_dwordx4 v5, s[8:11], 0 offen lds")
    a.label('L3_cw8'); a.flush()
    a("buffer_load_dwordx4 v[120:123], v6, s[36:39], s16 offen")
    a("s_mov_b32 exec_hi, -1")
    a("buffer_load_dwordx2 v[124:125], v7, s[4:7], s19 offen")
    if PREFETCH==2:
        a("s_and_b32 s33, s2, 7"); a("s_lshr_b32 s34, s2, 3")
        a("v_subrev_u32 v16, 256, v0")
        a("v_subrev_u32 v17, 112, v16"); a("v_cmp_gt_u32 vcc, 112, v16"); a("s_mov_b64 s[56:57], vcc"); a("v_cndmask_b32_e64 v17, v17, v16, vcc")
        a("v_lshrrev_b32 v18, 3, v17"); a("v_and_b32 v19, 7, v17"); a("v_lshlrev_b32 v19, 6, v19"); a("v_min_u32 v19, 444, v19")
        a("v_mul_u32_u24 v18, 3584, v18"); a("v_add_u32 v18, v18, v19")
        a("s_mul_i32 s35, s34, 50176"); a("s_mul_i32 s58, s33, 448"); a("s_add_u32 s35, s35, s58")
        a("s_mul_i32 s58, s33, 224"); a("s_mul_i32 s59, s34, 7"); a("s_add_u32 s58, s58, s59"); a("s_mul_i32 s58, s58, 896")
        a("v_lshlrev_b32 v19, 6, v16")
        a("v_cmp_gt_u32 vcc, 224, v16"); a("s_mov_b64 s[60:61], vcc"); a("v_cmp_gt_u32 vcc, 98, v16"); a("s_mov_b64 s[62:63], vcc")
        a("s_waitcnt vmcnt(0)")
        a("s_andn2_b64 s[60:61], s[60:61], s[56:57]")
        a("s_mov_b64 exec, s[56:57]"); a("buffer_load_dword v127, v18, s[44:47], s35 offen")
        a("s_mov_b64 exec, s[60:61]"); a("buffer_load_dword v127, v18, s[48:51], s35 offen")
        a("s_mov_b64 exec, s[62:63]"); a("buffer_load_dword v127, v19, s[52:55], s58 offen")
        a("s_mov_b64 exec, -1")
        a("s_branch L3_join2")
    a.label('L3_join'); a.flush()
    a("s_waitcnt vmcnt(0)")
    a.label('L3_join2'); a.flush()
    X0=[24+e for e in range(8)]; H1=[32+e for e in range(8)]
    for i in range(4): a(f"v_mov_b32 v{8+i}, 0")
    unpack8(a, 120, X0)
    a("v_mov_b32 v126, v125")
    ln_norm(a, X0, H1, 124, None, 126, 48)
    a("s_waitcnt lgkmcnt(0)"); a("s_barrier"); stamp(a,3)
    a("s_mov_b32 exec_hi, 0x00ffffff")
    for k in (1,0,6): a(f"ds_read_b128 v[{88+4*k}:{91+4*k}], v5 offset:{L3_C+896*k}")
    a("ds_read_b128 v[8:11], v6")
    for k in (2,4,3,7,5): a(f"ds_read_b128 v[{88+4*k}:{91+4*k}], v5 offset:{L3_C+896*k}")
    a("s_mov_b32 exec_hi, -1")
    T=[64+e for e in range(8)]; T2_=[72+e for e in range(8)]; T3=[80+e for e in range(8)]
    a("s_waitcnt lgkmcnt(6)")
    unpack8(a, 92, T); unpack8(a, 88, T2_); unpack8(a, 112, T3)
    for e in range(0,8,2):
        h0,h1=H1[e],H1[e+1]
        pk(a,'mul',h0,h0,T[e]); rnd2(a,h0,h1,48)
        pk(a,'add',h0,h0,T2_[e]); rnd2(a,h0,h1,48)
        pk(a,'mul',h0,h0,T3[e]); rnd2(a,h0,h1,48)
    a("s_waitcnt lgkmcnt(4)")
    X=[[16+e for e in range(8)]]
    unpack8(a, 8, X[0]); unpack8(a, 96, T)
    for e in range(0,8,2):
        y0,y1=X[0][e],X[0][e+1]
        pk(a,'add',y0,y0,H1[e]); rnd2(a,y0,y1,48)
        pk(a,'mul',y0,y0,T[e]); rnd2(a,y0,y1,48)
        pk(a,'add',y0,y0,X0[e])
        a(f"v_cvt_pk_bf16_f32 v{8+e//2}, v{y0}, v{y1}")
        a(f"v_lshlrev_b32 v{y0}, 16, v{8+e//2}"); a(f"v_and_b32 v{y1}, 0xffff0000, v{8+e//2}")
    a("v_add_u32 v6, s16, v6")
    a(f"s_mov_b32 s17, {WS_X1}")
    a("s_mov_b32 exec_hi, 0x00ffffff")
    a("buffer_store_dwordx4 v[8:11], v6, s[4:7], s17 offen"+STF[1])
    a("s_mov_b32 exec_hi, -1")
    mean,sd,ri = ln_stats(a, X, 1, [32], 34, 28)
    H=[[48+e for e in range(8)]]
    ln_norm(a, X[0], H[0], mean[0], sd[0], ri[0], 46)
    stamp(a,4)
    a("s_waitcnt lgkmcnt(0)")
    unpack8(a, 104, T); unpack8(a, 100, T2_); unpack8(a, 116, T3)
    for e in range(0,8,2):
        h0,h1=H[0][e],H[0][e+1]
        pk(a,'mul',h0,h0,T[e]); rnd2(a,h0,h1,46)
        pk(a,'add',h0,h0,T2_[e])
        a(f"v_cvt_pk_bf16_f32 v{24+e//2}, v{h0}, v{h1}")
        a(f"v_lshlrev_b32 v{h0}, 16, v{24+e//2}"); a(f"v_and_b32 v{h1}, 0xffff0000, v{24+e//2}")
        if e==0: pk(a,'mul',32,h0,T3[e])
        else: pk(a,'fma',32,h0,T3[e],32)
    a("v_add_f32 v32, v32, v33")
    a(f"s_mov_b32 s17, {WS_H2}")
    a("s_mov_b32 exec_hi, 0x00ffffff")
    a("buffer_store_dwordx4 v[24:27], v6, s[4:7], s17 offen"+STF[1])
    a("s_mov_b32 exec_hi, -1")
    unpack8(a, 108, T)
    wave_red(a,[32])
    for e in range(0,8,2):
        h0,h1=H[0][e],H[0][e+1]
        pk(a,'mul',h0,h0,T[e]); rnd2(a,h0,h1,46)
        pk(a,'add',h0,h0,X[0][e])
        a(f"v_cvt_pk_bf16_f32 v{28+e//2}, v{h0}, v{h1}")
    a("v_cvt_pk_bf16_f32 v34, v32, v32")
    a("s_lshl_b32 s16, s2, 3"); a("v_add_u32 v35, s16, v2")
    a("v_and_b32 v36, 0xffff, v34")
    a("v_bfe_i32 v37, v36, 15, 1"); a("v_or_b32 v37, 0x8000, v37"); a("v_xor_b32 v36, v36, v37")
    a("v_sub_u32 v38, 2047, v35"); a("v_lshl_or_b32 v40, v36, 16, v38")
    a("v_lshlrev_b32 v35, 2, v35")
    a("s_mov_b32 exec_hi, 0x00ffffff")
    a("buffer_store_dwordx4 v[28:31], v6, s[12:15], 0 offen"+STF[1])
    a("s_mov_b32 exec_lo, 0"); a("s_mov_b32 exec_hi, 0x80000000")
    a(f"s_mov_b32 s17, {WS_R}")
    a("buffer_store_dword v40, v35, s[4:7], s17 offen")
    prof_end(a,1,5,4)
    a.label('L3_end'); a("s_endpgm")

def topk(a, K0, lds_off, TK):
    K=[K0+i for i in range(8)]
    free=K0+8
    net=[(0,1),(2,3),(4,5),(6,7),(0,2),(1,3),(4,6),(5,7),(1,2),(5,6),(0,4),(3,7),(1,5),(2,6),(1,4),(3,6),(2,4),(3,5),(3,4)]
    for (i,j) in net:
        a(f"v_max_u32 v{free}, v{K[i]}, v{K[j]}"); a(f"v_min_u32 v{K[j]}, v{K[i]}, v{K[j]}")
        K[i],free = free,K[i]
    T=K0+9
    pend=[]
    def fill(n=2):
        for _ in range(n):
            if pend: a(pend.pop(0))
    for rnd in range(8):
        zero=' bound_ctrl:0'
        fill()
        a(f"v_max_u32_dpp v{T}, v{K[0]}, v{K[0]} row_shr:1 row_mask:0xf bank_mask:0xf{zero}")
        for sh in (2,4,8):
            fill(); a(f"v_max_u32_dpp v{T}, v{T}, v{T} row_shr:{sh} row_mask:0xf bank_mask:0xf{zero}")
        fill(); a(f"v_max_u32_dpp v{T}, v{T}, v{T} row_bcast:15 row_mask:0xa bank_mask:0xf")
        fill(); a(f"v_max_u32_dpp v{T}, v{T}, v{T} row_bcast:31 row_mask:0xc bank_mask:0xf")
        assert not pend
        a(f"v_readlane_b32 s{TK+rnd}, v{T}, 63")
        if rnd<7:
            a(f"v_cmp_eq_u32_e64 s[20:21], s{TK+rnd}, v{K[0]}")
            a(f"v_cndmask_b32_e64 v{K[0]}, v{K[0]}, v{K[1]}, s[20:21]")
            for i in range(1,7-rnd): pend.append(f"v_cndmask_b32_e64 v{K[i]}, v{K[i]}, v{K[i+1]}, s[20:21]")
    Q=K0+12
    for i in range(8): a(f"v_mov_b32 v{Q+i}, s{TK+i}")
    a(f"v_lshlrev_b32 v{T}, 5, v2")
    a("v_cmp_eq_u32 vcc, 0, v1"); a("s_and_saveexec_b64 s[20:21], vcc")
    a(f"ds_write_b128 v{T}, v[{Q}:{Q+3}] offset:{lds_off}"); a(f"ds_write_b128 v{T}, v[{Q+4}:{Q+7}] offset:{lds_off+16}")
    a("s_mov_b64 exec, s[20:21]")
    a(f"v_and_b32 v{T}, 31, v1"); a(f"v_lshlrev_b32 v{T}, 2, v{T}")
    a(f"v_mov_b32 v{T+2}, 0")
    a("s_waitcnt lgkmcnt(0)"); a("s_barrier")
    a(f"ds_read_b32 v{T+1}, v{T} offset:{lds_off}")
    A0=K0+20
    for j in range(8): a(f"ds_read_b128 v[{A0+4*j}:{A0+4*j+3}], v{T+2} offset:{lds_off+16*j}")
    a("s_waitcnt lgkmcnt(0)")
    R=[K0,K0+1,K0+2,K0+3]
    for r in R: a(f"v_mov_b32 v{r}, 0")
    for j0 in range(0,32,4):
        for q in range(4): a(f"v_cmp_gt_u32_e64 s[{22+2*q}:{23+2*q}], v{A0+j0+q}, v{T+1}")
        for q in range(4): a(f"v_addc_co_u32_e64 v{R[q]}, s[{22+2*q}:{23+2*q}], 0, v{R[q]}, s[{22+2*q}:{23+2*q}]")
    a(f"v_add_u32 v{R[0]}, v{R[0]}, v{R[1]}"); a(f"v_add_u32 v{R[2]}, v{R[2]}, v{R[3]}"); a(f"v_add_u32 v{R[0]}, v{R[0]}, v{R[2]}")
    for r0 in range(0,8,4):
        for q in range(4): a(f"v_cmp_eq_u32_e64 s[{22+2*q}:{23+2*q}], {r0+q}, v{R[0]}")
        for q in range(4): a(f"s_ff1_i32_b32 s{22+2*q}, s{22+2*q}")
        for q in range(4): a(f"v_readlane_b32 s{TK+r0+q}, v{T+1}, s{22+2*q}")

L4_W=0; L4_WD=14336; L4_RED=L4_WD+7168; L4_TK=L4_RED+4096; L4_ACT=L4_TK+256; L4_LDS=L4_ACT+4*128
def k4(a):
    a.label('k4_kernel'); a.flush(); stamp(a,0)
    a("s_cmp_ge_u32 s2, 224"); a("s_cbranch_scc1 L4_end")
    srd_load(a,4,'ws'); srd_load(a,8,'w_gate'); srd_load(a,12,'w_up'); srd_load(a,48,'w_down')
    a(f"s_mov_b32 s30, {hx(L_HI)}"); a(f"s_mov_b32 s31, {hx(L_LO)}"); a(f"s_mov_b32 s32, {hx(LN2)}")
    a("v_and_b32 v1, 63, v0"); a("v_lshrrev_b32 v2, 6, v0")
    a("s_and_b32 s16, s2, 7"); a("s_mul_i32 s16, s16, 28"); a("s_lshr_b32 s17, s2, 3"); a("s_add_u32 s16, s16, s17")
    a("s_lshl_b32 s17, s16, 4")
    a("v_lshrrev_b32 v3, 1, v1"); a("v_lshl_add_u32 v3, v2, 5, v3"); a("v_mul_u32_u24 v3, 3584, v3"); a("v_add_u32 v3, s17, v3")
    a("v_readfirstlane_b32 s18, v2")
    a("v_lshlrev_b32 v4, 5, v0"); a("v_lshlrev_b32 v10, 4, v0")
    a(f"s_mov_b32 s19, {WS_R}")
    a("s_mul_i32 s33, s16, 7168")
    a("s_waitcnt lgkmcnt(0)"); stamp(a,1)
    a("s_cmp_ge_u32 s18, 4"); a("s_cbranch_scc0 L4_cmp")
    a("s_sub_u32 s18, s18, 4")
    a("v_subrev_u32 v3, 458752, v3")
    a("v_subrev_u32 v10, 4096, v10")
    a("s_lshl_b32 s22, s18, 10")
    a("s_mov_b32 s24, 0x55555555"); a("s_mov_b32 s25, 0x55555555"); a("s_mov_b32 s26, 0xaaaaaaaa"); a("s_mov_b32 s27, 0xaaaaaaaa")
    for it in range(3):
        a(f"s_add_u32 s23, s22, {L4_W+4096*it}"); a("s_mov_b32 m0, s23"); a(f"s_mov_b32 s28, {128*3584*it}")
        a("s_mov_b64 exec, s[24:25]"); a("buffer_load_dwordx4 v3, s[8:11], s28 offen lds")
        a("s_mov_b64 exec, s[26:27]"); a("buffer_load_dwordx4 v3, s[12:15], s28 offen lds")
    a("s_mov_b64 exec, -1")
    a("s_cmp_ge_u32 s18, 2"); a("s_cbranch_scc1 L4_alt")
    a(f"s_add_u32 s23, s22, {L4_W+4096*3}"); a("s_mov_b32 m0, s23"); a(f"s_mov_b32 s28, {128*3584*3}")
    a("s_mov_b64 exec, s[24:25]"); a("buffer_load_dwordx4 v3, s[8:11], s28 offen lds")
    a("s_mov_b64 exec, s[26:27]"); a("buffer_load_dwordx4 v3, s[12:15], s28 offen lds")
    a("s_mov_b64 exec, -1")
    a(f"s_add_u32 s23, s22, {L4_WD}"); a("s_mov_b32 m0, s23")
    a("buffer_load_dwordx4 v10, s[48:51], s33 offen lds")
    a("s_branch L4_dmadone")
    a.label('L4_alt'); a.flush()
    a(f"s_add_u32 s23, s22, {L4_WD}"); a("s_mov_b32 m0, s23")
    a("buffer_load_dwordx4 v10, s[48:51], s33 offen lds")
    a("buffer_load_dwordx4 v10, s[48:51], s33 offen offset:2048 lds")
    a("s_cmp_eq_u32 s18, 2"); a("s_cselect_b32 s28, 2048, 0"); a("s_add_u32 s23, s23, s28"); a("s_mov_b32 m0, s23"); a("s_add_u32 s28, s28, s33")
    a("buffer_load_dwordx4 v10, s[48:51], s28 offen offset:2048 lds")
    a.label('L4_dmadone'); a.flush()
    a("s_barrier")
    a("s_waitcnt vmcnt(0)")
    a("s_barrier")
    a("s_endpgm")
    a.label('L4_cmp'); a.flush()
    a("buffer_load_dwordx4 v[16:19], v4, s[4:7], s19 offen"); a("buffer_load_dwordx4 v[20:23], v4, s[4:7], s19 offen offset:16")
    a("s_waitcnt vmcnt(0)"); stamp(a,2)
    TK=40
    topk(a, 16, L4_TK, TK)
    stamp(a,3)
    a("v_and_b32 v5, 7, v1"); a("v_mov_b32 v6, 0")
    for i in range(8):
        a(f"s_and_b32 s20, s{TK+i}, 0xffff"); a("s_sub_u32 s20, 2047, s20"); a("s_mul_i32 s20, s20, 896")
        a(f"v_cmp_eq_u32_e64 s[34:35], {i}, v5"); a("v_mov_b32 v7, s20"); a("v_cndmask_b32_e64 v6, v6, v7, s[34:35]")
    a("v_lshrrev_b32 v7, 4, v1"); a("v_lshl_add_u32 v6, v7, 4, v6"); a("v_lshl_add_u32 v6, v2, 6, v6")
    a(f"s_mov_b32 s19, {WS_H2}")
    for it in range(4): a(f"buffer_load_dwordx4 v[{16+4*it}:{19+4*it}], v6, s[4:7], s19 offen offset:{256*it}")
    a("s_cmp_lg_u32 s2, 0"); a("s_cbranch_scc1 L4_nokeys")
    for i in range(8): a(f"v_mov_b32 v{64+i}, s{TK+i}")
    a("v_mov_b32 v72, 0"); a(f"s_mov_b32 s19, {WS_IDX}")
    a("v_cmp_eq_u32 vcc, 0, v0"); a("s_and_saveexec_b64 s[20:21], vcc")
    a("buffer_store_dwordx4 v[64:67], v72, s[4:7], s19 offen"); a("buffer_store_dwordx4 v[68:71], v72, s[4:7], s19 offen offset:16")
    a("s_mov_b64 exec, s[20:21]")
    a.label('L4_nokeys'); a.flush(); a.nop(2)
    a("v_and_b32 v8, 3, v1"); a("v_bfe_u32 v9, v1, 2, 2"); a("v_lshl_add_u32 v9, v7, 3, v9")
    a("v_lshlrev_b32 v9, 5, v9"); a("v_lshl_add_u32 v9, v8, 3, v9"); a("v_lshl_add_u32 v9, v2, 10, v9")
    for i in range(4): a(f"v_mov_b32 v{60+i}, 0")
    a("v_and_b32 v11, 1, v7"); a("v_bfe_u32 v12, v1, 2, 2"); a("v_lshl_add_u32 v11, v11, 2, v12"); a("v_mul_u32_u24 v11, 896, v11")
    a("v_lshl_add_u32 v11, v8, 3, v11"); a("v_mul_u32_u24 v12, 224, v2"); a("v_add_u32 v11, v11, v12")
    a("s_barrier")
    for it in range(4):
        a(f"ds_read_b64_tr_b16 v[{32+4*it}:{33+4*it}], v9 offset:{L4_W+4096*it}")
        a(f"ds_read_b64_tr_b16 v[{34+4*it}:{35+4*it}], v9 offset:{L4_W+4096*it+128}")
    a("s_waitcnt vmcnt(0)"); stamp(a,4)
    for it in range(4):
        if it==3:
            a("s_cmp_ge_u32 s18, 2"); a("s_cbranch_scc1 L4_mmdone")
        a(f"s_waitcnt lgkmcnt({6-2*it})" if not (PROF or DIAG) else "s_waitcnt lgkmcnt(0)")
        a(f"v_mfma_f32_16x16x32_bf16 v[60:63], v[{32+4*it}:{35+4*it}], v[{16+4*it}:{19+4*it}], v[60:63]")
    a.label('L4_mmdone'); a.flush()
    for dt in range(7): a(f"ds_read_b64_tr_b16 v[{76+2*dt}:{77+2*dt}], v11 offset:{L4_WD+32*dt}")
    a("v_lshlrev_b32 v13, 4, v1")
    a(f"ds_write_b128 v10, v[60:63] offset:{L4_RED}")
    a("v_and_b32 v5, 15, v1")
    a("v_mul_u32_u24 v15, 28, v5"); a("v_mul_u32_u24 v12, 7, v2"); a("v_add_u32 v15, v15, v12"); a("v_mul_u32_u24 v15, 14336, v15")
    a("v_lshl_add_u32 v15, v7, 4, v15")
    a("s_lshl_b32 s19, s16, 6"); a(f"s_add_u32 s19, s19, {WS_P}")
    a("v_mov_b32 v30, 0"); a("v_mov_b32 v31, 0")
    a("s_waitcnt lgkmcnt(0)"); a("s_barrier"); stamp(a,5)
    for w in range(4): a(f"ds_read_b128 v[{16+4*w if w<3 else 32}:{19+4*w if w<3 else 35}], v13 offset:{L4_RED+1024*w}")
    a("s_waitcnt lgkmcnt(0)")
    pk(a,'add',16,16,20); pk(a,'add',18,18,22); pk(a,'add',24,24,32); pk(a,'add',26,26,34); pk(a,'add',16,16,24); pk(a,'add',18,18,26)
    rnd2(a,16,17,36); rnd2(a,18,19,37)
    for r in range(4): a(f"v_max_f32 v{44+r}, {hx(-87.0)}, v{16+r}")
    for r in range(4): a(f"v_min_f32 v{44+r}, {hx(87.0)}, v{44+r}")
    for r in range(4): a(f"v_mul_f32 v{64+r}, s30, v{44+r}")
    for r in range(4): a(f"v_mov_b32 v{40+r}, v{16+r}")
    for r in range(4): a(f"v_fma_f32 v{68+r}, v{44+r}, s30, -v{64+r}")
    for r in range(4): a(f"v_exp_f32_e64 v{64+r}, -v{64+r}")
    for r in range(4): a(f"v_fma_f32 v{68+r}, v{44+r}, s31, v{68+r}")
    for r in range(4): a(f"v_permlane32_swap_b32 v{40+r}, v{24+r}")
    for r in range(4): a(f"v_mul_f32 v{68+r}, s32, v{68+r}")
    for r in range(4): a(f"v_fma_f32 v{64+r}, v{64+r}, -v{68+r}, v{64+r}")
    for r in range(4): a(f"v_add_f32 v{64+r}, 1.0, v{64+r}")
    for r in range(4): a(f"v_rcp_f32 v{68+r}, v{64+r}")
    for r in range(4): a(f"v_mul_f32 v{20+r}, v{16+r}, v{68+r}")
    for r in range(4): a(f"v_fma_f32 v{72+r}, -v{20+r}, v{64+r}, v{16+r}")
    for r in range(4): a(f"v_fma_f32 v{20+r}, v{72+r}, v{68+r}, v{20+r}")
    rnd2(a,20,21,36); rnd2(a,22,23,37)
    pk(a,'mul',20,20,24); pk(a,'mul',22,22,26)
    a("s_mov_b32 exec_lo, 0x00ff00ff"); a("s_mov_b32 exec_hi, 0")
    a("v_cvt_pk_bf16_f32 v30, v20, v21"); a("v_cvt_pk_bf16_f32 v31, v22, v23")
    if DEBUG_ACT:
        a("v_mul_u32_u24 v6, 3584, v5"); a("v_lshl_add_u32 v6, v7, 3, v6"); a("v_add_u32 v6, s17, v6")
        a(f"s_mov_b32 s21, {WS_ACT}")
        a("buffer_store_dwordx2 v[30:31], v6, s[4:7], s21 offen")
    a("s_mov_b64 exec, -1")
    for dt in range(7):
        a(f"v_mfma_f32_16x16x16_bf16 v[{32+4*dt}:{35+4*dt}], v[{76+2*dt}:{77+2*dt}], v[30:31], 0")
    a("s_mov_b32 exec_lo, 0x00ff00ff"); a("s_mov_b32 exec_hi, 0x00ff00ff")
    for dt in range(7):
        a(f"buffer_store_dwordx4 v[{32+4*dt}:{35+4*dt}], v15, s[4:7], s19 offen"+STF[2])
        if dt<6: a(f"s_add_u32 s19, s19, 14336")
    prof_end(a,2,6,4)
    a.label('L4_end'); a("s_endpgm")

def k5(a):
    a.label('k5_kernel'); a.flush(); stamp(a,0)
    a("s_cmp_ge_u32 s2, 224"); a("s_cbranch_scc1 L5_end")
    srd_load(a,4,'ws'); srd_load(a,12,'out')
    a(f"s_mov_b32 s30, {hx(L_HI)}"); a(f"s_mov_b32 s31, {hx(L_LO)}"); a(f"s_mov_b32 s32, {hx(LN2)}")
    a("s_mul_hi_u32 s16, s2, 153391690"); a("s_mul_i32 s17, s16, 28"); a("s_sub_u32 s17, s2, s17")
    a("v_lshlrev_b32 v4, 4, v0")
    a("s_mul_i32 s19, s2, 14336"); a(f"s_add_u32 s19, s19, {WS_P}")
    a("s_lshl_b32 s20, s16, 2"); a(f"s_add_u32 s20, s20, {WS_IDX}")
    a("v_mov_b32 v5, 0"); a("v_mov_b32 v12, 0")
    for i in range(4): a(f"v_mov_b32 v{28+i}, 0")
    a("s_waitcnt lgkmcnt(0)"); stamp(a,1)
    a("buffer_load_dword v40, v5, s[4:7], s20 offen")
    for it in range(3):
        a(f"buffer_load_dwordx4 v[{16+4*it}:{19+4*it}], v4, s[4:7], s19 offen"); a("s_add_u32 s19, s19, 4096")
    a("v_cmp_gt_u32 vcc, 128, v0"); a("s_and_saveexec_b64 s[22:23], vcc")
    a("s_cbranch_execz L5_skip")
    a("buffer_load_dwordx4 v[28:31], v4, s[4:7], s19 offen")
    a.label('L5_skip'); a("s_mov_b64 exec, s[22:23]")
    a("v_and_b32 v6, 15, v0"); a("v_lshlrev_b32 v7, 2, v6")
    a("s_lshl_b32 s21, s17, 6"); a(f"s_add_u32 s21, s21, {WS_MOD+5*1792}")
    a("buffer_load_dword v41, v7, s[4:7], s21 offen")
    a("v_readfirstlane_b32 s24, v0")
    a("s_cmp_lg_u32 s24, 0"); a("s_cbranch_scc1 L5_nogather")
    a("s_waitcnt vmcnt(5)"); stamp(a,2)
    a("v_and_b32 v8, 0xffff, v40"); a("v_sub_u32 v8, 2047, v8")
    a("s_lshl_b32 s25, s17, 4"); a("v_add_u32 v9, s25, v6")
    a(f"s_mov_b32 s26, {WS_X1}"); a(f"s_mov_b32 s27, {WS_H2}")
    a("v_mul_u32_u24 v12, 896, v8"); a("v_lshl_add_u32 v12, v9, 1, v12")
    a("buffer_load_ushort v42, v12, s[4:7], s26 offen")
    a("buffer_load_ushort v43, v12, s[4:7], s27 offen")
    a("v_lshrrev_b32 v33, 16, v40"); a("v_bfe_i32 v34, v33, 15, 1")
    a("v_not_b32 v34, v34"); a("v_or_b32 v34, 0x8000, v34"); a("v_xor_b32 v33, v33, v34"); a("v_lshlrev_b32 v33, 16, v33")
    a(f"v_max_f32 v33, {hx(-87.0)}, v33"); a(f"v_min_f32 v33, {hx(87.0)}, v33")
    exp_acc(a, 34, 33, 35, 36, 30, 31, 32, neg=True)
    a("v_add_f32 v34, 1.0, v34"); a("v_rcp_f32 v35, v34"); a("v_mov_b32 v37, 1.0")
    div_acc(a, 44, 37, 34, 35, 36)
    rnd1(a,44,35)
    a("s_waitcnt vmcnt(3)")
    a("s_branch L5_sum")
    a.label('L5_nogather'); a.flush()
    a("s_waitcnt vmcnt(1)")
    a.label('L5_sum'); a.flush(); stamp(a,3)
    for i in range(4):
        a(f"v_add_f32 v{16+i}, v{16+i}, v{20+i}"); a(f"v_add_f32 v{24+i}, v{24+i}, v{28+i}"); a(f"v_add_f32 v{16+i}, v{16+i}, v{24+i}")
    for sh in (4,8):
        for i in range(4): a(f"v_add_f32_dpp v{16+i}, v{16+i}, v{16+i} row_ror:{sh} row_mask:0xf bank_mask:0xf")
    a("v_lshrrev_b32 v13, 4, v0"); a("v_lshlrev_b32 v13, 6, v13"); a("v_and_b32 v14, 3, v0"); a("v_lshl_add_u32 v13, v14, 4, v13")
    a("v_and_b32 v14, 12, v0"); a("v_cmp_eq_u32 vcc, 0, v14"); a("s_and_saveexec_b64 s[22:23], vcc")
    a("ds_write_b128 v13, v[16:19]")
    a("s_mov_b64 exec, s[22:23]")
    a("s_waitcnt lgkmcnt(0)"); a("s_barrier"); stamp(a,4)
    a("s_cmp_lg_u32 s24, 0"); a("s_cbranch_scc1 L5_end")
    for p in range(16): a(f"ds_read_b32 v{48+p}, v7 offset:{64*p}")
    a("s_waitcnt lgkmcnt(0) vmcnt(0)")
    for st in (8,4,2,1):
        for p in range(st): a(f"v_add_f32 v{48+p}, v{48+p}, v{48+p+st}")
    rnd1(a,48,35)
    a("v_mul_f32 v48, v48, v44"); rnd1(a,48,35)
    a("v_lshlrev_b32 v42, 16, v42"); a("v_lshlrev_b32 v43, 16, v43")
    a("v_add_f32 v48, v48, v43"); rnd1(a,48,35)
    a("v_mul_f32 v48, v48, v41"); rnd1(a,48,35)
    a("v_add_f32 v48, v48, v42"); a("v_cvt_pk_bf16_f32 v48, v48, v48")
    a("s_mov_b32 exec_lo, 0xffff"); a("s_mov_b32 exec_hi, 0")
    a("buffer_store_short v48, v12, s[12:15], 0 offen")
    prof_end(a,3,5,4)
    if DIAG:
        a("s_cmp_lg_u32 s2, 223"); a("s_cbranch_scc1 L5_end")
        a("s_load_dwordx2 s[88:89], s[0:1], 136"); a("s_waitcnt lgkmcnt(0)")
        a("s_sub_u32 s84, s88, 1536"); a("s_subb_u32 s85, s89, 0"); a("s_mov_b32 s86, 2048"); a("s_mov_b32 s87, 0x20000")
        a("s_sleep 100")
        a("v_lshrrev_b32 v1, 2, v0"); a("v_lshlrev_b32 v1, 9, v1"); a("v_and_b32 v2, 3, v0"); a("v_lshl_add_u32 v1, v2, 2, v1")
        a("buffer_load_dword v3, v1, s[84:87], 0 offen offset:192 sc1")
        a("s_waitcnt vmcnt(0)")
        a("v_lshlrev_b32 v1, 2, v0")
        a("s_mov_b64 exec, 0xffff")
        a("buffer_store_dword v3, v1, s[84:87], 0 offen offset:1536")
    a.label('L5_end'); a("s_endpgm")

def desc(name, vgpr, sgpr=102):
    return f""".amdhsa_kernel {name}
  .amdhsa_next_free_vgpr {vgpr}
  .amdhsa_next_free_sgpr {sgpr}
  .amdhsa_accum_offset {(vgpr+3)//4*4}
  .amdhsa_group_segment_fixed_size 0
  .amdhsa_kernarg_size 152
  .amdhsa_user_sgpr_count 2
  .amdhsa_user_sgpr_kernarg_segment_ptr 1
  .amdhsa_system_sgpr_workgroup_id_x 1
  .amdhsa_float_denorm_mode_32 3
.end_amdhsa_kernel
"""
DEBUG_ACT=False
PREPPRIO=int(__import__('os').environ.get('PREPPRIO','1'))
STF=[(' '+x if x else '') for x in __import__('os').environ.get('STF',',sc1,sc1').split(',')]
CODEPF=int(__import__('os').environ.get('CODEPF','1'))
PREFETCH=int(__import__('os').environ.get('PREFETCH','1'))
PRIO=int(__import__('os').environ.get('PRIO','2'))
def main(path):
    hdr = open('adaLN_cond__ssm_conv_s4__moe_arch_mod__prompt.s.ref').read().split('; Override')[0]
    pv = 120 if (PROF or DIAG) else 0
    kernels=[('f1_kernel',f1,F1_GRID,256,F1_LDS,160),
             ('k3_kernel',k3,256,512,14336,128),
             ('k4_kernel',k4,224,512,L4_LDS,max(96,pv)),
             ('k5_kernel',k5,224,256,1024,max(64,pv))]
    out=hdr
    for n,f,g,b,l,v in kernels: out+=f"; @launch kernel={n} grid=({g},1,1) block=({b},1,1) lds={l}\n"
    out+='.amdgcn_target "amdgcn-amd-amdhsa--gfx950"\n.text\n'
    for n,f,g,b,l,v in kernels:
        a=Asm()
        a.raw(f".globl {n}\n.p2align 8\n.type {n},@function")
        f(a)
        out+=a.text()
    out+='CODE_END:\n'
    out+='.section .rodata,"a"\n'
    for n,f,g,b,l,v in kernels: out+='.p2align 6\n'+desc(n,v)
    open(path,'w').write(out)

if __name__=='__main__':
    if 'prof' in sys.argv[2:]: PROF=True
    if 'diag' in sys.argv[2:]: DIAG=True
    if 'dbg' in sys.argv[2:]: DEBUG_ACT=True
    main(sys.argv[1] if len(sys.argv)>1 else 'adaLN_cond__ssm_conv_s4__moe_arch_mod__prompt.s')
```
